```python
import torch

def _softmax(x, axis=-1):
    return torch.softmax(x, dim=axis)
def _gelu(x):
    return torch.nn.functional.gelu(x, approximate="tanh")
def _silu(x):
    return torch.nn.functional.silu(x)
def _sigmoid(x):
    return torch.sigmoid(x)
def _layernorm(x, axis=-1, eps=1e-5):
    m = x.mean(dim=axis, keepdim=True)
    v = x.var(dim=axis, keepdim=True, unbiased=False)
    return (x - m) / torch.sqrt(v + eps)
def _scatter_add(tgt, idx, src, axis=0):
    return tgt.clone().index_add_(axis, idx, src)
def _segment_sum(src, seg, n):
    out = torch.zeros((n,) + src.shape[1:], dtype=src.dtype)
    return out.index_add_(0, seg, src)
def _pad(x, pw):
    flat = tuple(v for pair in reversed(pw) for v in pair)
    return torch.nn.functional.pad(x, flat)

kernel_name = 'standalone__paged_block_table_kv_pagedattention__decode'

def setup_inputs():

    _w = (lambda a: (lambda t: t.to(torch.bfloat16) if t.is_floating_point() else t)(torch.as_tensor(a)))
    B, Hq, Hkv, Sq, Skv, D = 1, 16, 8, 1, 65536, 256
    bs = 16
    nbps = max(1, Skv // bs)
    num_phys = B * nbps + 4
    bt = torch.randperm(num_phys)[: B * nbps].reshape(B, nbps).to(torch.int64)
    cl = (nbps * bs - (torch.arange(1, B + 1, dtype=torch.int64) * 2654435761) % max(1, nbps * bs // 2)).to(torch.int64)
    return {
        "q": _w((lambda *s: torch.randn(*s, dtype=torch.bfloat16) * 0.8)(B, Hq, Sq, D)),
        "k_cache": _w((lambda *s: torch.randn(*s, dtype=torch.bfloat16) * 0.8)(num_phys, bs, Hkv, D)),
        "v_cache": _w((lambda *s: torch.randn(*s, dtype=torch.bfloat16) * 0.05)(num_phys, bs, Hkv, D)),
        "block_table": _w(bt),
        "context_lens": _w(cl),
    }

def reference(q, k_cache, v_cache, block_table, context_lens):
    B, Hq, Sq, D = q.shape
    bs = k_cache.shape[1]
    Hkv = k_cache.shape[2]
    nbps = block_table.shape[1]
    Skv = nbps * bs
    bt = block_table.reshape(-1)
    k = (lambda x, *d: x.permute(*d))(k_cache[bt].reshape(B, Skv, Hkv, D), 0, 2, 1, 3)
    v = (lambda x, *d: x.permute(*d))(v_cache[bt].reshape(B, Skv, Hkv, D), 0, 2, 1, 3)
    g = Hq // Hkv
    qg = q.reshape(B, Hkv, g, Sq, D)
    scores = torch.einsum("bhgqd,bhkd->bhgqk", qg, k) * (D ** -0.5)
    pos = torch.arange(Skv)
    msk = pos[None, :] < context_lens[:, None]
    scores = torch.where(msk[:, None, None, None, :], scores, -1e9)
    p = _softmax(scores, axis=-1)
    out = torch.einsum("bhgqk,bhkd->bhgqd", p, v)
    return out.reshape(B, Hq, Sq, D)
```

```python
import sys, argparse

KN = "standalone__paged_block_table_kv_pagedattention__decode_kernel"
HEADER = open("standalone__paged_block_table_kv_pagedattention__decode.s.ref").read().split("; Override launch")[0]

KV_BYTES = 4100 * 65536
STAMP_OFF = 512 << 20

class Asm:
    def __init__(self):
        self.l = []
    def __call__(self, s):
        for line in s.strip("\n").split("\n"):
            self.l.append("    " + line.strip() if not line.strip().endswith(":") else line.strip())
    def text(self):
        return "\n".join(self.l) + "\n"

def vr(b, n):
    return f"v[{b}:{b+n-1}]"

def gen(o):
    A = Asm()
    fl = (" " + o.flags) if o.flags else ""
    vK, vV0 = 2, 3
    vBT = 7
    vM, vL = 8, 9
    vT, vU, vAL, vMN = 10, 11, 12, 13
    vP = 14
    vS = 16
    vACC = 20
    vMASK = 28
    vAE = 36
    vB = 52
    vQ = 68
    SETS = [(100, 132), (164, 196)]
    vG4 = 228
    vX = 230
    nst = o.stamps
    sST = 60
    def stamp(i):
        if nst and i < nst:
            A(f"s_memrealtime s[{sST+2*i}:{sST+2*i+1}]")

    A(f"s_cmp_ge_u32 s2, 256")
    A(f"s_cbranch_scc1 L_end")
    stamp(0)
    A(f"""
    s_load_dwordx8 s[4:11], s[0:1], 0
    s_load_dwordx8 s[12:19], s[0:1], 32
    v_lshrrev_b32 v10, 6, v0
    v_and_b32 v1, 63, v0
    v_readfirstlane_b32 s29, v10
    """)
    if o.map == 0:
        A("s_and_b32 s30, s2, 7\ns_lshr_b32 s31, s2, 3")
    else:
        A("s_lshr_b32 s30, s2, 5\ns_and_b32 s31, s2, 31")
    A(f"""
    v_and_b32 v10, 15, v1
    v_lshrrev_b32 v11, 4, v1
    s_lshl_b32 s32, s29, 5
    s_add_u32 s32, s32, s31
    v_lshlrev_b32 v{vBT}, 10, v10
    s_lshl_b32 s40, s32, 2
    v_add_u32 v{vBT}, s40, v{vBT}
    s_lshl_b32 s41, s30, 9
    """)
    A(f"""
    v_bfe_u32 v12, v1, 1, 1
    v_lshlrev_b32 v12, 9, v12
    v_lshl_add_u32 v12, v11, 4, v12
    s_lshl_b32 s42, s30, 10
    v_add_u32 v12, s42, v12
    s_waitcnt lgkmcnt(0)
    global_load_dword v{vBT}, v{vBT}, s[10:11]
    s_load_dword s28, s[12:13], 0
    """)
    stamp(1)
    for j in range(8):
        A(f"global_load_dwordx4 {vr(vQ+4*j,4)}, v12, s[4:5] offset:{64*j}")
    A(f"""
    s_mov_b32 s20, s6
    s_and_b32 s21, s7, 0xffff
    s_mov_b32 s22, {KV_BYTES}
    s_mov_b32 s23, 0x20000
    s_mov_b32 s24, s8
    s_and_b32 s25, s9, 0xffff
    s_mov_b32 s26, {KV_BYTES}
    s_mov_b32 s27, 0x20000
    """)
    if o.kpat == "mfma":
        A(f"""
        v_lshlrev_b32 v{vK}, 12, v10
        v_lshl_add_u32 v{vK}, v11, 4, v{vK}
        v_add_u32 v{vK}, s41, v{vK}
        """)
    A(f"""
    v_lshlrev_b32 v{vV0}, 14, v11
    v_lshl_add_u32 v{vV0}, v10, 4, v{vV0}
    v_add_u32 v{vV0}, s41, v{vV0}
    v_add_u32 v{vV0+1}, 0x1000, v{vV0}
    v_add_u32 v{vV0+2}, 0x2000, v{vV0}
    v_add_u32 v{vV0+3}, 0x3000, v{vV0}
    v_lshlrev_b32 v{vG4}, 2, v11
    """)
    if o.kpat == "lin":
        A(f"""
        s_lshl_b32 s43, s30, 13
        v_lshlrev_b32 v{vV0}, 4, v1
        v_add_u32 v{vV0}, s43, v{vV0}
        v_add_u32 v{vV0+1}, 0x1000, v{vV0}
        """)
    A(f"""
    v_lshrrev_b32 v13, 2, v10
    v_and_b32 v14, 1, v1
    v_lshl_add_u32 v13, v13, 1, v14
    """)
    for e in range(8):
        A(f"v_cmp_eq_u32 vcc, {e}, v13")
        A(f"s_nop 1")
        A(f"v_cndmask_b32 v{vMASK+e}, 0, -1, vcc")
    A(f"""
    s_mov_b32 s37, 0x05040100
    s_mov_b32 s38, 0x07060302
    v_mov_b32 v{vM}, 0xf149f2ca
    v_mov_b32 v{vL}, 0
    """)
    for i in range(8):
        A(f"v_mov_b32 v{vACC+i}, 0")
    A(f"""
    s_waitcnt lgkmcnt(0)
    s_mov_b32 s36, 0x3db8aa3b
    s_cmp_lt_i32 s28, 1
    s_cselect_b32 s36, 0, s36
    s_cselect_b32 s28, 0x10000, s28
    s_min_i32 s28, s28, 0x10000
    s_add_u32 s33, s28, 15
    s_lshr_b32 s33, s33, 4
    s_add_u32 s33, s33, 255
    s_sub_u32 s33, s33, s32
    s_lshr_b32 s33, s33, 8
    s_waitcnt vmcnt(8)
    v_lshlrev_b32 v{vBT}, 16, v{vBT}
    s_cmp_eq_u32 s33, 0
    s_cbranch_scc1 L_done
    v_readlane_b32 s35, v{vBT}, 0
    s_mov_b32 s34, 1
    v_readlane_b32 s39, v{vBT}, s34
    s_nop 3
    """)
    stamp(2)

    def loads(st, sreg):
        kb, vb = SETS[st]
        if o.kpat == "mfma":
            for j in range(8):
                A(f"buffer_load_dwordx4 {vr(kb+4*j,4)}, v{vK}, s[20:23], {sreg} offen offset:{64*j}{fl}")
        elif o.kpat == "coal":
            for hf in range(2):
                for j in range(4):
                    A(f"buffer_load_dwordx4 {vr(kb+(hf*4+j)*4,4)}, v{vV0+j}, s[20:23], {sreg} offen offset:{256*hf}{fl}")
        elif o.kpat == "lin":
            for j in range(8):
                A(f"buffer_load_dwordx4 {vr(kb+4*j,4)}, v{vV0+(j>>2)}, s[20:23], {sreg} offen offset:{1024*(j&3)}{fl}")
        if o.kpat == "lin":
            for j in range(8):
                A(f"buffer_load_dwordx4 {vr(vb+4*j,4)}, v{vV0+(j>>2)}, s[24:27], {sreg} offen offset:{1024*(j&3)}{fl}")
        else:
            for hf in range(2):
                for j in range(4):
                    A(f"buffer_load_dwordx4 {vr(vb+(hf*4+j)*4,4)}, v{vV0+j}, s[24:27], {sreg} offen offset:{256*hf}{fl}")

    def process(st, last):
        kb, vb = SETS[st]
        base = 0 if last else 16
        A(f"s_waitcnt vmcnt({base+8})")
        if o.nocompute:
            A(f"s_waitcnt vmcnt({base})")
            return
        for j in range(8):
            c = "0" if j == 0 else vr(vS, 4)
            A(f"v_mfma_f32_16x16x32_bf16 {vr(vS,4)}, {vr(kb+4*j,4)}, {vr(vQ+4*j,4)}, {c}")
        if last:
            A(f"""
            s_sub_u32 s40, s33, 1
            s_lshl_b32 s40, s40, 8
            s_add_u32 s40, s40, s32
            s_lshl_b32 s40, s40, 4
            s_sub_u32 s40, s28, s40
            v_mov_b32 v{vU}, 0xff800000
            s_nop 1
            """)
            for r in range(4):
                A(f"v_cmp_gt_i32 vcc, s40, v{vG4}")
                A(f"s_sub_u32 s40, s40, 1")
                A(f"s_nop 0")
                A(f"v_cndmask_b32 v{vS+r}, v{vU}, v{vS+r}, vcc")
        else:
            A("s_nop 7")
        A(f"""
        v_max3_f32 v{vT}, v{vS}, v{vS+1}, v{vS+2}
        v_max_f32 v{vT}, v{vT}, v{vS+3}
        v_mov_b32 v{vU}, v{vT}
        s_nop 1
        v_permlane32_swap_b32 v{vT}, v{vU}
        v_max_f32 v{vT}, v{vT}, v{vU}
        v_mov_b32 v{vU}, v{vT}
        s_nop 1
        v_permlane16_swap_b32 v{vT}, v{vU}
        v_max_f32 v{vT}, v{vT}, v{vU}
        v_mul_f32 v{vT}, s36, v{vT}
        v_max_f32 v{vMN}, v{vM}, v{vT}
        v_sub_f32 v{vAL}, v{vM}, v{vMN}
        v_exp_f32 v{vAL}, v{vAL}
        v_mov_b32 v{vM}, v{vMN}
        """)
        for r in range(4):
            A(f"v_fma_f32 v{vS+r}, v{vS+r}, s36, -v{vMN}")
        for r in range(4):
            A(f"v_exp_f32 v{vS+r}, v{vS+r}")
        for i in range(8):
            qp = "[0,0,0,0]" if (i & 3) < 2 else "[2,2,2,2]"
            A(f"v_mul_f32_dpp v{vACC+i}, v{vAL}, v{vACC+i} quad_perm:{qp} row_mask:0xf bank_mask:0xf")
        A(f"""
        v_cvt_pk_bf16_f32 v{vP}, v{vS}, v{vS+1}
        v_cvt_pk_bf16_f32 v{vP+1}, v{vS+2}, v{vS+3}
        v_fma_f32 v{vL}, v{vL}, v{vAL}, v{vS}
        v_add_f32 v{vT}, v{vS+1}, v{vS+2}
        v_add_f32 v{vL}, v{vL}, v{vS+3}
        v_add_f32 v{vL}, v{vL}, v{vT}
        """)
        for e in range(8):
            A(f"v_and_b32 v{vAE+2*e}, v{vMASK+e}, v{vP}")
            A(f"v_and_b32 v{vAE+2*e+1}, v{vMASK+e}, v{vP+1}")
        for hf in range(2):
            A(f"s_waitcnt vmcnt({base + (4 if hf == 0 else 0)})")
            L = lambda j, t: vb + (hf * 4 + j) * 4 + t
            for t in range(4):
                b = vB + 4 * t
                A(f"v_perm_b32 v{b}, v{L(1,t)}, v{L(0,t)}, s37")
                A(f"v_perm_b32 v{b+1}, v{L(3,t)}, v{L(2,t)}, s37")
                A(f"v_perm_b32 v{b+2}, v{L(1,t)}, v{L(0,t)}, s38")
                A(f"v_perm_b32 v{b+3}, v{L(3,t)}, v{L(2,t)}, s38")
                if t >= 1:
                    tt = t - 1
                    for x in range(2):
                        e = 2 * tt + x
                        A(f"v_mfma_f32_16x16x16_bf16 {vr(vACC+4*hf,4)}, {vr(vAE+2*e,2)}, {vr(vB+4*tt+2*x,2)}, {vr(vACC+4*hf,4)}")
            for x in range(2):
                e = 6 + x
                A(f"v_mfma_f32_16x16x16_bf16 {vr(vACC+4*hf,4)}, {vr(vAE+2*e,2)}, {vr(vB+12+2*x,2)}, {vr(vACC+4*hf,4)}")

    loads(0, "s35")
    A("L_loop:")
    A(f"""
    s_cmp_ge_u32 s34, s33
    s_cbranch_scc1 L_lastA
    """)
    loads(1, "s39")
    A(f"""
    s_add_u32 s34, s34, 1
    v_readlane_b32 s35, v{vBT}, s34
    """)
    process(0, False)
    A(f"""
    s_cmp_ge_u32 s34, s33
    s_cbranch_scc1 L_lastB
    """)
    loads(0, "s35")
    A(f"""
    s_add_u32 s34, s34, 1
    v_readlane_b32 s39, v{vBT}, s34
    """)
    process(1, False)
    A("s_branch L_loop")
    A("L_lastA:")
    process(0, True)
    A("s_branch L_done")
    A("L_lastB:")
    process(1, True)
    A("L_done:")
    stamp(3)
    if not o.nocompute:
        A(f"""
        v_mov_b32 v{vU}, v{vL}
        v_lshlrev_b32 v{vX}, 4, v1
        s_lshl_b32 s40, s29, 11
        v_permlane32_swap_b32 v{vL}, v{vU}
        v_add_f32 v{vL}, v{vL}, v{vU}
        v_mov_b32 v{vU}, v{vL}
        v_add_u32 v{vX}, s40, v{vX}
        v_bfe_u32 v{vX+1}, v1, 1, 1
        v_permlane16_swap_b32 v{vL}, v{vU}
        v_add_f32 v{vL}, v{vL}, v{vU}
        s_lshl_b32 s41, s29, 4
        v_lshlrev_b32 v{vX+1}, 3, v{vX+1}
        v_add_u32 v{vX+1}, s41, v{vX+1}
        ds_write_b128 v{vX}, {vr(vACC,4)}
        ds_write_b128 v{vX}, {vr(vACC+4,4)} offset:1024
        ds_write_b64 v{vX+1}, v[{vM}:{vL}] offset:16384
        """)
        A(f"""
        v_and_b32 v{vX+2}, 15, v1
        v_lshrrev_b32 v{vX+3}, 4, v1
        v_lshlrev_b32 v{vX+4}, 4, v{vX+2}
        v_lshl_add_u32 v{vX+4}, v{vX+3}, 12, v{vX+4}
        s_lshl_b32 s40, s29, 8
        v_add_u32 v{vX+5}, s40, v{vX+4}
        v_lshlrev_b32 v{vX+6}, 5, v{vX+3}
        s_waitcnt lgkmcnt(0)
        s_barrier
        """)
        stamp(4)
        a, b, ma, mb = 100, 104, 108, 112
        A(f"""
        ds_read_b128 {vr(ma,4)}, v{vX+6} offset:16384
        ds_read_b128 {vr(mb,4)}, v{vX+6} offset:16400
        ds_read_b128 {vr(a,4)}, v{vX+5}
        ds_read_b128 {vr(b,4)}, v{vX+5} offset:2048
        """)
        A(f"""
        s_lshl_b32 s40, s30, 3
        s_add_u32 s40, s40, s29
        s_lshl_b32 s44, s40, 2
        s_lshl_b32 s40, s40, 14
        s_add_u32 s46, s18, s40
        s_addc_u32 s47, s19, 0
        s_lshl_b32 s41, s31, 9
        v_lshl_add_u32 v{vX+7}, v{vX+2}, 4, s41
        s_add_u32 s41, s41, 256
        v_mov_b32 v{vX+8}, s41
        v_mov_b32 v{vX+9}, s44
        v_mov_b32 v{vX+10}, 1
        s_waitcnt lgkmcnt(2)
        """)
        M0, L0, M1, L1 = 116, 117, 118, 119
        def allmax(x, y):
            A(f"""
            s_nop 1
            v_permlane32_swap_b32 v{x}, v{y}
            v_max_f32 v{x}, v{x}, v{y}
            v_mov_b32 v{y}, v{x}
            s_nop 1
            v_permlane16_swap_b32 v{x}, v{y}
            v_max_f32 v{x}, v{x}, v{y}
            v_mov_b32 v{y}, v{x}
            s_nop 1
            v_permlane32_swap_b32 v{x}, v{y}
            """)
        def allsum(x, l0, l1):
            A(f"""
            s_nop 1
            v_permlane32_swap_b32 v{x}, v{x+2}
            v_permlane32_swap_b32 v{x+1}, v{x+3}
            v_permlane32_swap_b32 v{l0}, v{l1}
            v_add_f32 v{x}, v{x}, v{x+2}
            v_add_f32 v{x+1}, v{x+1}, v{x+3}
            v_add_f32 v{l0}, v{l0}, v{l1}
            v_mov_b32 v{l1}, v{l0}
            v_permlane16_swap_b32 v{x}, v{x+1}
            v_add_f32 v{x}, v{x}, v{x+1}
            v_permlane16_swap_b32 v{l0}, v{l1}
            v_mov_b32 v{x+1}, v{x}
            v_add_f32 v{l0}, v{l0}, v{l1}
            v_mov_b32 v{l1}, v{l0}
            v_permlane16_swap_b32 v{x}, v{x+1}
            v_mov_b32 v{x+2}, v{x}
            v_permlane32_swap_b32 v{l0}, v{l1}
            v_mov_b32 v{x+3}, v{x+1}
            v_permlane32_swap_b32 v{x}, v{x+2}
            s_nop 0
            v_permlane32_swap_b32 v{x+1}, v{x+3}
            """)
        A(f"""
        v_max_f32 v{M0}, v{ma}, v{mb}
        v_max_f32 v{M1}, v{ma+2}, v{mb+2}
        """)
        allmax(M0, M1)
        A(f"""
        v_sub_f32 v{ma}, v{ma}, v{M0}
        v_sub_f32 v{mb}, v{mb}, v{M0}
        v_sub_f32 v{ma+2}, v{ma+2}, v{M1}
        v_sub_f32 v{mb+2}, v{mb+2}, v{M1}
        v_exp_f32 v{ma}, v{ma}
        v_exp_f32 v{mb}, v{mb}
        v_exp_f32 v{ma+2}, v{ma+2}
        v_exp_f32 v{mb+2}, v{mb+2}
        s_waitcnt lgkmcnt(0)
        v_mul_f32 v{L0}, v{ma}, v{ma+1}
        v_mul_f32 v{L1}, v{ma+2}, v{ma+3}
        v_mul_f32 v{a}, v{ma}, v{a}
        v_mul_f32 v{a+1}, v{ma}, v{a+1}
        v_mul_f32 v{a+2}, v{ma+2}, v{a+2}
        v_mul_f32 v{a+3}, v{ma+2}, v{a+3}
        v_fmac_f32 v{L0}, v{mb}, v{mb+1}
        v_fmac_f32 v{L1}, v{mb+2}, v{mb+3}
        v_fmac_f32 v{a}, v{mb}, v{b}
        v_fmac_f32 v{a+1}, v{mb}, v{b+1}
        v_fmac_f32 v{a+2}, v{mb+2}, v{b+2}
        v_fmac_f32 v{a+3}, v{mb+2}, v{b+3}
        """)
        allsum(a, L0, L1)
        A(f"""
        s_mov_b64 exec, 0xffff
        global_store_dwordx4 v{vX+7}, {vr(a,4)}, s[46:47] sc1
        s_mov_b64 exec, 1
        global_store_dwordx4 v{vX+8}, {vr(M0,4)}, s[46:47] sc1
        s_waitcnt vmcnt(0)
        """)
        stamp(5)
        A(f"""
        global_atomic_add v{vX+11}, v{vX+9}, v{vX+10}, s[16:17] sc0
        s_mov_b64 exec, -1
        v_lshlrev_b32 v{vX+6}, 12, v{vX+3}
        v_add_u32 v{vX+6}, 256, v{vX+6}
        s_waitcnt vmcnt(0)
        v_readfirstlane_b32 s40, v{vX+11}
        """)
        stamp(6)
        A(f"""
        s_cmp_lg_u32 s40, 31
        s_cbranch_scc1 L_fin
        """)
        X, ML = 100, 132
        for i in range(8):
            A(f"global_load_dwordx4 {vr(ML+4*i,4)}, v{vX+6}, s[46:47] offset:{512*i} sc1")
        for i in range(8):
            A(f"global_load_dwordx4 {vr(X+4*i,4)}, v{vX+4}, s[46:47] offset:{512*i} sc1")
        A(f"""
        s_lshl_b32 s40, s30, 10
        s_lshr_b32 s41, s29, 2
        s_lshl_b32 s41, s41, 8
        s_add_u32 s40, s40, s41
        s_and_b32 s41, s29, 3
        s_lshl_b32 s41, s41, 2
        s_add_u32 s40, s40, s41
        v_lshrrev_b32 v{vX+7}, 5, v1
        v_lshlrev_b32 v{vX+7}, 9, v{vX+7}
        v_lshl_add_u32 v{vX+7}, v{vX+2}, 4, v{vX+7}
        v_add_u32 v{vX+7}, s40, v{vX+7}
        s_waitcnt vmcnt(8)
        """)
        M0, M1, L0, L1 = 164, 165, 166, 167
        for (M, off) in ((M0, 0), (M1, 2)):
            A(f"""
            v_max3_f32 v{M}, v{ML+off}, v{ML+4+off}, v{ML+8+off}
            v_max3_f32 v{M}, v{M}, v{ML+12+off}, v{ML+16+off}
            v_max3_f32 v{M}, v{M}, v{ML+20+off}, v{ML+24+off}
            v_max_f32 v{M}, v{M}, v{ML+28+off}
            """)
        allmax(M0, M1)
        for i in range(8):
            A(f"v_sub_f32 v{ML+4*i}, v{ML+4*i}, v{M0}")
            A(f"v_sub_f32 v{ML+4*i+2}, v{ML+4*i+2}, v{M1}")
        for i in range(8):
            A(f"v_exp_f32 v{ML+4*i}, v{ML+4*i}")
            A(f"v_exp_f32 v{ML+4*i+2}, v{ML+4*i+2}")
        A(f"v_mul_f32 v{L0}, v{ML}, v{ML+1}")
        A(f"v_mul_f32 v{L1}, v{ML+2}, v{ML+3}")
        for i in range(1, 8):
            A(f"v_fmac_f32 v{L0}, v{ML+4*i}, v{ML+4*i+1}")
            A(f"v_fmac_f32 v{L1}, v{ML+4*i+2}, v{ML+4*i+3}")
        A("s_waitcnt vmcnt(0)")
        stamp(7)
        for r in range(4):
            A(f"v_mul_f32 v{X+r}, v{ML+(r>>1)*2}, v{X+r}")
        for i in range(1, 8):
            for r in range(4):
                A(f"v_fmac_f32 v{X+r}, v{ML+4*i+(r>>1)*2}, v{X+4*i+r}")
        A(f"""
        s_nop 1
        v_permlane32_swap_b32 v{X}, v{X+2}
        v_permlane32_swap_b32 v{X+1}, v{X+3}
        v_permlane32_swap_b32 v{L0}, v{L1}
        v_add_f32 v{X}, v{X}, v{X+2}
        v_add_f32 v{X+1}, v{X+1}, v{X+3}
        v_add_f32 v{L0}, v{L0}, v{L1}
        v_mov_b32 v{X+2}, v{X}
        v_mov_b32 v{X+3}, v{X+1}
        v_mov_b32 v{L1}, v{L0}
        v_permlane16_swap_b32 v{X}, v{X+2}
        v_permlane16_swap_b32 v{X+1}, v{X+3}
        v_permlane16_swap_b32 v{L0}, v{L1}
        v_add_f32 v{L0}, v{L0}, v{L1}
        v_rcp_f32 v{L0}, v{L0}
        v_add_f32 v{X}, v{X}, v{X+2}
        v_add_f32 v{X+1}, v{X+1}, v{X+3}
        v_mul_f32 v{X}, v{X}, v{L0}
        v_mul_f32 v{X+1}, v{X+1}, v{L0}
        v_cvt_pk_bf16_f32 v{X}, v{X}, v{X+1}
        s_mov_b32 exec_lo, 0xffff
        s_mov_b32 exec_hi, 0xffff
        global_store_dword v{vX+7}, v{X}, s[14:15]
        s_mov_b64 exec, -1
        """)
        A("L_fin:")
    if nst:
        A("s_waitcnt vmcnt(0)")
        stamp(nst - 1)
        A(f"""
        s_lshl_b32 s40, s2, 3
        s_add_u32 s40, s40, s29
        s_mul_i32 s40, s40, {nst*8}
        s_add_u32 s40, s40, {STAMP_OFF}
        v_mov_b32 v1, s40
        s_waitcnt lgkmcnt(0)
        s_mov_b64 exec, 1
        """)
        for i in range(nst):
            A(f"v_mov_b32 v2, s{sST+2*i}")
            A(f"v_mov_b32 v3, s{sST+2*i+1}")
            A(f"global_store_dwordx2 v1, v[2:3], s[18:19] offset:{8*i}")
            A(f"s_nop 1")
    A("L_end:")
    A("s_endpgm")
    lds = 16384 + 128
    out = HEADER
    out += f"; @launch grid=(256,1,1) block=(512,1,1) lds={lds}\n"
    out += f""".amdgcn_target "amdgcn-amd-amdhsa--gfx950"
.text
.globl {KN}
.p2align 8
.type {KN},@function
{KN}:
"""
    out += A.text()
    out += f""".section .rodata,"a"
.p2align 6
.amdhsa_kernel {KN}
  .amdhsa_next_free_vgpr 256
  .amdhsa_next_free_sgpr 102
  .amdhsa_accum_offset 256
  .amdhsa_group_segment_fixed_size 0
  .amdhsa_kernarg_size 64
  .amdhsa_user_sgpr_count 2
  .amdhsa_user_sgpr_kernarg_segment_ptr 1
  .amdhsa_system_sgpr_workgroup_id_x 1
.end_amdhsa_kernel
"""
    return out

if __name__ == "__main__":
    ap = argparse.ArgumentParser()
    ap.add_argument("out")
    ap.add_argument("--flags", default="")
    ap.add_argument("--kpat", default="mfma")
    ap.add_argument("--map", type=int, default=0)
    ap.add_argument("--nocompute", action="store_true")
    ap.add_argument("--stamps", type=int, default=0)
    o = ap.parse_args()
    open(o.out, "w").write(gen(o))
```

```python
import sys, argparse

KN = "standalone__paged_block_table_kv_pagedattention__decode_kernel"
HEADER = open("standalone__paged_block_table_kv_pagedattention__decode.s.ref").read().split("; Override launch")[0]

KV_BYTES = 4100 * 65536
STAMP_OFF = 512 << 20

class Asm:
    def __init__(self):
        self.l = []
    def __call__(self, s):
        for line in s.strip("\n").split("\n"):
            t = line.strip()
            if not t:
                continue
            self.l.append(t if t.endswith(":") else "    " + t)
    def text(self):
        return "\n".join(self.l) + "\n"

def vr(b, n):
    return f"v[{b}:{b+n-1}]"

def gen(o):
    A = Asm()
    fl = (" " + o.flags) if o.flags else ""
    W = o.window
    assert 2 <= W <= 8
    NW = 4
    STRIDE = 32 * NW
    vK0, vV0 = 2, 4
    vM, vL = 8, 9
    vT, vU, vAL, vMN = 10, 11, 12, 13
    vP = 14
    vS = 16
    vD1 = 20
    vACC = 24
    vMASK = 32
    vAE = 40
    vB = 56
    vQ = 72
    vG4 = 88
    vX = 90
    vKB = 108
    vVB = 140
    nst = o.stamps
    sST = 60
    def stamp(i):
        if nst and i < nst:
            A(f"s_memrealtime s[{sST+2*i}:{sST+2*i+1}]")

    A(f"s_cmp_ge_u32 s2, 256")
    A(f"s_cbranch_scc1 L_end")
    stamp(0)
    A(f"""
    s_load_dwordx8 s[4:11], s[0:1], 0
    s_load_dwordx8 s[12:19], s[0:1], 32
    v_lshrrev_b32 v10, 6, v0
    v_and_b32 v1, 63, v0
    v_readfirstlane_b32 s29, v10
    """)
    if o.map == 0:
        A("s_and_b32 s30, s2, 7\ns_lshr_b32 s31, s2, 3")
    elif o.map == 1:
        A("s_lshr_b32 s30, s2, 5\ns_and_b32 s31, s2, 31")
    elif o.map == 2:
        A("s_bfe_u32 s30, s2, 0x30003\ns_lshr_b32 s31, s2, 6\ns_lshl_b32 s31, s31, 3\ns_and_b32 s40, s2, 7\ns_or_b32 s31, s31, s40")
    A(f"""
    v_and_b32 v10, 15, v1
    v_lshrrev_b32 v11, 4, v1
    s_lshl_b32 s32, s29, 5
    s_add_u32 s32, s32, s31
    s_lshl_b32 s34, s32, 2
    s_lshl_b32 s41, s30, 9
    v_bfe_u32 v12, v1, 1, 1
    v_lshlrev_b32 v12, 9, v12
    v_lshl_add_u32 v12, v11, 4, v12
    v_and_b32 v14, 1, v1
    v_lshl_add_u32 v12, v14, 6, v12
    s_lshl_b32 s42, s30, 10
    v_add_u32 v12, s42, v12
    v_and_b32 v{vK0}, 7, v1
    v_lshlrev_b32 v{vK0}, 12, v{vK0}
    v_bfe_u32 v{vK0+1}, v1, 3, 1
    v_lshl_add_u32 v{vK0}, v{vK0+1}, 6, v{vK0}
    v_lshl_add_u32 v{vK0}, v11, 4, v{vK0}
    v_add_u32 v{vK0}, s41, v{vK0}
    v_add_u32 v{vK0+1}, 0x8000, v{vK0}
    s_mov_b32 s22, {KV_BYTES}
    s_mov_b32 s23, 0x20000
    s_mov_b32 s36, 0x3db8aa3b
    s_lshl_b32 s40, s32, 4
    s_waitcnt lgkmcnt(0)
    s_load_dword s28, s[12:13], 0
    s_load_dword s43, s[10:11], s34
    s_load_dword s39, s[10:11], s34 offset:{STRIDE*4}
    """)
    stamp(1)
    for j in range(4):
        A(f"global_load_dwordx4 {vr(vQ+4*j,4)}, v12, s[4:5] offset:{128*j}")
    A(f"""
    s_mov_b32 s20, s6
    s_and_b32 s21, s7, 0xffff
    s_mov_b32 s24, s8
    s_and_b32 s25, s9, 0xffff
    s_mov_b32 s26, {KV_BYTES}
    s_mov_b32 s27, 0x20000
    s_add_u32 s34, s34, {2*STRIDE*4}
    s_waitcnt lgkmcnt(0)
    s_lshl_b32 s43, s43, 16
    s_cmp_lt_i32 s28, 1
    s_cselect_b32 s36, 0, s36
    s_cselect_b32 s28, 0x10000, s28
    s_min_i32 s28, s28, 0x10000
    s_sub_i32 s33, s28, s40
    s_cmp_gt_i32 s33, 0
    s_cselect_b32 s22, s22, 0
    """)
    stamp(2)

    def load(i, sreg):
        if i < 8:
            j, hp = i >> 1, i & 1
            A(f"buffer_load_dwordx4 {vr(vKB+4*i,4)}, v{vK0+hp}, s[20:23], {sreg} offen offset:{128*j}{fl}")
        else:
            hf, j = (i - 8) >> 2, (i - 8) & 3
            A(f"buffer_load_dwordx4 {vr(vVB+4*(i-8),4)}, v{vV0+j}, s[24:27], {sreg} offen offset:{256*hf}{fl}")

    for i in range(W):
        load(i, "s43")
    A(f"""
    v_lshlrev_b32 v{vV0}, 14, v11
    v_lshl_add_u32 v{vV0}, v10, 4, v{vV0}
    v_add_u32 v{vV0}, s41, v{vV0}
    v_add_u32 v{vV0+1}, 0x1000, v{vV0}
    v_add_u32 v{vV0+2}, 0x2000, v{vV0}
    v_add_u32 v{vV0+3}, 0x3000, v{vV0}
    v_lshlrev_b32 v{vG4}, 2, v11
    v_lshrrev_b32 v13, 2, v10
    v_lshl_add_u32 v13, v13, 1, v14
    """)
    for e in range(8):
        A(f"v_cmp_eq_u32 vcc, {e}, v13")
        A(f"v_mov_b32 v{vACC+e}, 0")
        A(f"s_nop 0")
        A(f"v_cndmask_b32 v{vMASK+e}, 0, -1, vcc")
    A(f"""
    s_mov_b32 s37, 0x05040100
    s_mov_b32 s38, 0x07060302
    v_mov_b32 v{vM}, 0xf149f2ca
    v_mov_b32 v{vL}, 0
    s_cmp_le_i32 s33, 0
    s_cbranch_scc1 L_done
    """)
    if o.itstamps:
        A("s_mov_b32 m0, 0\nv_mov_b32 v89, 0\ns_memrealtime s[56:57]")

    def perms(hf, pair):
        L = lambda j, t: vVB + (hf * 4 + j) * 4 + t
        out = []
        for t in range(4):
            b = vB + 4 * t
            out.append(f"v_perm_b32 v{b+pair}, v{L(2*pair+1,t)}, v{L(2*pair,t)}, s37")
            out.append(f"v_perm_b32 v{b+2+pair}, v{L(2*pair+1,t)}, v{L(2*pair,t)}, s38")
        return out
    def pvmfma(hf, e):
        t, x = e >> 1, e & 1
        return f"v_mfma_f32_16x16x16_bf16 {vr(vACC+4*hf,4)}, {vr(vAE+2*e,2)}, {vr(vB+4*t+2*x,2)}, {vr(vACC+4*hf,4)}"

    def consume(c):
        if o.nocompute:
            return
        if c < 8:
            j, hp = c >> 1, c & 1
            d = vD1 if hp else vS
            cc = "0" if j == 0 else vr(d, 4)
            A(f"v_mfma_f32_16x16x32_bf16 {vr(d,4)}, {vr(vKB+4*c,4)}, {vr(vQ+4*j,4)}, {cc}")
        elif c == 8:
            A("s_cmp_ge_i32 s33, 16")
            A("s_nop 4")
            for r in range(4):
                A(f"v_permlane32_swap_b32 v{vS+r}, v{vD1+r}")
            for r in range(4):
                A(f"v_mov_b32_dpp v{vD1+r}, v{vD1+r} quad_perm:[1,1,3,3] row_mask:0xf bank_mask:0xf")
            for r in range(4):
                A(f"v_add_f32_dpp v{vS+r}, v{vS+r}, v{vD1+r} quad_perm:[0,0,2,2] row_mask:0xf bank_mask:0xf")
            A(f"""
            s_cbranch_scc1 L_nomask
            v_mov_b32 v{vU}, 0xff800000
            """)
            for r in range(4):
                A(f"v_cmp_gt_i32 vcc, s33, v{vG4}")
                A(f"s_sub_u32 s33, s33, 1")
                A(f"s_nop 0")
                A(f"v_cndmask_b32 v{vS+r}, v{vU}, v{vS+r}, vcc")
            A(f"L_nomask:")
            A(f"""
            v_max3_f32 v{vT}, v{vS}, v{vS+1}, v{vS+2}
            v_max_f32 v{vT}, v{vT}, v{vS+3}
            v_mov_b32 v{vU}, v{vT}
            s_nop 1
            v_permlane32_swap_b32 v{vT}, v{vU}
            v_max_f32 v{vT}, v{vT}, v{vU}
            v_mov_b32 v{vU}, v{vT}
            s_nop 1
            v_permlane16_swap_b32 v{vT}, v{vU}
            v_max_f32 v{vT}, v{vT}, v{vU}
            v_mul_f32 v{vT}, s36, v{vT}
            v_max_f32 v{vMN}, v{vM}, v{vT}
            """)
        elif c == 9:
            A(f"""
            v_sub_f32 v{vAL}, v{vM}, v{vMN}
            v_exp_f32 v{vAL}, v{vAL}
            v_mov_b32 v{vM}, v{vMN}
            """)
            for r in range(4):
                A(f"v_fma_f32 v{vS+r}, v{vS+r}, s36, -v{vMN}")
            for r in range(4):
                A(f"v_exp_f32 v{vS+r}, v{vS+r}")
            for p in perms(0, 0):
                A(p)
            A(f"""
            v_cvt_pk_bf16_f32 v{vP}, v{vS}, v{vS+1}
            v_cvt_pk_bf16_f32 v{vP+1}, v{vS+2}, v{vS+3}
            v_fma_f32 v{vL}, v{vL}, v{vAL}, v{vS}
            v_add_f32 v{vT}, v{vS+1}, v{vS+2}
            v_add_f32 v{vL}, v{vL}, v{vS+3}
            v_add_f32 v{vL}, v{vL}, v{vT}
            """)
        elif c == 10:
            for i in range(8):
                qp = "[0,0,0,0]" if (i & 3) < 2 else "[2,2,2,2]"
                A(f"v_mul_f32_dpp v{vACC+i}, v{vAL}, v{vACC+i} quad_perm:{qp} row_mask:0xf bank_mask:0xf")
            for e in range(8):
                A(f"v_and_b32 v{vAE+2*e}, v{vMASK+e}, v{vP}")
                A(f"v_and_b32 v{vAE+2*e+1}, v{vMASK+e}, v{vP+1}")
        elif c == 13:
            for p in perms(1, 0):
                A(p)
        elif c in (11, 15):
            hf = 0 if c == 11 else 1
            ps = perms(hf, 1)
            for p in ps[:4]:
                A(p)
            for e in range(4):
                A(pvmfma(hf, e))
                A(ps[4 + e])
            for e in range(4, 8):
                A(pvmfma(hf, e))

    A("L_loop:")
    for c in range(16):
        if c == 16 - W:
            if o.itstamps:
                A("s_waitcnt lgkmcnt(0)\nv_writelane_b32 v89, s56, m0\ns_add_u32 m0, m0, 1")
            A(f"""
            s_waitcnt lgkmcnt(0)
            s_lshl_b32 s44, s39, 16
            s_and_b32 s40, s34, 0x3ffc
            s_load_dword s39, s[10:11], s40
            s_add_u32 s34, s34, {STRIDE*4}
            s_cmp_gt_i32 s33, {STRIDE*16}
            s_cselect_b32 s22, s22, 0
            """)
        A(f"s_waitcnt vmcnt({W-1})")
        i = c + W
        load(i % 16, "s43" if i < 16 else "s44")
        consume(c)
    if o.itstamps:
        A("s_memrealtime s[56:57]")
    A(f"""
    s_mov_b32 s43, s44
    s_sub_i32 s33, s33, {STRIDE*16}
    s_cmp_gt_i32 s33, 0
    s_cbranch_scc1 L_loop
    """)
    A("L_done:")
    if o.itstamps:
        A(f"""
        s_waitcnt lgkmcnt(0)
        v_writelane_b32 v89, s56, m0
        s_lshl_b32 s40, s2, 2
        s_add_u32 s40, s40, s29
        s_lshl_b32 s40, s40, 8
        s_add_u32 s40, s40, {STAMP_OFF + (1<<20)}
        v_lshlrev_b32 v{vX}, 2, v1
        v_add_u32 v{vX}, s40, v{vX}
        global_store_dword v{vX}, v89, s[18:19]
        """)
    stamp(3)

    def allmax(x, y):
        A(f"""
        s_nop 1
        v_permlane32_swap_b32 v{x}, v{y}
        v_max_f32 v{x}, v{x}, v{y}
        v_mov_b32 v{y}, v{x}
        s_nop 1
        v_permlane16_swap_b32 v{x}, v{y}
        v_max_f32 v{x}, v{x}, v{y}
        v_mov_b32 v{y}, v{x}
        s_nop 1
        v_permlane32_swap_b32 v{x}, v{y}
        """)
    def red8(x, y, l0, l1):
        A(f"""
        s_nop 1
        v_permlane32_swap_b32 v{l0}, v{l1}
        v_permlane32_swap_b32 v{x}, v{y}
        v_permlane32_swap_b32 v{x+1}, v{y+1}
        v_permlane32_swap_b32 v{x+2}, v{y+2}
        v_permlane32_swap_b32 v{x+3}, v{y+3}
        v_add_f32 v{l0}, v{l0}, v{l1}
        v_add_f32 v{x}, v{x}, v{y}
        v_add_f32 v{x+1}, v{x+1}, v{y+1}
        v_add_f32 v{x+2}, v{x+2}, v{y+2}
        v_add_f32 v{x+3}, v{x+3}, v{y+3}
        v_mov_b32 v{l1}, v{l0}
        v_permlane16_swap_b32 v{x}, v{x+1}
        v_add_f32 v{x}, v{x}, v{x+1}
        v_permlane16_swap_b32 v{x+2}, v{x+3}
        v_add_f32 v{x+2}, v{x+2}, v{x+3}
        v_permlane16_swap_b32 v{l0}, v{l1}
        v_mov_b32 v{x+1}, v{x}
        v_mov_b32 v{x+3}, v{x+2}
        v_add_f32 v{l0}, v{l0}, v{l1}
        v_permlane16_swap_b32 v{x}, v{x+1}
        v_mov_b32 v{l1}, v{l0}
        v_permlane16_swap_b32 v{x+2}, v{x+3}
        s_nop 0
        v_permlane32_swap_b32 v{l0}, v{l1}
        """)

    if not o.nocompute:
        A(f"""
        v_mov_b32 v{vU}, v{vL}
        v_lshlrev_b32 v{vX}, 4, v1
        s_lshl_b32 s40, s29, 11
        v_permlane32_swap_b32 v{vL}, v{vU}
        v_add_f32 v{vL}, v{vL}, v{vU}
        v_mov_b32 v{vU}, v{vL}
        v_add_u32 v{vX}, s40, v{vX}
        v_bfe_u32 v{vX+1}, v1, 1, 1
        v_permlane16_swap_b32 v{vL}, v{vU}
        v_add_f32 v{vL}, v{vL}, v{vU}
        s_lshl_b32 s41, s29, 4
        v_lshlrev_b32 v{vX+1}, 3, v{vX+1}
        v_add_u32 v{vX+1}, s41, v{vX+1}
        ds_write_b128 v{vX}, {vr(vACC,4)}
        ds_write_b128 v{vX}, {vr(vACC+4,4)} offset:1024
        ds_write_b64 v{vX+1}, v[{vM}:{vL}] offset:8192
        """)
        A(f"""
        v_and_b32 v{vX+2}, 15, v1
        v_lshrrev_b32 v{vX+3}, 4, v1
        v_lshlrev_b32 v{vX+4}, 4, v{vX+2}
        v_lshl_add_u32 v{vX+5}, v{vX+3}, 11, v{vX+4}
        s_lshl_b32 s40, s29, 8
        v_add_u32 v{vX+5}, s40, v{vX+5}
        v_lshlrev_b32 v{vX+6}, 4, v{vX+3}
        s_lshl_b32 s40, s30, 2
        s_add_u32 s40, s40, s29
        s_lshl_b32 s44, s40, 2
        s_lshl_b32 s40, s40, 15
        s_add_u32 s46, s18, s40
        s_addc_u32 s47, s19, 0
        s_lshl_b32 s41, s31, 10
        v_lshrrev_b32 v{vX+7}, 5, v1
        v_lshl_add_u32 v{vX+7}, v{vX+7}, 8, v{vX+4}
        v_add_u32 v{vX+7}, s41, v{vX+7}
        s_add_u32 s41, s41, 512
        v_mov_b32 v{vX+8}, s41
        v_mov_b32 v{vX+9}, s44
        v_mov_b32 v{vX+10}, 1
        s_waitcnt lgkmcnt(0)
        s_barrier
        """)
        stamp(4)
        a, b, ma = vAE, vAE + 4, vAE + 8
        M0, L0, M1, L1 = vAE + 12, vAE + 13, vAE + 14, vAE + 15
        A(f"""
        ds_read_b128 {vr(ma,4)}, v{vX+6} offset:8192
        ds_read_b128 {vr(a,4)}, v{vX+5}
        ds_read_b128 {vr(b,4)}, v{vX+5} offset:1024
        s_waitcnt lgkmcnt(2)
        v_mov_b32 v{M0}, v{ma}
        v_mov_b32 v{M1}, v{ma+2}
        """)
        allmax(M0, M1)
        A(f"""
        v_sub_f32 v{ma}, v{ma}, v{M0}
        v_sub_f32 v{ma+2}, v{ma+2}, v{M1}
        v_exp_f32 v{ma}, v{ma}
        v_exp_f32 v{ma+2}, v{ma+2}
        s_waitcnt lgkmcnt(0)
        v_mul_f32 v{L0}, v{ma}, v{ma+1}
        v_mul_f32 v{L1}, v{ma+2}, v{ma+3}
        v_mul_f32 v{a}, v{ma}, v{a}
        v_mul_f32 v{a+1}, v{ma}, v{a+1}
        v_mul_f32 v{a+2}, v{ma+2}, v{a+2}
        v_mul_f32 v{a+3}, v{ma+2}, v{a+3}
        v_mul_f32 v{b}, v{ma}, v{b}
        v_mul_f32 v{b+1}, v{ma}, v{b+1}
        v_mul_f32 v{b+2}, v{ma+2}, v{b+2}
        v_mul_f32 v{b+3}, v{ma+2}, v{b+3}
        """)
        red8(a, b, L0, L1)
        A(f"""
        s_mov_b32 exec_lo, 0xffff
        s_mov_b32 exec_hi, 0xffff
        global_store_dwordx4 v{vX+7}, {vr(a,4)}, s[46:47] sc1
        s_mov_b64 exec, 1
        global_store_dwordx4 v{vX+8}, {vr(M0,4)}, s[46:47] sc1
        s_waitcnt vmcnt(0)
        """)
        stamp(5)
        A(f"""
        global_atomic_add v{vX+11}, v{vX+9}, v{vX+10}, s[16:17] sc0
        s_mov_b64 exec, -1
        v_lshlrev_b32 v{vX+6}, 13, v{vX+3}
        v_add_u32 v{vX+4}, v{vX+6}, v{vX+4}
        v_add_u32 v{vX+5}, 0x1000, v{vX+4}
        v_add_u32 v{vX+6}, 512, v{vX+6}
        v_add_u32 v{vX+12}, 0x1000, v{vX+6}
        s_waitcnt vmcnt(0)
        v_readfirstlane_b32 s40, v{vX+11}
        """)
        stamp(6)
        A(f"""
        s_cmp_lg_u32 s40, 31
        s_cbranch_scc1 L_fin
        """)
        X, Y, ML = 108, 140, 172
        for i in range(8):
            A(f"global_load_dwordx4 {vr(ML+4*i,4)}, v{vX+6 if i < 4 else vX+12}, s[46:47] offset:{1024*(i&3)} sc1")
        for i in range(8):
            A(f"global_load_dwordx4 {vr(X+4*i,4)}, v{vX+4 if i < 4 else vX+5}, s[46:47] offset:{1024*(i&3)} sc1")
            A(f"global_load_dwordx4 {vr(Y+4*i,4)}, v{vX+4 if i < 4 else vX+5}, s[46:47] offset:{1024*(i&3)+256} sc1")
        A(f"""
        s_lshl_b32 s40, s30, 10
        s_lshl_b32 s41, s29, 2
        s_add_u32 s40, s40, s41
        v_lshrrev_b32 v{vX+7}, 5, v1
        v_lshlrev_b32 v{vX+7}, 8, v{vX+7}
        v_lshl_add_u32 v{vX+7}, v{vX+2}, 4, v{vX+7}
        v_add_u32 v{vX+7}, s40, v{vX+7}
        s_waitcnt vmcnt(16)
        """)
        M0, M1, L0, L1 = vAE, vAE + 1, vAE + 2, vAE + 3
        for (M, off) in ((M0, 0), (M1, 2)):
            A(f"""
            v_max3_f32 v{M}, v{ML+off}, v{ML+4+off}, v{ML+8+off}
            v_max3_f32 v{M}, v{M}, v{ML+12+off}, v{ML+16+off}
            v_max3_f32 v{M}, v{M}, v{ML+20+off}, v{ML+24+off}
            v_max_f32 v{M}, v{M}, v{ML+28+off}
            """)
        allmax(M0, M1)
        for i in range(8):
            A(f"v_sub_f32 v{ML+4*i}, v{ML+4*i}, v{M0}")
            A(f"v_sub_f32 v{ML+4*i+2}, v{ML+4*i+2}, v{M1}")
        for i in range(8):
            A(f"v_exp_f32 v{ML+4*i}, v{ML+4*i}")
            A(f"v_exp_f32 v{ML+4*i+2}, v{ML+4*i+2}")
        A(f"v_mul_f32 v{L0}, v{ML}, v{ML+1}")
        A(f"v_mul_f32 v{L1}, v{ML+2}, v{ML+3}")
        for i in range(1, 8):
            A(f"v_fmac_f32 v{L0}, v{ML+4*i}, v{ML+4*i+1}")
            A(f"v_fmac_f32 v{L1}, v{ML+4*i+2}, v{ML+4*i+3}")
        A("s_waitcnt vmcnt(0)")
        stamp(7)
        for Z in (X, Y):
            for r in range(4):
                A(f"v_mul_f32 v{Z+r}, v{ML+(r>>1)*2}, v{Z+r}")
        for i in range(1, 8):
            for Z in (X, Y):
                for r in range(4):
                    A(f"v_fmac_f32 v{Z+r}, v{ML+4*i+(r>>1)*2}, v{Z+4*i+r}")
        red8(X, Y, L0, L1)
        A(f"""
        v_rcp_f32 v{L0}, v{L0}
        v_rcp_f32 v{L1}, v{L1}
        s_mov_b32 exec_lo, 0xffff
        s_mov_b32 exec_hi, 0xffff
        v_mul_f32 v{X}, v{X}, v{L0}
        v_mul_f32 v{X+1}, v{X+1}, v{L0}
        v_mul_f32 v{X+2}, v{X+2}, v{L1}
        v_mul_f32 v{X+3}, v{X+3}, v{L1}
        v_cvt_pk_bf16_f32 v{X}, v{X}, v{X+1}
        v_cvt_pk_bf16_f32 v{X+1}, v{X+2}, v{X+3}
        global_store_dword v{vX+7}, v{X}, s[14:15]
        global_store_dword v{vX+7}, v{X+1}, s[14:15] offset:512
        s_mov_b64 exec, -1
        """)
        A("L_fin:")
    if nst:
        A("s_waitcnt vmcnt(0)")
        stamp(nst - 1)
        A(f"""
        s_lshl_b32 s40, s2, 2
        s_add_u32 s40, s40, s29
        s_mul_i32 s40, s40, {nst*8}
        s_add_u32 s40, s40, {STAMP_OFF}
        v_mov_b32 v1, s40
        s_waitcnt lgkmcnt(0)
        s_mov_b64 exec, 1
        """)
        for i in range(nst):
            A(f"v_mov_b32 v2, s{sST+2*i}")
            A(f"v_mov_b32 v3, s{sST+2*i+1}")
            A(f"global_store_dwordx2 v1, v[2:3], s[18:19] offset:{8*i}")
            A(f"s_nop 1")
    A("L_end:")
    A("s_endpgm")
    lds = 8192 + 64
    out = HEADER
    out += f"; @launch grid=(256,1,1) block=(256,1,1) lds={lds}\n"
    out += f""".amdgcn_target "amdgcn-amd-amdhsa--gfx950"
.text
.globl {KN}
.p2align 8
.type {KN},@function
{KN}:
"""
    out += A.text()
    out += f""".section .rodata,"a"
.p2align 6
.amdhsa_kernel {KN}
  .amdhsa_next_free_vgpr {o.vgpr}
  .amdhsa_next_free_sgpr 102
  .amdhsa_accum_offset 256
  .amdhsa_group_segment_fixed_size 0
  .amdhsa_kernarg_size 64
  .amdhsa_user_sgpr_count 2
  .amdhsa_user_sgpr_kernarg_segment_ptr 1
  .amdhsa_system_sgpr_workgroup_id_x 1
.end_amdhsa_kernel
"""
    return out

if __name__ == "__main__":
    ap = argparse.ArgumentParser()
    ap.add_argument("out")
    ap.add_argument("--flags", default="nt")
    ap.add_argument("--map", type=int, default=2)
    ap.add_argument("--window", type=int, default=6)
    ap.add_argument("--vgpr", type=int, default=512)
    ap.add_argument("--nocompute", action="store_true")
    ap.add_argument("--stamps", type=int, default=0)
    ap.add_argument("--itstamps", action="store_true")
    o = ap.parse_args()
    open(o.out, "w").write(gen(o))
```

```python
import sys, argparse

KN = "standalone__paged_block_table_kv_pagedattention__decode_kernel"
HEADER = open("standalone__paged_block_table_kv_pagedattention__decode.s.ref").read().split("; Override launch")[0]

KV_BYTES = 4100 * 65536
STAMP_OFF = 512 << 20

class Asm:
    def __init__(self):
        self.l = []
    def __call__(self, s):
        for line in s.strip("\n").split("\n"):
            t = line.strip()
            if not t:
                continue
            self.l.append(t if t.endswith(":") else "    " + t)
    def text(self):
        return "\n".join(self.l) + "\n"

def vr(b, n):
    return f"v[{b}:{b+n-1}]"

def gen(o):
    A = Asm()
    flk = (" " + o.flags.replace("_", " ")) if o.flags != "none" else ""
    vf = o.vflags if o.vflags is not None else o.flags
    flv = (" " + vf.replace("_", " ")) if vf != "none" else ""
    W = o.window
    assert 2 <= W <= 8
    NW = 4
    STRIDE = 32 * NW
    vK0, vV0 = 2, 4
    vM, vL = 8, 9
    vT, vU, vAL, vMN = 10, 11, 12, 13
    vP = 14
    vS = 16
    vD1 = 20
    vACC = 24
    vMASK = 32
    vAE = 40
    vB = 56
    vQ = 72
    vG4 = 88
    vX = 90
    vKB = 108
    vVB = 140
    nst = o.stamps
    sST = 60
    def stamp(i):
        if nst and i < nst:
            A(f"s_memrealtime s[{sST+2*i}:{sST+2*i+1}]")

    A(f"s_cmp_ge_u32 s2, 256")
    A(f"s_cbranch_scc1 L_end")
    stamp(0)
    A(f"""
    s_load_dwordx8 s[4:11], s[0:1], 0
    s_load_dwordx8 s[12:19], s[0:1], 32
    v_lshrrev_b32 v10, 6, v0
    v_and_b32 v1, 63, v0
    v_readfirstlane_b32 s29, v10
    """)
    if o.map == 0:
        A("s_and_b32 s30, s2, 7\ns_lshr_b32 s31, s2, 3")
    elif o.map == 1:
        A("s_lshr_b32 s30, s2, 5\ns_and_b32 s31, s2, 31")
    elif o.map == 2:
        A("s_bfe_u32 s30, s2, 0x30003\ns_lshr_b32 s31, s2, 6\ns_lshl_b32 s31, s31, 3\ns_and_b32 s40, s2, 7\ns_or_b32 s31, s31, s40")
    A(f"""
    v_and_b32 v10, 15, v1
    v_lshrrev_b32 v11, 4, v1
    s_lshl_b32 s32, s29, 5
    s_add_u32 s32, s32, s31
    s_lshl_b32 s34, s32, 2
    s_lshl_b32 s41, s30, 9
    v_bfe_u32 v12, v1, 1, 1
    v_lshlrev_b32 v12, 9, v12
    v_lshl_add_u32 v12, v11, 4, v12
    v_and_b32 v14, 1, v1
    v_lshl_add_u32 v12, v14, 6, v12
    s_lshl_b32 s42, s30, 10
    v_add_u32 v12, s42, v12
    v_and_b32 v{vK0}, 7, v1
    v_lshlrev_b32 v{vK0}, 12, v{vK0}
    v_bfe_u32 v{vK0+1}, v1, 3, 1
    v_lshl_add_u32 v{vK0}, v{vK0+1}, 6, v{vK0}
    v_lshl_add_u32 v{vK0}, v11, 4, v{vK0}
    v_add_u32 v{vK0}, s41, v{vK0}
    v_add_u32 v{vK0+1}, 0x8000, v{vK0}
    s_mov_b32 s22, {KV_BYTES}
    s_mov_b32 s23, 0x20000
    s_mov_b32 s36, 0x3db8aa3b
    s_lshl_b32 s40, s32, 4
    s_waitcnt lgkmcnt(0)
    s_load_dword s28, s[12:13], 0
    s_load_dword s43, s[10:11], s34
    s_load_dword s39, s[10:11], s34 offset:{STRIDE*4}
    """)
    stamp(1)
    for j in range(4):
        A(f"global_load_dwordx4 {vr(vQ+4*j,4)}, v12, s[4:5] offset:{128*j}")
    A(f"""
    s_mov_b32 s20, s6
    s_and_b32 s21, s7, 0xffff
    s_mov_b32 s24, s8
    s_and_b32 s25, s9, 0xffff
    s_mov_b32 s26, {KV_BYTES}
    s_mov_b32 s27, 0x20000
    s_add_u32 s34, s34, {2*STRIDE*4}
    s_waitcnt lgkmcnt(0)
    s_lshl_b32 s43, s43, 16
    s_cmp_lt_i32 s28, 1
    s_cselect_b32 s36, 0, s36
    s_cselect_b32 s28, 0x10000, s28
    s_min_i32 s28, s28, 0x10000
    s_sub_i32 s33, s28, s40
    s_cmp_gt_i32 s33, 0
    s_cselect_b32 s22, s22, 0
    """)
    stamp(2)

    def load(i, sreg):
        if i < 8:
            j, hp = i >> 1, i & 1
            A(f"buffer_load_dwordx4 {vr(vKB+4*i,4)}, v{vK0+hp}, s[20:23], {sreg} offen offset:{128*j}{flk}")
        else:
            hf, j = (i - 8) >> 2, (i - 8) & 3
            A(f"buffer_load_dwordx4 {vr(vVB+4*(i-8),4)}, v{vV0+j}, s[24:27], {sreg} offen offset:{256*hf}{flv}")

    for i in range(W):
        load(i, "s43")
    A(f"""
    v_lshlrev_b32 v{vV0}, 14, v11
    v_lshl_add_u32 v{vV0}, v10, 4, v{vV0}
    v_add_u32 v{vV0}, s41, v{vV0}
    v_add_u32 v{vV0+1}, 0x1000, v{vV0}
    v_add_u32 v{vV0+2}, 0x2000, v{vV0}
    v_add_u32 v{vV0+3}, 0x3000, v{vV0}
    v_lshlrev_b32 v{vG4}, 2, v11
    v_lshrrev_b32 v13, 2, v10
    v_lshl_add_u32 v13, v13, 1, v14
    """)
    for e in range(8):
        A(f"v_cmp_eq_u32 vcc, {e}, v13")
        A(f"v_mov_b32 v{vACC+e}, 0")
        A(f"s_nop 0")
        A(f"v_cndmask_b32 v{vMASK+e}, 0, -1, vcc")
    A(f"""
    s_mov_b32 s37, 0x05040100
    s_mov_b32 s38, 0x07060302
    v_mov_b32 v{vM}, 0xf149f2ca
    v_mov_b32 v{vL}, 0
    s_cmp_le_i32 s33, 0
    s_cbranch_scc1 L_done
    """)
    if o.itstamps:
        A("s_mov_b32 m0, 0\nv_mov_b32 v89, 0\ns_memrealtime s[56:57]")

    def perms(hf, pair):
        L = lambda j, t: vVB + (hf * 4 + j) * 4 + t
        out = []
        for t in range(4):
            b = vB + 4 * t
            out.append(f"v_perm_b32 v{b+pair}, v{L(2*pair+1,t)}, v{L(2*pair,t)}, s37")
            out.append(f"v_perm_b32 v{b+2+pair}, v{L(2*pair+1,t)}, v{L(2*pair,t)}, s38")
        return out
    def pvmfma(hf, e):
        t, x = e >> 1, e & 1
        return f"v_mfma_f32_16x16x16_bf16 {vr(vACC+4*hf,4)}, {vr(vAE+2*e,2)}, {vr(vB+4*t+2*x,2)}, {vr(vACC+4*hf,4)}"

    def consume(c):
        if o.nocompute:
            return
        if c < 8:
            j, hp = c >> 1, c & 1
            d = vD1 if hp else vS
            cc = "0" if j == 0 else vr(d, 4)
            A(f"v_mfma_f32_16x16x32_bf16 {vr(d,4)}, {vr(vKB+4*c,4)}, {vr(vQ+4*j,4)}, {cc}")
        elif c == 8:
            A("s_cmp_ge_i32 s33, 16")
            A("s_nop 4")
            for r in range(4):
                A(f"v_permlane32_swap_b32 v{vS+r}, v{vD1+r}")
            for r in range(4):
                A(f"v_mov_b32_dpp v{vD1+r}, v{vD1+r} quad_perm:[1,1,3,3] row_mask:0xf bank_mask:0xf")
            for r in range(4):
                A(f"v_add_f32_dpp v{vS+r}, v{vS+r}, v{vD1+r} quad_perm:[0,0,2,2] row_mask:0xf bank_mask:0xf")
            A(f"""
            s_cbranch_scc1 L_nomask
            v_mov_b32 v{vU}, 0xff800000
            """)
            for r in range(4):
                A(f"v_cmp_gt_i32 vcc, s33, v{vG4}")
                A(f"s_sub_u32 s33, s33, 1")
                A(f"s_nop 0")
                A(f"v_cndmask_b32 v{vS+r}, v{vU}, v{vS+r}, vcc")
            A(f"L_nomask:")
            A(f"""
            v_max3_f32 v{vT}, v{vS}, v{vS+1}, v{vS+2}
            v_max_f32 v{vT}, v{vT}, v{vS+3}
            v_mov_b32 v{vU}, v{vT}
            s_nop 1
            v_permlane32_swap_b32 v{vT}, v{vU}
            v_max_f32 v{vT}, v{vT}, v{vU}
            v_mov_b32 v{vU}, v{vT}
            s_nop 1
            v_permlane16_swap_b32 v{vT}, v{vU}
            v_max_f32 v{vT}, v{vT}, v{vU}
            v_mul_f32 v{vT}, s36, v{vT}
            v_max_f32 v{vMN}, v{vM}, v{vT}
            """)
        elif c == 9:
            A(f"""
            v_sub_f32 v{vAL}, v{vM}, v{vMN}
            v_exp_f32 v{vAL}, v{vAL}
            v_mov_b32 v{vM}, v{vMN}
            """)
            for r in range(4):
                A(f"v_fma_f32 v{vS+r}, v{vS+r}, s36, -v{vMN}")
            for r in range(4):
                A(f"v_exp_f32 v{vS+r}, v{vS+r}")
            for p in perms(0, 0):
                A(p)
            A(f"""
            v_cvt_pk_bf16_f32 v{vP}, v{vS}, v{vS+1}
            v_cvt_pk_bf16_f32 v{vP+1}, v{vS+2}, v{vS+3}
            v_fma_f32 v{vL}, v{vL}, v{vAL}, v{vS}
            v_add_f32 v{vT}, v{vS+1}, v{vS+2}
            v_add_f32 v{vL}, v{vL}, v{vS+3}
            v_add_f32 v{vL}, v{vL}, v{vT}
            """)
        elif c == 10:
            for i in range(8):
                qp = "[0,0,0,0]" if (i & 3) < 2 else "[2,2,2,2]"
                A(f"v_mul_f32_dpp v{vACC+i}, v{vAL}, v{vACC+i} quad_perm:{qp} row_mask:0xf bank_mask:0xf")
            for e in range(8):
                A(f"v_and_b32 v{vAE+2*e}, v{vMASK+e}, v{vP}")
                A(f"v_and_b32 v{vAE+2*e+1}, v{vMASK+e}, v{vP+1}")
        elif c == 13:
            for p in perms(1, 0):
                A(p)
        elif c in (11, 15):
            hf = 0 if c == 11 else 1
            ps = perms(hf, 1)
            for p in ps[:4]:
                A(p)
            for e in range(4):
                A(pvmfma(hf, e))
                A(ps[4 + e])
            for e in range(4, 8):
                A(pvmfma(hf, e))

    A("L_loop:")
    for c in range(16):
        if c == 16 - W:
            if o.itstamps:
                A("s_waitcnt lgkmcnt(0)\nv_writelane_b32 v89, s56, m0\ns_add_u32 m0, m0, 1")
            A(f"""
            s_waitcnt lgkmcnt(0)
            s_lshl_b32 s44, s39, 16
            s_and_b32 s40, s34, 0x3ffc
            s_load_dword s39, s[10:11], s40
            s_add_u32 s34, s34, {STRIDE*4}
            s_cmp_gt_i32 s33, {STRIDE*16}
            s_cselect_b32 s22, s22, 0
            """)
        A(f"s_waitcnt vmcnt({W-1})")
        i = c + W
        load(i % 16, "s43" if i < 16 else "s44")
        consume(c)
    if o.itstamps:
        A("s_memrealtime s[56:57]")
    A(f"""
    s_mov_b32 s43, s44
    s_sub_i32 s33, s33, {STRIDE*16}
    s_cmp_gt_i32 s33, 0
    s_cbranch_scc1 L_loop
    """)
    A("L_done:")
    if o.itstamps:
        A(f"""
        s_waitcnt lgkmcnt(0)
        v_writelane_b32 v89, s56, m0
        s_lshl_b32 s40, s2, 2
        s_add_u32 s40, s40, s29
        s_lshl_b32 s40, s40, 8
        s_add_u32 s40, s40, {STAMP_OFF + (1<<20)}
        v_lshlrev_b32 v{vX}, 2, v1
        v_add_u32 v{vX}, s40, v{vX}
        global_store_dword v{vX}, v89, s[18:19]
        """)
    stamp(3)

    def allmax(x, y):
        A(f"""
        s_nop 1
        v_permlane32_swap_b32 v{x}, v{y}
        v_max_f32 v{x}, v{x}, v{y}
        v_mov_b32 v{y}, v{x}
        s_nop 1
        v_permlane16_swap_b32 v{x}, v{y}
        v_max_f32 v{x}, v{x}, v{y}
        v_mov_b32 v{y}, v{x}
        s_nop 1
        v_permlane32_swap_b32 v{x}, v{y}
        """)
    def red8(x, y, l0, l1):
        A(f"""
        s_nop 1
        v_permlane32_swap_b32 v{l0}, v{l1}
        v_permlane32_swap_b32 v{x}, v{y}
        v_permlane32_swap_b32 v{x+1}, v{y+1}
        v_permlane32_swap_b32 v{x+2}, v{y+2}
        v_permlane32_swap_b32 v{x+3}, v{y+3}
        v_add_f32 v{l0}, v{l0}, v{l1}
        v_add_f32 v{x}, v{x}, v{y}
        v_add_f32 v{x+1}, v{x+1}, v{y+1}
        v_add_f32 v{x+2}, v{x+2}, v{y+2}
        v_add_f32 v{x+3}, v{x+3}, v{y+3}
        v_mov_b32 v{l1}, v{l0}
        v_permlane16_swap_b32 v{x}, v{x+1}
        v_add_f32 v{x}, v{x}, v{x+1}
        v_permlane16_swap_b32 v{x+2}, v{x+3}
        v_add_f32 v{x+2}, v{x+2}, v{x+3}
        v_permlane16_swap_b32 v{l0}, v{l1}
        v_mov_b32 v{x+1}, v{x}
        v_mov_b32 v{x+3}, v{x+2}
        v_add_f32 v{l0}, v{l0}, v{l1}
        v_permlane16_swap_b32 v{x}, v{x+1}
        v_mov_b32 v{l1}, v{l0}
        v_permlane16_swap_b32 v{x+2}, v{x+3}
        s_nop 0
        v_permlane32_swap_b32 v{l0}, v{l1}
        """)

    if not o.nocompute:
        A(f"""
        v_mov_b32 v{vU}, v{vL}
        v_lshlrev_b32 v{vX}, 4, v1
        s_lshl_b32 s40, s29, 11
        v_permlane32_swap_b32 v{vL}, v{vU}
        v_add_f32 v{vL}, v{vL}, v{vU}
        v_mov_b32 v{vU}, v{vL}
        v_add_u32 v{vX}, s40, v{vX}
        v_bfe_u32 v{vX+1}, v1, 1, 1
        v_permlane16_swap_b32 v{vL}, v{vU}
        v_add_f32 v{vL}, v{vL}, v{vU}
        s_lshl_b32 s41, s29, 4
        v_lshlrev_b32 v{vX+1}, 3, v{vX+1}
        v_add_u32 v{vX+1}, s41, v{vX+1}
        ds_write_b128 v{vX}, {vr(vACC,4)}
        ds_write_b128 v{vX}, {vr(vACC+4,4)} offset:1024
        ds_write_b64 v{vX+1}, v[{vM}:{vL}] offset:8192
        """)
        A(f"""
        v_and_b32 v{vX+2}, 15, v1
        v_lshrrev_b32 v{vX+3}, 4, v1
        v_lshlrev_b32 v{vX+4}, 4, v{vX+2}
        v_lshl_add_u32 v{vX+5}, v{vX+3}, 11, v{vX+4}
        s_lshl_b32 s40, s29, 8
        v_add_u32 v{vX+5}, s40, v{vX+5}
        v_lshlrev_b32 v{vX+6}, 4, v{vX+3}
        s_lshl_b32 s40, s30, 2
        s_add_u32 s40, s40, s29
        s_lshl_b32 s44, s40, 2
        s_lshl_b32 s40, s40, 15
        s_add_u32 s46, s18, s40
        s_addc_u32 s47, s19, 0
        s_lshl_b32 s41, s31, 10
        v_lshrrev_b32 v{vX+7}, 5, v1
        v_lshl_add_u32 v{vX+7}, v{vX+7}, 8, v{vX+4}
        v_add_u32 v{vX+7}, s41, v{vX+7}
        s_add_u32 s41, s41, 512
        v_mov_b32 v{vX+8}, s41
        v_mov_b32 v{vX+9}, s44
        v_mov_b32 v{vX+10}, 1
        s_waitcnt lgkmcnt(0)
        s_barrier
        """)
        stamp(4)
        a, b, ma = vAE, vAE + 4, vAE + 8
        M0, L0, M1, L1 = vAE + 12, vAE + 13, vAE + 14, vAE + 15
        A(f"""
        ds_read_b128 {vr(ma,4)}, v{vX+6} offset:8192
        ds_read_b128 {vr(a,4)}, v{vX+5}
        ds_read_b128 {vr(b,4)}, v{vX+5} offset:1024
        s_waitcnt lgkmcnt(2)
        v_mov_b32 v{M0}, v{ma}
        v_mov_b32 v{M1}, v{ma+2}
        """)
        allmax(M0, M1)
        A(f"""
        v_sub_f32 v{ma}, v{ma}, v{M0}
        v_sub_f32 v{ma+2}, v{ma+2}, v{M1}
        v_exp_f32 v{ma}, v{ma}
        v_exp_f32 v{ma+2}, v{ma+2}
        s_waitcnt lgkmcnt(0)
        v_mul_f32 v{L0}, v{ma}, v{ma+1}
        v_mul_f32 v{L1}, v{ma+2}, v{ma+3}
        v_mul_f32 v{a}, v{ma}, v{a}
        v_mul_f32 v{a+1}, v{ma}, v{a+1}
        v_mul_f32 v{a+2}, v{ma+2}, v{a+2}
        v_mul_f32 v{a+3}, v{ma+2}, v{a+3}
        v_mul_f32 v{b}, v{ma}, v{b}
        v_mul_f32 v{b+1}, v{ma}, v{b+1}
        v_mul_f32 v{b+2}, v{ma+2}, v{b+2}
        v_mul_f32 v{b+3}, v{ma+2}, v{b+3}
        """)
        red8(a, b, L0, L1)
        A(f"""
        s_mov_b32 exec_lo, 0xffff
        s_mov_b32 exec_hi, 0xffff
        global_store_dwordx4 v{vX+7}, {vr(a,4)}, s[46:47] sc1
        s_mov_b64 exec, 1
        global_store_dwordx4 v{vX+8}, {vr(M0,4)}, s[46:47] sc1
        s_waitcnt vmcnt(0)
        """)
        stamp(5)
        A(f"""
        global_atomic_add v{vX+11}, v{vX+9}, v{vX+10}, s[16:17] sc0
        s_mov_b64 exec, -1
        v_lshlrev_b32 v{vX+6}, 13, v{vX+3}
        v_add_u32 v{vX+4}, v{vX+6}, v{vX+4}
        v_add_u32 v{vX+5}, 0x1000, v{vX+4}
        v_add_u32 v{vX+6}, 512, v{vX+6}
        v_add_u32 v{vX+12}, 0x1000, v{vX+6}
        s_waitcnt vmcnt(0)
        v_readfirstlane_b32 s40, v{vX+11}
        """)
        stamp(6)
        A(f"""
        s_cmp_lg_u32 s40, 31
        s_cbranch_scc1 L_fin
        """)
        X, Y, ML = 108, 140, 172
        for i in range(8):
            A(f"global_load_dwordx4 {vr(ML+4*i,4)}, v{vX+6 if i < 4 else vX+12}, s[46:47] offset:{1024*(i&3)} sc1")
        for i in range(8):
            A(f"global_load_dwordx4 {vr(X+4*i,4)}, v{vX+4 if i < 4 else vX+5}, s[46:47] offset:{1024*(i&3)} sc1")
            A(f"global_load_dwordx4 {vr(Y+4*i,4)}, v{vX+4 if i < 4 else vX+5}, s[46:47] offset:{1024*(i&3)+256} sc1")
        A(f"""
        s_lshl_b32 s40, s30, 10
        s_lshl_b32 s41, s29, 2
        s_add_u32 s40, s40, s41
        v_lshrrev_b32 v{vX+7}, 5, v1
        v_lshlrev_b32 v{vX+7}, 8, v{vX+7}
        v_lshl_add_u32 v{vX+7}, v{vX+2}, 4, v{vX+7}
        v_add_u32 v{vX+7}, s40, v{vX+7}
        s_waitcnt vmcnt(16)
        """)
        M0, M1, L0, L1 = vAE, vAE + 1, vAE + 2, vAE + 3
        for (M, off) in ((M0, 0), (M1, 2)):
            A(f"""
            v_max3_f32 v{M}, v{ML+off}, v{ML+4+off}, v{ML+8+off}
            v_max3_f32 v{M}, v{M}, v{ML+12+off}, v{ML+16+off}
            v_max3_f32 v{M}, v{M}, v{ML+20+off}, v{ML+24+off}
            v_max_f32 v{M}, v{M}, v{ML+28+off}
            """)
        allmax(M0, M1)
        for i in range(8):
            A(f"v_sub_f32 v{ML+4*i}, v{ML+4*i}, v{M0}")
            A(f"v_sub_f32 v{ML+4*i+2}, v{ML+4*i+2}, v{M1}")
        for i in range(8):
            A(f"v_exp_f32 v{ML+4*i}, v{ML+4*i}")
            A(f"v_exp_f32 v{ML+4*i+2}, v{ML+4*i+2}")
        A(f"v_mul_f32 v{L0}, v{ML}, v{ML+1}")
        A(f"v_mul_f32 v{L1}, v{ML+2}, v{ML+3}")
        for i in range(1, 8):
            A(f"v_fmac_f32 v{L0}, v{ML+4*i}, v{ML+4*i+1}")
            A(f"v_fmac_f32 v{L1}, v{ML+4*i+2}, v{ML+4*i+3}")
        A("s_waitcnt vmcnt(0)")
        stamp(7)
        for Z in (X, Y):
            for r in range(4):
                A(f"v_mul_f32 v{Z+r}, v{ML+(r>>1)*2}, v{Z+r}")
        for i in range(1, 8):
            for Z in (X, Y):
                for r in range(4):
                    A(f"v_fmac_f32 v{Z+r}, v{ML+4*i+(r>>1)*2}, v{Z+4*i+r}")
        red8(X, Y, L0, L1)
        A(f"""
        v_rcp_f32 v{L0}, v{L0}
        v_rcp_f32 v{L1}, v{L1}
        s_mov_b32 exec_lo, 0xffff
        s_mov_b32 exec_hi, 0xffff
        v_mul_f32 v{X}, v{X}, v{L0}
        v_mul_f32 v{X+1}, v{X+1}, v{L0}
        v_mul_f32 v{X+2}, v{X+2}, v{L1}
        v_mul_f32 v{X+3}, v{X+3}, v{L1}
        v_cvt_pk_bf16_f32 v{X}, v{X}, v{X+1}
        v_cvt_pk_bf16_f32 v{X+1}, v{X+2}, v{X+3}
        global_store_dword v{vX+7}, v{X}, s[14:15]
        global_store_dword v{vX+7}, v{X+1}, s[14:15] offset:512
        s_mov_b64 exec, -1
        """)
        A("L_fin:")
    if nst:
        A("s_waitcnt vmcnt(0)")
        stamp(nst - 1)
        A(f"""
        s_lshl_b32 s40, s2, 2
        s_add_u32 s40, s40, s29
        s_mul_i32 s40, s40, {nst*8}
        s_add_u32 s40, s40, {STAMP_OFF}
        v_mov_b32 v1, s40
        s_waitcnt lgkmcnt(0)
        s_mov_b64 exec, 1
        """)
        for i in range(nst):
            A(f"v_mov_b32 v2, s{sST+2*i}")
            A(f"v_mov_b32 v3, s{sST+2*i+1}")
            A(f"global_store_dwordx2 v1, v[2:3], s[18:19] offset:{8*i}")
            A(f"s_nop 1")
    A("L_end:")
    A("s_endpgm")
    lds = 8192 + 64
    out = HEADER
    out += f"; @launch grid=(256,1,1) block=(256,1,1) lds={lds}\n"
    out += f""".amdgcn_target "amdgcn-amd-amdhsa--gfx950"
.text
.globl {KN}
.p2align 8
.type {KN},@function
{KN}:
"""
    out += A.text()
    out += f""".section .rodata,"a"
.p2align 6
.amdhsa_kernel {KN}
  .amdhsa_next_free_vgpr {o.vgpr}
  .amdhsa_next_free_sgpr 102
  .amdhsa_accum_offset 256
  .amdhsa_group_segment_fixed_size 0
  .amdhsa_kernarg_size 64
  .amdhsa_user_sgpr_count 2
  .amdhsa_user_sgpr_kernarg_segment_ptr 1
  .amdhsa_system_sgpr_workgroup_id_x 1
.end_amdhsa_kernel
"""
    return out

if __name__ == "__main__":
    ap = argparse.ArgumentParser()
    ap.add_argument("out")
    ap.add_argument("--flags", default="nt")
    ap.add_argument("--vflags", default=None)
    ap.add_argument("--map", type=int, default=2)
    ap.add_argument("--window", type=int, default=6)
    ap.add_argument("--vgpr", type=int, default=512)
    ap.add_argument("--nocompute", action="store_true")
    ap.add_argument("--stamps", type=int, default=0)
    ap.add_argument("--itstamps", action="store_true")
    o = ap.parse_args()
    open(o.out, "w").write(gen(o))
```

```python
import sys, argparse

KN = "standalone__paged_block_table_kv_pagedattention__decode_kernel"
HEADER = open("standalone__paged_block_table_kv_pagedattention__decode.s.ref").read().split("; Override launch")[0]

KV_BYTES = 4100 * 65536
STAMP_OFF = 512 << 20

class Asm:
    def __init__(self):
        self.l = []
    def __call__(self, s):
        for line in s.strip("\n").split("\n"):
            t = line.strip()
            if not t:
                continue
            self.l.append(t if t.endswith(":") else "    " + t)
    def text(self):
        return "\n".join(self.l) + "\n"

def vr(b, n):
    return f"v[{b}:{b+n-1}]"
DPPM = "row_mask:0xf bank_mask:0xf"

def gen(o):
    A = Asm()
    flk = (" " + o.flags.replace("_", " ")) if o.flags != "none" else ""
    flv = flk
    W = o.window
    assert 2 <= W <= 8
    NW = 4
    STRIDE = 32 * NW
    NP = 8
    vK0, vV0 = 2, 4
    vM, vL = 8, 9
    vT, vU, vAL, vMN = 10, 11, 12, 13
    vP = 14
    vS = 16
    vD1 = 20
    vACC = 24
    vMASK = 32
    vAE = 40
    vB = 56
    vQ = 72
    vG4 = 88
    vLW, vLM, vL16, vRX, vRX2, vRM, vFX, vFM, vOUT, vZ = range(90, 100)
    vKB = 100
    vVB = 132
    vO = 164
    nst = o.stamps
    sST = 60
    def stamp(i):
        if nst and i < nst:
            A(f"s_memrealtime s[{sST+2*i}:{sST+2*i+1}]")

    A(f"s_cmp_ge_u32 s2, 256")
    A(f"s_cbranch_scc1 L_end")
    stamp(0)
    A(f"""
    s_load_dwordx8 s[4:11], s[0:1], 0
    s_load_dwordx8 s[12:19], s[0:1], 32
    v_lshrrev_b32 v10, 6, v0
    v_and_b32 v1, 63, v0
    v_readfirstlane_b32 s29, v10
    """)
    if o.map == 0:
        A("s_and_b32 s30, s2, 7\ns_lshr_b32 s31, s2, 3")
    elif o.map == 1:
        A("s_lshr_b32 s30, s2, 5\ns_and_b32 s31, s2, 31")
    elif o.map == 2:
        A("s_bfe_u32 s30, s2, 0x30003\ns_lshr_b32 s31, s2, 6\ns_lshl_b32 s31, s31, 3\ns_and_b32 s40, s2, 7\ns_or_b32 s31, s31, s40")
    A(f"""
    v_and_b32 v10, 15, v1
    v_lshrrev_b32 v11, 4, v1
    s_lshl_b32 s32, s29, 5
    s_add_u32 s32, s32, s31
    s_lshl_b32 s34, s32, 2
    s_lshl_b32 s41, s30, 9
    v_bfe_u32 v15, v1, 1, 1
    v_lshlrev_b32 v12, 9, v15
    v_lshl_add_u32 v12, v11, 4, v12
    v_and_b32 v14, 1, v1
    v_lshl_add_u32 v12, v14, 6, v12
    s_lshl_b32 s42, s30, 10
    v_add_u32 v12, s42, v12
    v_and_b32 v{vK0}, 7, v1
    v_lshlrev_b32 v{vK0}, 12, v{vK0}
    v_bfe_u32 v{vK0+1}, v1, 3, 1
    v_lshl_add_u32 v{vK0}, v{vK0+1}, 6, v{vK0}
    v_lshl_add_u32 v{vK0}, v11, 4, v{vK0}
    v_add_u32 v{vK0}, s41, v{vK0}
    v_add_u32 v{vK0+1}, 0x8000, v{vK0}
    s_mov_b32 s22, {KV_BYTES}
    s_mov_b32 s23, 0x20000
    s_mov_b32 s36, 0x3db8aa3b
    s_lshl_b32 s40, s32, 4
    s_waitcnt lgkmcnt(0)
    s_load_dword s43, s[10:11], s34
    s_load_dword s28, s[12:13], 0
    s_load_dword s39, s[10:11], s34 offset:{STRIDE*4}
    """)
    stamp(1)
    for j in range(4):
        A(f"global_load_dwordx4 {vr(vQ+4*j,4)}, v12, s[4:5] offset:{128*j}")
    A(f"""
    s_mov_b32 s20, s6
    s_and_b32 s21, s7, 0xffff
    s_mov_b32 s24, s8
    s_and_b32 s25, s9, 0xffff
    s_mov_b32 s26, {KV_BYTES}
    s_mov_b32 s27, 0x20000
    s_add_u32 s34, s34, {2*STRIDE*4}
    s_waitcnt lgkmcnt(0)
    s_lshl_b32 s43, s43, 16
    s_cmp_lt_i32 s28, 1
    s_cselect_b32 s36, 0, s36
    s_cselect_b32 s28, 0x10000, s28
    s_min_i32 s28, s28, 0x10000
    s_sub_i32 s33, s28, s40
    s_cmp_gt_i32 s33, 0
    s_cselect_b32 s22, s22, 0
    """)
    stamp(2)

    def load(i, sreg):
        if i < 8:
            j, hp = i >> 1, i & 1
            A(f"buffer_load_dwordx4 {vr(vKB+4*i,4)}, v{vK0+hp}, s[20:23], {sreg} offen offset:{128*j}{flk}")
        else:
            hf, j = (i - 8) >> 2, (i - 8) & 3
            A(f"buffer_load_dwordx4 {vr(vVB+4*(i-8),4)}, v{vV0+j}, s[24:27], {sreg} offen offset:{256*hf}{flv}")

    for i in range(W):
        load(i, "s43")
    A(f"""
    s_memrealtime s[50:51]
    v_lshlrev_b32 v{vV0}, 14, v11
    v_lshl_add_u32 v{vV0}, v10, 4, v{vV0}
    v_add_u32 v{vV0}, s41, v{vV0}
    v_add_u32 v{vV0+1}, 0x1000, v{vV0}
    v_add_u32 v{vV0+2}, 0x2000, v{vV0}
    v_add_u32 v{vV0+3}, 0x3000, v{vV0}
    v_lshlrev_b32 v{vG4}, 2, v11
    v_lshrrev_b32 v13, 2, v10
    v_lshl_add_u32 v13, v13, 1, v14
    """)
    for e in range(8):
        A(f"v_cmp_eq_u32 vcc, {e}, v13")
        A(f"v_mov_b32 v{vACC+e}, 0")
        A(f"s_nop 0")
        A(f"v_cndmask_b32 v{vMASK+e}, 0, -1, vcc")
    A(f"""
    s_mov_b32 s37, 0x05040100
    s_mov_b32 s38, 0x07060302
    v_mov_b32 v{vM}, 0xf149f2ca
    v_mov_b32 v{vL}, 0
    v_mov_b32 v{vZ}, 0
    v_lshlrev_b32 v{vL16}, 4, v1
    s_lshl_b32 s40, s29, 11
    v_add_u32 v{vLW}, s40, v{vL16}
    s_lshl_b32 s40, s29, 4
    v_lshl_add_u32 v{vLM}, v15, 3, s40
    s_lshl_b32 s40, s30, 18
    s_add_u32 s46, s18, s40
    s_addc_u32 s47, s19, 0
    v_lshrrev_b32 v12, 2, v1
    v_and_b32 v13, 3, v1
    s_lshl_b32 s40, s31, 8
    v_lshlrev_b32 v{vRX}, 13, v12
    v_lshl_add_u32 v{vRX}, v13, 5, v{vRX}
    v_add_u32 v{vRX}, s40, v{vRX}
    v_add_u32 v{vRX2}, 0x20000, v{vRX}
    v_lshrrev_b32 v12, 1, v1
    v_lshl_add_u32 v{vRM}, v12, 13, s40
    v_lshl_add_u32 v{vRM}, v14, 4, v{vRM}
    s_and_b32 s40, s31, 7
    s_lshl_b32 s40, s40, 2
    s_add_u32 s40, s40, s29
    s_lshl_b32 s41, s40, 13
    s_add_u32 s48, s46, s41
    s_addc_u32 s49, s47, 0
    v_lshrrev_b32 v12, 3, v1
    v_lshlrev_b32 v12, 8, v12
    v_and_b32 v13, 7, v1
    v_lshl_add_u32 v{vFX}, v13, 4, v12
    v_lshl_add_u32 v{vFM}, v14, 4, v12
    v_add_u32 v{vFX}, 0x1000, v{vFX}
    v_add_u32 v{vFM}, 0x1000, v{vFM}
    s_and_b32 s41, s40, 3
    s_lshl_b32 s41, s41, 6
    s_add_u32 s42, s42, s41
    s_bfe_u32 s41, s40, 0x20002
    s_lshl_b32 s41, s41, 2
    s_add_u32 s42, s42, s41
    s_lshr_b32 s41, s40, 4
    s_lshl_b32 s41, s41, 8
    s_add_u32 s42, s42, s41
    v_lshrrev_b32 v13, 1, v13
    v_lshl_add_u32 v{vOUT}, v13, 4, s42
    v_lshl_add_u32 v{vOUT}, v14, 9, v{vOUT}
    s_waitcnt lgkmcnt(0)
    s_bitset1_b32 s51, 31
    v_mov_b32 v{vO}, s50
    v_mov_b32 v{vO+1}, s51
    v_mov_b32 v{vO+2}, 0
    v_mov_b32 v{vO+3}, 0
    s_mov_b64 s[52:53], 0
    s_cmp_lg_u32 s2, {o.noncewg}
    s_cbranch_scc1 L_nononce
    s_cmp_lg_u32 s29, 3
    s_cbranch_scc1 L_nononce
    s_mov_b64 exec, 1
    global_atomic_cmpswap_x2 v{vZ}, {vr(vO,4)}, s[16:17]
    s_mov_b64 exec, -1
    L_nononce:
    s_cmp_le_i32 s33, 0
    s_cbranch_scc1 L_done
    """)
    if o.itstamps:
        A("s_mov_b32 m0, 0\nv_mov_b32 v89, 0\ns_memrealtime s[98:99]")

    def perms(hf, pair):
        L = lambda j, t: vVB + (hf * 4 + j) * 4 + t
        out = []
        for t in range(4):
            b = vB + 4 * t
            out.append(f"v_perm_b32 v{b+pair}, v{L(2*pair+1,t)}, v{L(2*pair,t)}, s37")
            out.append(f"v_perm_b32 v{b+2+pair}, v{L(2*pair+1,t)}, v{L(2*pair,t)}, s38")
        return out
    def pvmfma(hf, e):
        t, x = e >> 1, e & 1
        return f"v_mfma_f32_16x16x16_bf16 {vr(vACC+4*hf,4)}, {vr(vAE+2*e,2)}, {vr(vB+4*t+2*x,2)}, {vr(vACC+4*hf,4)}"

    def consume(c, last):
        if c < 8:
            j, hp = c >> 1, c & 1
            d = vD1 if hp else vS
            cc = "0" if j == 0 else vr(d, 4)
            A(f"v_mfma_f32_16x16x32_bf16 {vr(d,4)}, {vr(vKB+4*c,4)}, {vr(vQ+4*j,4)}, {cc}")
        elif c == 8:
            A("s_nop 7" if last else "s_nop 5")
            for r in range(4):
                A(f"v_permlane32_swap_b32 v{vS+r}, v{vD1+r}")
            for r in range(4):
                A(f"v_mov_b32_dpp v{vD1+r}, v{vD1+r} quad_perm:[1,1,3,3] {DPPM}")
            for r in range(4):
                A(f"v_add_f32_dpp v{vS+r}, v{vS+r}, v{vD1+r} quad_perm:[0,0,2,2] {DPPM}")
            if last:
                A(f"v_mov_b32 v{vU}, 0xff800000")
                for r in range(4):
                    A(f"v_cmp_gt_i32 vcc, s33, v{vG4}")
                    A(f"s_sub_u32 s33, s33, 1")
                    A(f"s_nop 0")
                    A(f"v_cndmask_b32 v{vS+r}, v{vU}, v{vS+r}, vcc")
            A(f"""
            v_max3_f32 v{vT}, v{vS}, v{vS+1}, v{vS+2}
            v_max_f32 v{vT}, v{vT}, v{vS+3}
            v_mov_b32 v{vU}, v{vT}
            s_nop 1
            v_permlane32_swap_b32 v{vT}, v{vU}
            v_max_f32 v{vT}, v{vT}, v{vU}
            v_mov_b32 v{vU}, v{vT}
            s_nop 1
            v_permlane16_swap_b32 v{vT}, v{vU}
            v_max_f32 v{vT}, v{vT}, v{vU}
            v_mul_f32 v{vT}, s36, v{vT}
            v_max_f32 v{vMN}, v{vM}, v{vT}
            """)
        elif c == 9:
            A(f"""
            v_sub_f32 v{vAL}, v{vM}, v{vMN}
            v_exp_f32 v{vAL}, v{vAL}
            v_mov_b32 v{vM}, v{vMN}
            """)
            for r in range(4):
                A(f"v_fma_f32 v{vS+r}, v{vS+r}, s36, -v{vMN}")
            for r in range(4):
                A(f"v_exp_f32 v{vS+r}, v{vS+r}")
            if last:
                A("s_nop 0")
            else:
                for p in perms(0, 0):
                    A(p)
            A(f"""
            v_cvt_pk_bf16_f32 v{vP}, v{vS}, v{vS+1}
            v_cvt_pk_bf16_f32 v{vP+1}, v{vS+2}, v{vS+3}
            v_fma_f32 v{vL}, v{vL}, v{vAL}, v{vS}
            v_add_f32 v{vT}, v{vS+1}, v{vS+2}
            v_add_f32 v{vL}, v{vL}, v{vS+3}
            v_add_f32 v{vL}, v{vL}, v{vT}
            """)
        elif c == 10:
            for i in range(8):
                qp = "[0,0,0,0]" if (i & 3) < 2 else "[2,2,2,2]"
                A(f"v_mul_f32_dpp v{vACC+i}, v{vAL}, v{vACC+i} quad_perm:{qp} {DPPM}")
            for e in range(8):
                A(f"v_and_b32 v{vAE+2*e}, v{vMASK+e}, v{vP}")
                A(f"v_and_b32 v{vAE+2*e+1}, v{vMASK+e}, v{vP+1}")
        elif c == 13:
            for p in perms(1, 0):
                A(p)
        elif c in (11, 15):
            hf = 0 if c == 11 else 1
            ps = perms(hf, 1)
            for p in ps[:4]:
                A(p)
            for e in range(4):
                A(pvmfma(hf, e))
                A(ps[4 + e])
            for e in range(4, 8):
                A(pvmfma(hf, e))

    A(f"""
    s_cmp_le_i32 s33, {STRIDE*16}
    s_cbranch_scc1 L_last
    """)
    A("L_loop:")
    for c in range(16):
        if c == 16 - W:
            A(f"""
            s_waitcnt lgkmcnt(0)
            s_lshl_b32 s44, s39, 16
            s_and_b32 s40, s34, 0x3ffc
            s_load_dword s39, s[10:11], s40
            s_add_u32 s34, s34, {STRIDE*4}
            """)
            if o.itstamps:
                A("v_writelane_b32 v89, s98, m0\ns_add_u32 m0, m0, 1\ns_memrealtime s[98:99]")
        A(f"s_waitcnt vmcnt({W-1})")
        i = c + W
        load(i % 16, "s43" if i < 16 else "s44")
        consume(c, False)
    A(f"""
    s_mov_b32 s43, s44
    s_sub_i32 s33, s33, {STRIDE*16}
    s_cmp_gt_i32 s33, {STRIDE*16}
    s_cbranch_scc1 L_loop
    """)
    A("L_last:")
    A("s_load_dwordx2 s[52:53], s[16:17], 0")
    for i in range(W, 16):
        load(i, "s43")
    for c in range(8):
        A(f"s_waitcnt vmcnt({15-c})")
        consume(c, True)
    consume(8, True)
    consume(9, True)
    consume(10, True)
    A(f"""
    v_mov_b32 v{vU}, v{vL}
    s_nop 1
    v_permlane32_swap_b32 v{vL}, v{vU}
    v_add_f32 v{vL}, v{vL}, v{vU}
    v_mov_b32 v{vU}, v{vL}
    s_nop 1
    v_permlane16_swap_b32 v{vL}, v{vU}
    v_add_f32 v{vL}, v{vL}, v{vU}
    s_waitcnt vmcnt(6)
    """)
    for p in perms(0, 0):
        A(p)
    A("s_waitcnt vmcnt(4)")
    consume(11, True)
    A("s_waitcnt vmcnt(2)")
    consume(13, True)
    A("s_waitcnt vmcnt(0)")
    consume(15, True)
    A("L_done:")
    if o.itstamps:
        A(f"""
        s_waitcnt lgkmcnt(0)
        v_writelane_b32 v89, s98, m0
        s_lshl_b32 s40, s2, 2
        s_add_u32 s40, s40, s29
        s_lshl_b32 s40, s40, 8
        s_add_u32 s40, s40, {STAMP_OFF + (1<<20)}
        v_lshlrev_b32 v{vT}, 2, v1
        v_add_u32 v{vT}, s40, v{vT}
        global_store_dword v{vT}, v89, s[18:19]
        """)
    stamp(3)
    A(f"""
    ds_write_b64 v{vLM}, v[{vM}:{vL}] offset:8192
    ds_write_b128 v{vLW}, {vr(vACC,4)}
    s_nop 5
    ds_write_b128 v{vLW}, {vr(vACC+4,4)} offset:1024
    s_waitcnt vmcnt(0) lgkmcnt(0)
    s_cmp_lg_u32 s53, 0
    s_cbranch_scc1 L_havenonce
    s_mov_b64 exec, 1
    global_atomic_cmpswap_x2 v[{vT}:{vU}], v{vZ}, {vr(vO,4)}, s[16:17] sc0
    s_mov_b64 exec, -1
    s_waitcnt vmcnt(0)
    v_readfirstlane_b32 s52, v{vT}
    v_readfirstlane_b32 s53, v{vU}
    s_cmp_lg_u32 s53, 0
    s_cselect_b32 s52, s52, s50
    s_cselect_b32 s53, s53, s51
    L_havenonce:
    s_cmp_lg_u32 s29, 0
    s_barrier
    """)
    stamp(4)
    A("s_cbranch_scc1 L_notw0")
    ML = vAE
    X = vKB
    M0, M1 = vB, vB + 1
    L0, L1 = vB + 2, vB + 3
    for s in range(4):
        A(f"ds_read_b128 {vr(ML+4*s,4)}, v{vZ} offset:{8192+16*s}")
    for hf in range(2):
        for s in range(4):
            A(f"ds_read_b128 {vr(X+(s*2+hf)*4,4)}, v{vL16} offset:{2048*s+1024*hf}")
    for k in range(5):
        A(f"v_mov_b32 v{vO+4*k+1}, s52")
        A(f"v_mov_b32 v{vO+4*k+3}, s53")
    A(f"""
    v_and_b32 v{vT}, 1, v1
    v_cmp_eq_u32 vcc, 1, v{vT}
    s_waitcnt lgkmcnt(8)
    v_max3_f32 v{M0}, v{ML}, v{ML+4}, v{ML+8}
    v_max3_f32 v{M1}, v{ML+2}, v{ML+6}, v{ML+10}
    v_max_f32 v{M0}, v{M0}, v{ML+12}
    v_max_f32 v{M1}, v{M1}, v{ML+14}
    """)
    for s in range(4):
        A(f"v_sub_f32 v{ML+4*s}, v{ML+4*s}, v{M0}")
        A(f"v_sub_f32 v{ML+4*s+2}, v{ML+4*s+2}, v{M1}")
    for s in range(4):
        A(f"v_exp_f32 v{ML+4*s}, v{ML+4*s}")
        A(f"v_exp_f32 v{ML+4*s+2}, v{ML+4*s+2}")
    for hf in range(2):
        A(f"s_waitcnt lgkmcnt({4 if hf == 0 else 0})")
        for q in range(2):
            O = vO + (hf * 2 + q) * 4
            for x in range(2):
                A(f"v_mul_f32 v{O+2*x}, v{ML+2*q}, v{X+hf*4+2*q+x}")
            for s in range(1, 4):
                for x in range(2):
                    A(f"v_fmac_f32 v{O+2*x}, v{ML+4*s+2*q}, v{X+(s*2+hf)*4+2*q+x}")
            A(f"global_store_dwordx4 v{vRX2 if hf else vRX}, {vr(O,4)}, s[46:47] offset:{16*q} sc1")
    A(f"v_mul_f32 v{L0}, v{ML}, v{ML+1}")
    A(f"v_mul_f32 v{L1}, v{ML+2}, v{ML+3}")
    for s in range(1, 4):
        A(f"v_fmac_f32 v{L0}, v{ML+4*s}, v{ML+4*s+1}")
        A(f"v_fmac_f32 v{L1}, v{ML+4*s+2}, v{ML+4*s+3}")
    A(f"""
    v_cndmask_b32 v{vO+16}, v{M0}, v{M1}, vcc
    v_cndmask_b32 v{vO+18}, v{L0}, v{L1}, vcc
    global_store_dwordx4 v{vRM}, {vr(vO+16,4)}, s[46:47] offset:128 sc1
    """)
    stamp(5)
    PX, PM = vVB, vVB + 16
    M, Ls, T2 = vAE, vAE + 1, vAE + 2
    msk = lambda k: f"s[{54+2*k}:{55+2*k}]" if not nst else f"s[{90+2*k}:{91+2*k}]"
    A(f"""
    L_notw0:
    s_cmp_lt_u32 s31, {99 if o.nopoll else 32-NP}
    s_cbranch_scc1 L_fin
    """)
    for k in range(4):
        A(f"s_mov_b64 {msk(k)}, -1")
    A("L_poll:")
    for k in range(4):
        off = 2048 * k - 4096
        A(f"s_mov_b64 exec, {msk(k)}")
        A(f"global_load_dwordx4 {vr(PM+4*k,4)}, v{vFM}, s[48:49] offset:{off+128} sc1")
        A(f"global_load_dwordx4 {vr(PX+4*k,4)}, v{vFX}, s[48:49] offset:{off} sc1")
    A("s_mov_b64 exec, -1")
    A("s_waitcnt vmcnt(0)")
    for k in range(4):
        A(f"""
        v_xor_b32 v{vT}, s52, v{PX+4*k+1}
        v_xor_b32 v{vU}, s53, v{PX+4*k+3}
        v_xor_b32 v{vAL}, s52, v{PM+4*k+1}
        v_xor_b32 v{vMN}, s53, v{PM+4*k+3}
        v_or3_b32 v{vT}, v{vT}, v{vU}, v{vAL}
        v_or_b32 v{vT}, v{vT}, v{vMN}
        v_cmp_ne_u32 {msk(k)}, 0, v{vT}
        """)
    A(f"""
    s_or_b64 s[40:41], {msk(0)}, {msk(1)}
    s_or_b64 s[42:43], {msk(2)}, {msk(3)}
    s_or_b64 s[44:45], s[40:41], s[42:43]
    s_cbranch_scc0 L_go
    s_bcnt1_i32_b64 s40, s[40:41]
    s_bcnt1_i32_b64 s41, s[42:43]
    s_add_u32 s40, s40, s41
    s_cmp_le_u32 s40, {o.tight*8}
    s_cbranch_scc1 L_poll
    s_sleep {o.sleep}
    s_branch L_poll
    L_go:
    """)
    stamp(6)
    A(f"""
    v_max3_f32 v{M}, v{PM}, v{PM+4}, v{PM+8}
    v_max_f32 v{M}, v{M}, v{PM+12}
    v_mov_b32 v{T2}, v{M}
    s_nop 1
    v_permlane32_swap_b32 v{M}, v{T2}
    v_max_f32 v{M}, v{M}, v{T2}
    v_mov_b32 v{T2}, v{M}
    s_nop 1
    v_permlane16_swap_b32 v{M}, v{T2}
    v_max_f32 v{M}, v{M}, v{T2}
    s_nop 1
    v_max_f32_dpp v{M}, v{M}, v{M} row_ror:8 {DPPM}
    """)
    for k in range(4):
        A(f"v_sub_f32 v{PM+4*k}, v{PM+4*k}, v{M}")
    for k in range(4):
        A(f"v_exp_f32 v{PM+4*k}, v{PM+4*k}")
    A(f"""
    v_mul_f32 v{Ls}, v{PM}, v{PM+2}
    v_mul_f32 v{PX}, v{PM}, v{PX}
    v_mul_f32 v{PX+2}, v{PM}, v{PX+2}
    """)
    for k in range(1, 4):
        A(f"v_fmac_f32 v{Ls}, v{PM+4*k}, v{PM+4*k+2}")
        A(f"v_fmac_f32 v{PX}, v{PM+4*k}, v{PX+4*k}")
        A(f"v_fmac_f32 v{PX+2}, v{PM+4*k}, v{PX+4*k+2}")
    A(f"""
    v_mov_b32 v{T2}, v{Ls}
    v_mov_b32 v{PX+1}, v{PX}
    v_mov_b32 v{PX+3}, v{PX+2}
    v_permlane32_swap_b32 v{Ls}, v{T2}
    v_permlane32_swap_b32 v{PX}, v{PX+1}
    v_permlane32_swap_b32 v{PX+2}, v{PX+3}
    v_add_f32 v{Ls}, v{Ls}, v{T2}
    v_add_f32 v{PX}, v{PX}, v{PX+1}
    v_add_f32 v{PX+2}, v{PX+2}, v{PX+3}
    v_mov_b32 v{T2}, v{Ls}
    v_mov_b32 v{PX+1}, v{PX}
    v_mov_b32 v{PX+3}, v{PX+2}
    v_permlane16_swap_b32 v{Ls}, v{T2}
    v_permlane16_swap_b32 v{PX}, v{PX+1}
    v_permlane16_swap_b32 v{PX+2}, v{PX+3}
    v_add_f32 v{Ls}, v{Ls}, v{T2}
    v_add_f32 v{PX}, v{PX}, v{PX+1}
    v_add_f32 v{PX+2}, v{PX+2}, v{PX+3}
    v_add_f32_dpp v{Ls}, v{Ls}, v{Ls} row_ror:8 {DPPM}
    v_add_f32_dpp v{PX}, v{PX}, v{PX} row_ror:8 {DPPM}
    v_add_f32_dpp v{PX+2}, v{PX+2}, v{PX+2} row_ror:8 {DPPM}
    v_rcp_f32 v{Ls}, v{Ls}
    s_mov_b64 exec, 0xff
    v_mul_f32 v{PX}, v{PX}, v{Ls}
    v_mul_f32 v{PX+2}, v{PX+2}, v{Ls}
    v_cvt_pk_bf16_f32 v{PX}, v{PX}, v{PX+2}
    global_store_dword v{vOUT}, v{PX}, s[14:15]
    """)
    A("L_fin:")
    if nst:
        A("s_mov_b64 exec, -1")
        A("s_waitcnt vmcnt(0)")
        stamp(nst - 1)
        A(f"""
        s_lshl_b32 s40, s2, 2
        s_add_u32 s40, s40, s29
        s_mul_i32 s40, s40, {nst*8}
        s_add_u32 s40, s40, {STAMP_OFF}
        v_mov_b32 v1, s40
        s_waitcnt lgkmcnt(0)
        s_mov_b64 exec, 1
        """)
        for i in range(nst):
            A(f"v_mov_b32 v2, s{sST+2*i}")
            A(f"v_mov_b32 v3, s{sST+2*i+1}")
            A(f"global_store_dwordx2 v1, v[2:3], s[18:19] offset:{8*i}")
            A(f"s_nop 1")
    A("L_end:")
    A("s_endpgm")
    lds = o.lds
    out = HEADER
    out += f"; @launch grid=(256,1,1) block=(256,1,1) lds={lds}\n"
    out += f""".amdgcn_target "amdgcn-amd-amdhsa--gfx950"
.text
.globl {KN}
.p2align 8
.type {KN},@function
{KN}:
"""
    out += A.text()
    acc = min(256, (o.vgpr + 3) // 4 * 4)
    out += f""".section .rodata,"a"
.p2align 6
.amdhsa_kernel {KN}
  .amdhsa_next_free_vgpr {o.vgpr}
  .amdhsa_next_free_sgpr 102
  .amdhsa_accum_offset {acc}
  .amdhsa_group_segment_fixed_size 0
  .amdhsa_kernarg_size 64
  .amdhsa_user_sgpr_count 2
  .amdhsa_user_sgpr_kernarg_segment_ptr 1
  .amdhsa_system_sgpr_workgroup_id_x 1
.end_amdhsa_kernel
"""
    return out

if __name__ == "__main__":
    ap = argparse.ArgumentParser()
    ap.add_argument("out")
    ap.add_argument("--flags", default="nt")
    ap.add_argument("--map", type=int, default=0)
    ap.add_argument("--window", type=int, default=7)
    ap.add_argument("--vgpr", type=int, default=512)
    ap.add_argument("--lds", type=int, default=8256)
    ap.add_argument("--sleep", type=int, default=16)
    ap.add_argument("--tight", type=int, default=6)
    ap.add_argument("--noncewg", type=int, default=255)
    ap.add_argument("--nopoll", action="store_true")
    ap.add_argument("--stamps", type=int, default=0)
    ap.add_argument("--itstamps", action="store_true")
    o = ap.parse_args()
    open(o.out, "w").write(gen(o))
```

```python
import sys, argparse

KN = "standalone__paged_block_table_kv_pagedattention__decode_kernel"
HEADER = open("standalone__paged_block_table_kv_pagedattention__decode.s.ref").read().split("; Override launch")[0]

KV_BYTES = 4100 * 65536
STAMP_OFF = 512 << 20
ARR = 1 << 20
REF = (1 << 20) + (1 << 17)

class Asm:
    def __init__(self):
        self.l = []
    def __call__(self, s):
        for line in s.strip("\n").split("\n"):
            t = line.strip()
            if not t:
                continue
            self.l.append(t if t.endswith(":") else "    " + t)
    def text(self):
        return "\n".join(self.l) + "\n"

def vr(b, n):
    return f"v[{b}:{b+n-1}]"
DPPM = "row_mask:0xf bank_mask:0xf"

def gen(o):
    A = Asm()
    flk = (" " + o.flags.replace("_", " ")) if o.flags != "none" else ""
    flv = flk
    W = o.window
    assert 2 <= W <= 8
    NW = 4
    STRIDE = 32 * NW
    NP = 8
    vK0, vV0 = 2, 4
    vM, vL = 8, 9
    vT, vU, vAL, vMN = 10, 11, 12, 13
    vP = 14
    vS = 16
    vD1 = 20
    vACC = 24
    vMASK = 32
    vAE = 40
    vB = 56
    vQ = 72
    vG4 = 88
    vLW, vLM, vL16, vRX, vRX2, vRM, vFX, vFM, vOUT, vZ = range(90, 100)
    vKB = 100
    vVB = 132
    vO = 164
    vB1 = 176
    vSP = 168
    nst = o.stamps
    sST = 60
    def stamp(i):
        if nst and i < nst:
            A(f"s_memrealtime s[{sST+2*i}:{sST+2*i+1}]")

    A(f"s_cmp_ge_u32 s2, 256")
    A(f"s_cbranch_scc1 {'L_agg' if o.fb else 'L_end'}")
    stamp(0)
    A(f"""
    s_load_dwordx8 s[4:11], s[0:1], 0
    s_load_dwordx8 s[12:19], s[0:1], 32
    v_lshrrev_b32 v10, 6, v0
    v_and_b32 v1, 63, v0
    v_readfirstlane_b32 s29, v10
    """)
    if o.map == 0:
        A("s_and_b32 s30, s2, 7\ns_lshr_b32 s31, s2, 3")
    elif o.map == 1:
        A("s_lshr_b32 s30, s2, 5\ns_and_b32 s31, s2, 31")
    elif o.map == 2:
        A("s_bfe_u32 s30, s2, 0x30003\ns_lshr_b32 s31, s2, 6\ns_lshl_b32 s31, s31, 3\ns_and_b32 s40, s2, 7\ns_or_b32 s31, s31, s40")
    if o.xr:
        XR0 = f"""s_mul_i32 s58, s30, {o.xr}
        s_and_b32 s58, s58, 15
        s_lshl_b32 s58, s58, 9
        s_xor_b32 s59, s34, s58
        s_load_dword s43, s[10:11], s59
        s_load_dword s28, s[12:13], 0
        s_xor_b32 s59, s59, 512
        s_load_dword s39, s[10:11], s59"""
        XRL = """s_xor_b32 s59, s34, s58
        s_cmp_lt_u32 s34, 0x2000
        s_cselect_b32 s40, s59, s34
        s_and_b32 s40, s40, 0x3ffc"""
    else:
        XR0 = f"""s_load_dword s43, s[10:11], s34
        s_load_dword s28, s[12:13], 0
        s_load_dword s39, s[10:11], s34 offset:{STRIDE*4}"""
        XRL = "s_and_b32 s40, s34, 0x3ffc"
    A(f"""
    v_and_b32 v10, 15, v1
    v_lshrrev_b32 v11, 4, v1
    s_lshl_b32 s32, s29, 5
    s_add_u32 s32, s32, s31
    s_lshl_b32 s34, s32, 2
    s_lshl_b32 s41, s30, 9
    v_bfe_u32 v15, v1, 1, 1
    v_lshlrev_b32 v12, 9, v15
    v_lshl_add_u32 v12, v11, 4, v12
    v_and_b32 v14, 1, v1
    v_lshl_add_u32 v12, v14, 6, v12
    s_lshl_b32 s42, s30, 10
    v_add_u32 v12, s42, v12
    v_and_b32 v{vK0}, 7, v1
    v_lshlrev_b32 v{vK0}, 12, v{vK0}
    v_bfe_u32 v{vK0+1}, v1, 3, 1
    v_lshl_add_u32 v{vK0}, v{vK0+1}, 6, v{vK0}
    v_lshl_add_u32 v{vK0}, v11, 4, v{vK0}
    v_add_u32 v{vK0}, s41, v{vK0}
    v_add_u32 v{vK0+1}, 0x8000, v{vK0}
    s_mov_b32 s22, {KV_BYTES}
    s_mov_b32 s23, 0x20000
    s_mov_b32 s36, 0x3db8aa3b
    s_waitcnt lgkmcnt(0)
    {XR0}
    """)
    stamp(1)
    for j in range(4):
        A(f"global_load_dwordx4 {vr(vQ+4*j,4)}, v12, s[4:5] offset:{128*j}")
    A(f"""
    s_mov_b32 s20, s6
    s_and_b32 s21, s7, 0xffff
    s_mov_b32 s24, s8
    s_and_b32 s25, s9, 0xffff
    s_mov_b32 s26, {KV_BYTES}
    s_mov_b32 s27, 0x20000
    s_add_u32 s34, s34, {2*STRIDE*4}
    s_waitcnt lgkmcnt(0)
    s_lshl_b32 s43, s43, 16
    s_cmp_lt_i32 s28, 1
    s_cselect_b32 s36, 0, s36
    s_cselect_b32 s28, 0x10000, s28
    s_min_i32 s28, s28, 0x10000
    s_sub_u32 s33, s28, 1
    s_lshr_b32 s33, s33, 11
    s_cbranch_scc0 L_skip0
    """)
    stamp(2)

    def load(i, sreg, vbase=None):
        if vbase is not None and i >= 8:
            hf, j = (i - 8) >> 2, (i - 8) & 3
            A(f"buffer_load_dwordx4 {vr(vVB+4*(i-8),4)}, v{vbase+j}, s[24:27], {sreg} offen offset:{256*hf}{flv}")
            return
        if i < 8:
            j, hp = i >> 1, i & 1
            A(f"buffer_load_dwordx4 {vr(vKB+4*i,4)}, v{vK0+hp}, s[20:23], {sreg} offen offset:{128*j}{flk}")
        else:
            hf, j = (i - 8) >> 2, (i - 8) & 3
            A(f"buffer_load_dwordx4 {vr(vVB+4*(i-8),4)}, v{vV0+j}, s[24:27], {sreg} offen offset:{256*hf}{flv}")

    for i in range(W):
        load(i, "s43")
    A(f"""
    L_skip0:
    s_lshl_b32 s40, s33, 11
    s_sub_u32 s40, s28, s40
    s_mul_i32 s45, s40, s32
    s_add_u32 s35, s45, s40
    s_lshr_b32 s45, s45, 7
    s_lshr_b32 s35, s35, 7
    s_sub_u32 s35, s35, s45
    s_lshr_b32 s40, s45, 4
    s_lshl_b32 s54, s33, 7
    s_add_u32 s40, s40, s54
    s_lshl_b32 s40, s40, 2
    s_and_b32 s40, s40, 0x3ffc
    s_load_dword s54, s[10:11], s40
    s_add_u32 s40, s40, 4
    s_and_b32 s40, s40, 0x3ffc
    s_load_dword s55, s[10:11], s40
    s_and_b32 s45, s45, 15
    s_memrealtime s[50:51]
    v_lshlrev_b32 v{vV0}, 14, v11
    v_lshl_add_u32 v{vV0}, v10, 4, v{vV0}
    v_add_u32 v{vV0}, s41, v{vV0}
    v_add_u32 v{vV0+1}, 0x1000, v{vV0}
    v_add_u32 v{vV0+2}, 0x2000, v{vV0}
    v_add_u32 v{vV0+3}, 0x3000, v{vV0}
    v_lshlrev_b32 v{vG4}, 2, v11
    v_lshrrev_b32 v13, 2, v10
    v_lshl_add_u32 v13, v13, 1, v14
    """)
    for e in range(8):
        A(f"v_cmp_eq_u32 vcc, {e}, v13")
        A(f"v_mov_b32 v{vACC+e}, 0")
        A(f"s_nop 0")
        A(f"v_cndmask_b32 v{vMASK+e}, 0, -1, vcc")
    A(f"""
    s_mov_b32 s37, 0x05040100
    s_mov_b32 s38, 0x07060302
    v_mov_b32 v{vM}, 0xf149f2ca
    v_mov_b32 v{vL}, 0
    v_mov_b32 v{vZ}, 0
    v_lshlrev_b32 v{vL16}, 4, v1
    s_lshl_b32 s40, s29, 11
    v_add_u32 v{vLW}, s40, v{vL16}
    s_lshl_b32 s40, s29, 4
    v_lshl_add_u32 v{vLM}, v15, 3, s40
    s_lshl_b32 s40, s30, 17
    s_add_u32 s46, s18, s40
    s_addc_u32 s47, s19, 0
    v_lshrrev_b32 v12, 3, v1
    v_and_b32 v13, 7, v1
    s_lshl_b32 s40, s31, 7
    s_lshl_b32 s41, s29, 15
    s_add_u32 s40, s40, s41
    v_lshl_add_u32 v{vRX}, v12, 12, s40
    v_lshl_add_u32 v{vRX}, v13, 4, v{vRX}
    s_lshl_b32 s40, s29, 9
    v_lshl_add_u32 v{vRX2}, v1, 3, s40
    v_lshlrev_b32 v{vRM}, 3, v14
    s_and_b32 s40, s31, 7
    s_lshl_b32 s40, s40, 2
    s_add_u32 s40, s40, s29
    s_lshl_b32 s41, s40, 12
    s_add_u32 s48, s46, s41
    s_addc_u32 s49, s47, 0
    s_and_b32 s41, s40, 3
    s_lshl_b32 s41, s41, 6
    s_add_u32 s42, s42, s41
    s_bfe_u32 s41, s40, 0x20002
    s_lshl_b32 s41, s41, 2
    s_add_u32 s42, s42, s41
    s_lshr_b32 s41, s40, 4
    s_lshl_b32 s41, s41, 8
    s_add_u32 s42, s42, s41
    v_lshrrev_b32 v13, 1, v13
    v_lshl_add_u32 v{vOUT}, v13, 4, s42
    v_lshl_add_u32 v{vOUT}, v14, 9, v{vOUT}
    s_waitcnt lgkmcnt(0)
    s_bitset1_b32 s51, 31
    s_bitset0_b32 s50, 31
    v_mov_b32 v{vO}, s50
    v_mov_b32 v{vO+1}, s51
    v_mov_b32 v{vO+2}, 0
    v_mov_b32 v{vO+3}, 0
    s_mov_b64 s[52:53], 0
    s_cmp_lg_u32 s2, {o.noncewg}
    s_cbranch_scc1 L_nononce
    s_cmp_lg_u32 s29, 3
    s_cbranch_scc1 L_nononce
    s_mov_b64 exec, 1
    global_atomic_cmpswap_x2 v{vZ}, {vr(vO,4)}, s[16:17]
    s_mov_b64 exec, -1
    L_nononce:
    s_lshl_b32 s40, s45, 12
    s_lshl_b32 s54, s54, 16
    s_add_u32 s54, s54, s40
    s_sub_u32 s55, s55, 1
    s_lshl_b32 s55, s55, 16
    s_add_u32 s55, s55, s40
    s_sub_u32 s45, 16, s45
    v_mov_b32 v12, s54
    v_mov_b32 v13, s55
    v_bfrev_b32 v15, 1
    """)
    ZINIT = ""
    FBINIT = ""
    if o.fb:
        FBINIT = f"""s_mov_b64 s[80:81], 1
        s_mov_b32 s86, {REF + 256}
        s_mov_b32 s87, 1
        s_mov_b64 vcc, -1
        s_lshr_b32 s40, s31, 2
        s_xor_b32 s40, s40, s30
        s_or_b32 s40, s40, s29
        s_cmp_eq_u32 s40, 0
        s_cselect_b32 s88, 0x80000000, 0
        s_lshl_b32 s40, s31, 6
        s_add_u32 s40, s40, {ARR}
        v_mov_b32 v192, s40
        v_mov_b32 v199, 0"""
    if o.spread:
        ZINIT = "\n".join(f"v_mov_b32 v{r}, 0" for r in list(range(vAE, vAE + 16)) + list(range(vB + 8, vB + 16)) + list(range(vB1, vB1 + 16)))
    for i in range(6):
        src = vK0 + i
        A(f"""
        v_bfe_u32 v14, v{src}, 12, 4
        v_cmp_le_u32 vcc, s45, v14
        v_cmp_gt_u32 s[56:57], s35, v14
        s_nop 0
        v_cndmask_b32 v{vSP+i}, v12, v13, vcc
        v_add_u32 v{vSP+i}, v{vSP+i}, v{src}
        v_cndmask_b32 v{vSP+i}, v15, v{vSP+i}, s[56:57]
        """)
    A(f"""
    {ZINIT}
    {FBINIT}
    s_cmp_lg_u32 s33, 0
    s_cbranch_scc1 L_loop0
    v_mov_b32 v{vK0}, v{vSP}
    v_mov_b32 v{vK0+1}, v{vSP+1}
    s_mov_b32 s43, 0
    """)
    for i in range(W):
        load(i, "s43")
    A("s_branch L_last")
    A("L_loop0:")
    if o.itstamps:
        A("s_mov_b32 m0, 0\nv_mov_b32 v89, 0\ns_memrealtime s[98:99]")

    def perms(hf, pair):
        L = lambda j, t: vVB + (hf * 4 + j) * 4 + t
        out = []
        for t in range(4):
            b = (vB1 if (hf and o.spread) else vB) + 4 * t
            out.append(f"v_perm_b32 v{b+pair}, v{L(2*pair+1,t)}, v{L(2*pair,t)}, s37")
            out.append(f"v_perm_b32 v{b+2+pair}, v{L(2*pair+1,t)}, v{L(2*pair,t)}, s38")
        return out
    def pvmfma(hf, e):
        t, x = e >> 1, e & 1
        bb = vB1 if (hf and o.spread) else vB
        return f"v_mfma_f32_16x16x16_bf16 {vr(vACC+4*hf,4)}, {vr(vAE+2*e,2)}, {vr(bb+4*t+2*x,2)}, {vr(vACC+4*hf,4)}"

    DEFER = {0: [(0,4),(0,5)], 1: [(0,6),(0,7)], 2: [(1,0),(1,1)], 3: [(1,2),(1,3)], 4: [(1,4),(1,5)], 5: [(1,6),(1,7)]}
    def consume_spread(c):
        if c == 8:
            A("s_nop 5")
            for r in range(4):
                A(f"v_permlane32_swap_b32 v{vS+r}, v{vD1+r}")
            for r in range(4):
                A(f"v_mov_b32_dpp v{vD1+r}, v{vD1+r} quad_perm:[1,1,3,3] {DPPM}")
            for r in range(4):
                A(f"v_add_f32_dpp v{vS+r}, v{vS+r}, v{vD1+r} quad_perm:[0,0,2,2] {DPPM}")
            A(f"""
            v_max3_f32 v{vT}, v{vS}, v{vS+1}, v{vS+2}
            v_max_f32 v{vT}, v{vT}, v{vS+3}
            v_mov_b32 v{vU}, v{vT}
            """)
        elif c == 9:
            A(f"""
            s_nop 0
            v_permlane32_swap_b32 v{vT}, v{vU}
            v_max_f32 v{vT}, v{vT}, v{vU}
            v_mov_b32 v{vU}, v{vT}
            """)
            ps = perms(0, 0)
            A(ps[0]); A(ps[1])
            A(f"""
            v_permlane16_swap_b32 v{vT}, v{vU}
            v_max_f32 v{vT}, v{vT}, v{vU}
            v_mul_f32 v{vT}, s36, v{vT}
            v_max_f32 v{vMN}, v{vM}, v{vT}
            v_sub_f32 v{vAL}, v{vM}, v{vMN}
            v_exp_f32 v{vAL}, v{vAL}
            v_mov_b32 v{vM}, v{vMN}
            """)
        elif c == 10:
            for r in range(4):
                A(f"v_fma_f32 v{vS+r}, v{vS+r}, s36, -v{vMN}")
            for r in range(4):
                A(f"v_exp_f32 v{vS+r}, v{vS+r}")
            for p in perms(0, 0)[2:]:
                A(p)
        elif c == 11:
            A(f"""
            v_cvt_pk_bf16_f32 v{vP}, v{vS}, v{vS+1}
            v_cvt_pk_bf16_f32 v{vP+1}, v{vS+2}, v{vS+3}
            v_fma_f32 v{vL}, v{vL}, v{vAL}, v{vS}
            v_add_f32 v{vT}, v{vS+1}, v{vS+2}
            v_add_f32 v{vL}, v{vL}, v{vS+3}
            v_add_f32 v{vL}, v{vL}, v{vT}
            """)
            for p in perms(0, 1):
                A(p)
        elif c == 12:
            for e in range(8):
                A(f"v_and_b32 v{vAE+2*e}, v{vMASK+e}, v{vP}")
                A(f"v_and_b32 v{vAE+2*e+1}, v{vMASK+e}, v{vP+1}")
        elif c == 13:
            for i in range(8):
                qp = "[0,0,0,0]" if (i & 3) < 2 else "[2,2,2,2]"
                A(f"v_mul_f32_dpp v{vACC+i}, v{vAL}, v{vACC+i} quad_perm:{qp} {DPPM}")
            for p in perms(1, 0)[:4]:
                A(p)
        elif c == 14:
            ps = perms(1, 0)[4:]
            A(pvmfma(0, 0)); A(ps[0]); A(ps[1]); A(pvmfma(0, 1)); A(ps[2]); A(ps[3])
        elif c == 15:
            ps = perms(1, 1)
            A(pvmfma(0, 2))
            for p in ps[:4]: A(p)
            A(pvmfma(0, 3))
            for p in ps[4:]: A(p)

    def consume(c, last):
        if o.spread and c in DEFER:
            A(pvmfma(*DEFER[c][0]))
            j, hp = c >> 1, c & 1
            d = vD1 if hp else vS
            cc = "0" if j == 0 else vr(d, 4)
            A(f"v_mfma_f32_16x16x32_bf16 {vr(d,4)}, {vr(vKB+4*c,4)}, {vr(vQ+4*j,4)}, {cc}")
            A(pvmfma(*DEFER[c][1]))
            return
        if o.spread and not last and c >= 8:
            consume_spread(c)
            return
        if c < 8:
            j, hp = c >> 1, c & 1
            d = vD1 if hp else vS
            cc = "0" if j == 0 else vr(d, 4)
            A(f"v_mfma_f32_16x16x32_bf16 {vr(d,4)}, {vr(vKB+4*c,4)}, {vr(vQ+4*j,4)}, {cc}")
        elif c == 8:
            A("s_nop 7" if last else "s_nop 5")
            for r in range(4):
                A(f"v_permlane32_swap_b32 v{vS+r}, v{vD1+r}")
            for r in range(4):
                A(f"v_mov_b32_dpp v{vD1+r}, v{vD1+r} quad_perm:[1,1,3,3] {DPPM}")
            for r in range(4):
                A(f"v_add_f32_dpp v{vS+r}, v{vS+r}, v{vD1+r} quad_perm:[0,0,2,2] {DPPM}")
            if last:
                A(f"v_mov_b32 v{vU}, 0xff800000")
                for r in range(4):
                    A(f"v_cmp_gt_i32 vcc, s35, v{vG4}")
                    A(f"s_sub_u32 s35, s35, 1")
                    A(f"s_nop 0")
                    A(f"v_cndmask_b32 v{vS+r}, v{vU}, v{vS+r}, vcc")
            A(f"""
            v_max3_f32 v{vT}, v{vS}, v{vS+1}, v{vS+2}
            v_max_f32 v{vT}, v{vT}, v{vS+3}
            v_mov_b32 v{vU}, v{vT}
            s_nop 1
            v_permlane32_swap_b32 v{vT}, v{vU}
            v_max_f32 v{vT}, v{vT}, v{vU}
            v_mov_b32 v{vU}, v{vT}
            s_nop 1
            v_permlane16_swap_b32 v{vT}, v{vU}
            v_max_f32 v{vT}, v{vT}, v{vU}
            v_mul_f32 v{vT}, s36, v{vT}
            v_max_f32 v{vMN}, v{vM}, v{vT}
            """)
        elif c == 9:
            A(f"""
            v_sub_f32 v{vAL}, v{vM}, v{vMN}
            v_exp_f32 v{vAL}, v{vAL}
            v_mov_b32 v{vM}, v{vMN}
            """)
            for r in range(4):
                A(f"v_fma_f32 v{vS+r}, v{vS+r}, s36, -v{vMN}")
            for r in range(4):
                A(f"v_exp_f32 v{vS+r}, v{vS+r}")
            if last:
                A("s_nop 0")
            else:
                for p in perms(0, 0):
                    A(p)
            A(f"""
            v_cvt_pk_bf16_f32 v{vP}, v{vS}, v{vS+1}
            v_cvt_pk_bf16_f32 v{vP+1}, v{vS+2}, v{vS+3}
            v_fma_f32 v{vL}, v{vL}, v{vAL}, v{vS}
            v_add_f32 v{vT}, v{vS+1}, v{vS+2}
            v_add_f32 v{vL}, v{vL}, v{vS+3}
            v_add_f32 v{vL}, v{vL}, v{vT}
            """)
        elif c == 10:
            for i in range(8):
                qp = "[0,0,0,0]" if (i & 3) < 2 else "[2,2,2,2]"
                A(f"v_mul_f32_dpp v{vACC+i}, v{vAL}, v{vACC+i} quad_perm:{qp} {DPPM}")
            for e in range(8):
                A(f"v_and_b32 v{vAE+2*e}, v{vMASK+e}, v{vP}")
                A(f"v_and_b32 v{vAE+2*e+1}, v{vMASK+e}, v{vP+1}")
        elif c == 13:
            for p in perms(1, 0):
                A(p)
        elif c in (11, 15):
            hf = 0 if c == 11 else 1
            ps = perms(hf, 1)
            for p in ps[:4]:
                A(p)
            for e in range(4):
                A(pvmfma(hf, e))
                A(ps[4 + e])
            for e in range(4, 8):
                A(pvmfma(hf, e))

    A("L_loop:")
    if o.fb:
        A("s_cmp_lg_u32 s87, 0")
    wp = [int(ch, 16) for ch in o.wpat] if o.wpat else [W] * 16
    assert len(wp) == 16 and wp[15] == W
    nxt = W
    for c in range(16):
        hi = c + wp[c]
        if nxt <= 16 <= hi:
            A(f"""
            s_waitcnt lgkmcnt(0)
            s_lshl_b32 s44, s39, 16
            {XRL}
            s_load_dword s39, s[10:11], s40
            s_add_u32 s34, s34, {STRIDE*4}
            s_cmp_lg_u32 s33, 1
            s_cbranch_scc1 L_notpen
            v_mov_b32 v{vK0}, v{vSP}
            v_mov_b32 v{vK0+1}, v{vSP+1}
            s_mov_b32 s44, 0
            L_notpen:
            """)
            if o.itstamps:
                A("v_writelane_b32 v89, s98, m0\ns_add_u32 m0, m0, 1\ns_memrealtime s[98:99]")
            if o.fb:
                A(f"""
                s_sub_u32 s40, s84, s82
                s_mov_b32 s58, s52
                s_or_b32 s59, s53, 0x80000000
                s_cmp_eq_u64 s[80:81], s[58:59]
                s_cselect_b32 s40, s40, 0
                s_cmp_gt_i32 s40, {o.thf}
                s_cselect_b64 vcc, 0, -1
                s_cmp_ge_i32 s40, {-o.ths}
                s_cselect_b32 s87, 1, 0
                s_load_dwordx4 s[80:83], s[18:19], s86
                s_add_u32 s86, s86, 256
                s_and_b32 s40, s88, s53
                s_cbranch_scc0 L_nopub
                v_mov_b32 v196, s84
                v_mov_b32 v197, s52
                v_mov_b32 v198, s53
                s_mov_b64 exec, 1
                global_store_dwordx4 v192, v[196:199], s[18:19] sc1
                s_mov_b64 exec, -1
                L_nopub:
                v_add_u32 v192, 0x800, v192
                s_cmp_lg_u32 s53, 0
                s_cbranch_scc1 L_hn
                s_load_dwordx2 s[52:53], s[16:17], 0
                L_hn:
                s_cmp_lg_u32 s87, 0
                """)
        if o.fb and nxt <= hi:
            A(f"""
            s_cbranch_scc1 L_v{c}
            s_waitcnt vmcnt({nxt - c - 3})
            L_v{c}:
            s_cbranch_vccz L_w{c}
            s_waitcnt vmcnt({nxt - c - 2})
            L_w{c}:
            """)
        A(f"s_waitcnt vmcnt({nxt - c - 1})")
        nis = 0
        while nxt <= hi:
            assert nxt < 24
            load(nxt % 16, "s43" if nxt < 16 else "s44")
            nxt += 1
            nis += 1
        cb = min(x for x in range(16) if x + wp[x] >= 16)
        if o.fb and c == cb - 3:
            A("s_memrealtime s[84:85]")
        if c == 8 and nis == 0:
            A("s_nop 0")
        consume(c, False)
    assert nxt == 16 + W
    A(f"""
    s_mov_b32 s43, s44
    s_sub_u32 s33, s33, 1
    s_cmp_lg_u32 s33, 0
    s_cbranch_scc1 L_loop
    """)
    A("L_last:")
    stamp(7)
    A("s_load_dwordx2 s[52:53], s[16:17], 0")
    if o.touch:
        if "1" in o.touch:
            A("s_mov_b64 exec, 1")
        if "r" in o.touch:
            A(f"global_load_dword v193, v{vRX}, s[46:47] sc1")
        if "o" in o.touch:
            A(f"global_load_dword v194, v{vOUT}, s[14:15] sc1")
        if "1" in o.touch:
            A("s_mov_b64 exec, -1")
    WL = o.wlast
    assert W <= WL <= 16
    for i in range(W, WL):
        load(i, "s43", vSP + 2)
    def lstep(c):
        issued = min(16, c + WL)
        A(f"s_waitcnt vmcnt({issued - c - 1})")
        if c + WL < 16:
            load(c + WL, "s43", vSP + 2)
    for c in range(8):
        lstep(c)
        consume(c, True)
    if 8 + WL < 16:
        lstep(8)
    consume(8, True)
    if 9 + WL < 16:
        lstep(9)
    consume(9, True)
    if 10 + WL < 16:
        lstep(10)
    consume(10, True)
    assert 11 + WL >= 16
    A(f"""
    v_mov_b32 v{vU}, v{vL}
    s_nop 1
    v_permlane32_swap_b32 v{vL}, v{vU}
    v_add_f32 v{vL}, v{vL}, v{vU}
    v_mov_b32 v{vU}, v{vL}
    s_nop 1
    v_permlane16_swap_b32 v{vL}, v{vU}
    v_add_f32 v{vL}, v{vL}, v{vU}
    s_waitcnt vmcnt(6)
    """)
    for p in perms(0, 0):
        A(p)
    A("s_waitcnt vmcnt(4)")
    consume(11, True)
    A("s_waitcnt vmcnt(2)")
    consume(13, True)
    A("s_waitcnt vmcnt(0)")
    consume(15, True)
    A("L_done:")
    if o.itstamps:
        A(f"""
        s_waitcnt lgkmcnt(0)
        v_writelane_b32 v89, s98, m0
        s_lshl_b32 s40, s2, 2
        s_add_u32 s40, s40, s29
        s_lshl_b32 s40, s40, 8
        s_add_u32 s40, s40, {STAMP_OFF + (1<<20)}
        v_lshlrev_b32 v{vT}, 2, v1
        v_add_u32 v{vT}, s40, v{vT}
        global_store_dword v{vT}, v89, s[18:19]
        """)
    stamp(3)
    A(f"""
    ds_write_b64 v{vLM}, v[{vM}:{vL}] offset:8192
    ds_write_b128 v{vLW}, {vr(vACC,4)}
    s_nop 5
    ds_write_b128 v{vLW}, {vr(vACC+4,4)} offset:1024
    s_waitcnt vmcnt(0) lgkmcnt(0)
    s_cmp_lg_u32 s53, 0
    s_cbranch_scc1 L_havenonce
    s_mov_b64 exec, 1
    global_atomic_cmpswap_x2 v[{vT}:{vU}], v{vZ}, {vr(vO,4)}, s[16:17] sc0
    s_mov_b64 exec, -1
    s_waitcnt vmcnt(0)
    v_readfirstlane_b32 s52, v{vT}
    v_readfirstlane_b32 s53, v{vU}
    s_cmp_lg_u32 s53, 0
    s_cselect_b32 s52, s52, s50
    s_cselect_b32 s53, s53, s51
    L_havenonce:
    {"s_cmp_ge_u32 s31, 8" if o.pollow else ("s_cmp_lt_u32 s31, %d" % (99 if o.nopoll else 32-NP))}
    s_barrier
    """)
    stamp(4)
    ML = vAE
    X = vAE + 8
    M, Ls, T2 = vB, vB + 1, vB + 2
    O = vO
    A(f"""
    ds_read2_b64 {vr(ML,4)}, v{vRM} offset0:{8192//8-1024+0} offset1:2
    """) if False else None
    for sidx in range(4):
        A(f"ds_read_b64 {vr(ML+2*sidx,2)}, v{vRM} offset:{8192+16*sidx}")
    for sidx in range(4):
        A(f"ds_read_b64 {vr(X+2*sidx,2)}, v{vRX2} offset:{2048*sidx}")
    A(f"""
    s_waitcnt lgkmcnt(4)
    v_max3_f32 v{M}, v{ML}, v{ML+2}, v{ML+4}
    v_max_f32 v{M}, v{M}, v{ML+6}
    """)
    for sidx in range(4):
        A(f"v_sub_f32 v{ML+2*sidx}, v{ML+2*sidx}, v{M}")
    for sidx in range(4):
        A(f"v_exp_f32 v{ML+2*sidx}, v{ML+2*sidx}")
    A(f"v_mul_f32 v{Ls}, v{ML}, v{ML+1}")
    for sidx in range(1, 4):
        A(f"v_fmac_f32 v{Ls}, v{ML+2*sidx}, v{ML+2*sidx+1}")
    A(f"""
    v_max_f32 v{Ls}, 0x0da24260, v{Ls}
    v_log_f32 v{T2}, v{Ls}
    v_rcp_f32 v{Ls}, v{Ls}
    s_waitcnt lgkmcnt(0)
    v_mul_f32 v{O}, v{ML}, v{X}
    v_mul_f32 v{O+2}, v{ML}, v{X+1}
    v_add_f32 v{T2}, v{T2}, v{M}
    """)
    for sidx in range(1, 4):
        A(f"v_fmac_f32 v{O}, v{ML+2*sidx}, v{X+2*sidx}")
        A(f"v_fmac_f32 v{O+2}, v{ML+2*sidx}, v{X+2*sidx+1}")
    A(f"""
    v_xor_b32 v{O+1}, s52, v{T2}
    v_xor_b32 v{O+3}, s53, v{T2}
    v_mul_f32 v{O}, v{O}, v{Ls}
    v_mul_f32 v{O+2}, v{O+2}, v{Ls}
    global_store_dwordx4 v{vRX}, {vr(O,4)}, s[46:47] sc1
    """)
    stamp(5)
    PX = vVB
    PL = vVB + 16
    msk = lambda k: f"s[{90+2*k}:{91+2*k}]"
    A("s_cbranch_scc1 L_fin")
    A("s_xor_b32 s53, s53, s52")
    for k in range(4):
        A(f"s_mov_b64 {msk(k)}, -1")
    if o.ackfirst:
        A("s_waitcnt vmcnt(0)")
    if o.presleep:
        A(f"s_sleep {o.presleep}")
    A("L_poll:")
    for k in range(4):
        A(f"s_mov_b64 exec, {msk(k)}")
        A(f"global_load_dwordx4 {vr(PX+4*k,4)}, v{vL16}, s[48:49] offset:{1024*k} sc1")
    A("s_mov_b64 exec, -1")
    A("s_waitcnt vmcnt(0)")
    for k in range(4):
        A(f"v_xor_b32 v{PL+4+k}, v{PX+4*k+1}, v{PX+4*k+3}")
    for k in range(4):
        A(f"v_xor_b32_dpp v{PL+8+k}, v{PX+4*k+1}, v{PX+4*k+1} quad_perm:[2,3,0,1] {DPPM}")
    for k in range(4):
        A(f"v_xor_b32_dpp v{PL+12+k}, v{PX+4*k+1}, v{PX+4*k+1} row_half_mirror {DPPM}") if False else None
        A(f"v_xor_b32 v{PL+4+k}, s53, v{PL+4+k}")
    for k in range(4):
        A(f"v_or_b32 v{PL+4+k}, v{PL+4+k}, v{PL+8+k}")
    A("s_nop 0")
    for k in range(4):
        A(f"v_or_b32_dpp v{PL+4+k}, v{PL+4+k}, v{PL+4+k} quad_perm:[1,0,3,2] {DPPM}")
    for k in range(4):
        A(f"v_or_b32_dpp v{PL+4+k}, v{PL+4+k}, v{PL+4+k} quad_perm:[2,3,0,1] {DPPM}")
    for k in range(4):
        A(f"v_or_b32_dpp v{PL+4+k}, v{PL+4+k}, v{PL+4+k} row_half_mirror {DPPM}")
    for k in range(4):
        A(f"v_cmp_ne_u32 {msk(k)}, 0, v{PL+4+k}")
    for k in range(4):
        A(f"v_xor_b32 v{PL+k}, s52, v{PX+4*k+1}")
    A(f"""
    s_or_b64 s[40:41], {msk(0)}, {msk(1)}
    s_or_b64 s[42:43], {msk(2)}, {msk(3)}
    s_or_b64 s[44:45], s[40:41], s[42:43]
    s_cbranch_scc0 L_go
    s_bcnt1_i32_b64 s40, s[40:41]
    s_bcnt1_i32_b64 s41, s[42:43]
    s_add_u32 s40, s40, s41
    s_cmp_le_u32 s40, {o.tight*8}
    s_cbranch_scc1 L_poll
    s_sleep {o.sleep}
    s_cmp_le_u32 s40, {o.tight2*8}
    s_cbranch_scc1 L_poll
    s_sleep {o.sleep2}
    s_branch L_poll
    L_go:
    """)
    stamp(6)
    A(f"""
    v_max3_f32 v{M}, v{PL}, v{PL+1}, v{PL+2}
    v_max_f32 v{M}, v{M}, v{PL+3}
    v_mov_b32 v{T2}, v{M}
    s_nop 1
    v_permlane32_swap_b32 v{M}, v{T2}
    v_max_f32 v{M}, v{M}, v{T2}
    v_mov_b32 v{T2}, v{M}
    s_nop 1
    v_permlane16_swap_b32 v{M}, v{T2}
    v_max_f32 v{M}, v{M}, v{T2}
    s_nop 1
    v_max_f32_dpp v{M}, v{M}, v{M} row_ror:8 {DPPM}
    """)
    for k in range(4):
        A(f"v_sub_f32 v{PL+k}, v{PL+k}, v{M}")
    for k in range(4):
        A(f"v_exp_f32 v{PL+k}, v{PL+k}")
    A(f"""
    v_mul_f32 v{PX}, v{PL}, v{PX}
    v_mul_f32 v{PX+2}, v{PL}, v{PX+2}
    v_add_f32 v{Ls}, v{PL}, v{PL+1}
    v_add_f32 v{T2}, v{PL+2}, v{PL+3}
    v_add_f32 v{Ls}, v{Ls}, v{T2}
    """)
    for k in range(1, 4):
        A(f"v_fmac_f32 v{PX}, v{PL+k}, v{PX+4*k}")
        A(f"v_fmac_f32 v{PX+2}, v{PL+k}, v{PX+4*k+2}")
    A(f"""
    v_mov_b32 v{T2}, v{Ls}
    v_mov_b32 v{PX+1}, v{PX}
    v_mov_b32 v{PX+3}, v{PX+2}
    v_permlane32_swap_b32 v{Ls}, v{T2}
    v_permlane32_swap_b32 v{PX}, v{PX+1}
    v_permlane32_swap_b32 v{PX+2}, v{PX+3}
    v_add_f32 v{Ls}, v{Ls}, v{T2}
    v_add_f32 v{PX}, v{PX}, v{PX+1}
    v_add_f32 v{PX+2}, v{PX+2}, v{PX+3}
    v_mov_b32 v{T2}, v{Ls}
    v_mov_b32 v{PX+1}, v{PX}
    v_mov_b32 v{PX+3}, v{PX+2}
    v_permlane16_swap_b32 v{Ls}, v{T2}
    v_permlane16_swap_b32 v{PX}, v{PX+1}
    v_permlane16_swap_b32 v{PX+2}, v{PX+3}
    v_add_f32 v{Ls}, v{Ls}, v{T2}
    v_add_f32 v{PX}, v{PX}, v{PX+1}
    v_add_f32 v{PX+2}, v{PX+2}, v{PX+3}
    v_add_f32_dpp v{Ls}, v{Ls}, v{Ls} row_ror:8 {DPPM}
    v_add_f32_dpp v{PX}, v{PX}, v{PX} row_ror:8 {DPPM}
    v_add_f32_dpp v{PX+2}, v{PX+2}, v{PX+2} row_ror:8 {DPPM}
    v_rcp_f32 v{Ls}, v{Ls}
    s_mov_b64 exec, 0xff
    v_mul_f32 v{PX}, v{PX}, v{Ls}
    v_mul_f32 v{PX+2}, v{PX+2}, v{Ls}
    v_cvt_pk_bf16_f32 v{PX}, v{PX}, v{PX+2}
    global_store_dword v{vOUT}, v{PX}, s[14:15] {o.outflags}
    """)
    A("L_fin:")
    if nst:
        A("s_mov_b64 exec, -1")
        A("s_waitcnt vmcnt(0)")
        stamp(nst - 1)
        A(f"""
        s_lshl_b32 s40, s2, 2
        s_add_u32 s40, s40, s29
        s_mul_i32 s40, s40, {nst*8}
        s_add_u32 s40, s40, {STAMP_OFF}
        v_mov_b32 v1, s40
        s_waitcnt lgkmcnt(0)
        s_mov_b64 exec, 1
        """)
        for i in range(nst):
            A(f"v_mov_b32 v2, s{sST+2*i}")
            A(f"v_mov_b32 v3, s{sST+2*i+1}")
            A(f"global_store_dwordx2 v1, v[2:3], s[18:19] offset:{8*i}")
            A(f"s_nop 1")
    A("L_end:")
    A("s_endpgm")
    if o.fb:
        H = o.horizon
        A(f"""
        L_agg:
        s_cmp_lg_u32 s2, 256
        s_cbranch_scc1 L_end
        v_readfirstlane_b32 s29, v0
        s_load_dwordx8 s[12:19], s[0:1], 32
        s_memrealtime s[50:51]
        s_cmp_ge_u32 s29, 64
        s_cbranch_scc1 L_end
        v_lshlrev_b32 v1, 6, v0
        v_add_u32 v1, {ARR + 2048}, v1
        v_mov_b32 v2, 0
        v_mov_b32 v10, 0
        v_mov_b32 v11, 0
        v_mov_b32 v3, {REF + 256 * (1 + H)}
        s_waitcnt lgkmcnt(0)
        s_load_dword s28, s[12:13], 0
        s_bitset1_b32 s51, 31
        s_bitset0_b32 s50, 31
        v_mov_b32 v8, s50
        v_mov_b32 v9, s51
        s_mov_b64 exec, 1
        global_atomic_cmpswap_x2 v[4:5], v2, v[8:11], s[16:17] sc0
        s_mov_b32 exec_lo, -1
        s_waitcnt vmcnt(0) lgkmcnt(0)
        v_readfirstlane_b32 s52, v4
        v_readfirstlane_b32 s53, v5
        s_cmp_lg_u32 s53, 0
        s_cselect_b32 s52, s52, s50
        s_cselect_b32 s53, s53, s51
        s_cmp_lt_i32 s28, 1
        s_cselect_b32 s28, 0x10000, s28
        s_min_i32 s28, s28, 0x10000
        s_sub_u32 s33, s28, 1
        s_lshr_b32 s33, s33, 11
        s_sub_i32 s33, s33, {H}
        v_mov_b32 v12, s52
        v_mov_b32 v13, s53
        v_mov_b32 v15, 0
        s_mov_b32 s34, 1
        s_mov_b32 s36, 0
        s_mov_b32 s37, 0
        L_agg_epoch:
        s_cmp_ge_i32 s34, s33
        s_cbranch_scc1 L_end
        s_mov_b32 s35, 0
        L_agg_poll:
        global_load_dwordx4 v[4:7], v1, s[18:19] sc1
        s_memrealtime s[40:41]
        s_waitcnt vmcnt(0) lgkmcnt(0)
        v_cmp_eq_u32 vcc, s52, v5
        v_cmp_eq_u32 s[42:43], s53, v6
        s_and_b64 vcc, vcc, s[42:43]
        s_bcnt1_i32_b64 s42, vcc
        s_cmp_ge_u32 s42, {o.need}
        s_cbranch_scc1 L_agg_go
        s_add_u32 s35, s35, 1
        s_cmp_gt_u32 s35, 20
        s_cbranch_scc1 L_end
        s_sleep 2
        s_branch L_agg_poll
        L_agg_go:
        v_subrev_u32 v4, s40, v4
        v_cndmask_b32 v4, 0, v4, vcc
        s_nop 1
        v_add_u32_dpp v4, v4, v4 quad_perm:[1,0,3,2] {DPPM}
        s_nop 1
        v_add_u32_dpp v4, v4, v4 quad_perm:[2,3,0,1] {DPPM}
        s_nop 1
        v_add_u32_dpp v4, v4, v4 row_half_mirror {DPPM}
        s_nop 1
        v_add_u32_dpp v4, v4, v4 row_mirror {DPPM}
        s_nop 1
        v_readlane_b32 s42, v4, 0
        v_readlane_b32 s43, v4, 16
        s_add_u32 s42, s42, s43
        s_ashr_i32 s42, s42, 5
        s_add_u32 s42, s42, s40
        s_lshl_b32 s43, s36, 1
        s_sub_u32 s43, s43, s42
        s_cmp_eq_u32 s34, 2
        s_cselect_b32 s37, s43, s37
        s_sub_u32 s43, s42, s37
        s_mul_i32 s43, s43, {H}
        s_ashr_i32 s43, s43, 1
        s_add_u32 s43, s43, s42
        s_add_u32 s43, s43, {o.bias}
        v_mov_b32 v14, s43
        s_mov_b32 s37, s36
        s_mov_b32 s36, s42
        s_cmp_lt_u32 s34, 2
        s_cbranch_scc1 L_agg_next
        s_mov_b32 exec_lo, 1
        global_store_dwordx4 v3, v[12:15], s[18:19] sc1
        s_mov_b32 exec_lo, -1
        L_agg_next:
        v_add_u32 v1, 0x800, v1
        v_add_u32 v3, 0x100, v3
        s_add_u32 s34, s34, 1
        s_branch L_agg_epoch
        """)
    lds = o.lds
    out = HEADER
    out += f"; @launch grid=({257 if o.fb else 256},1,1) block=(256,1,1) lds={lds}\n"
    out += f""".amdgcn_target "amdgcn-amd-amdhsa--gfx950"
.text
.globl {KN}
.p2align 8
.type {KN},@function
{KN}:
"""
    txt = A.text()
    if o.drop:
        import re
        a, rest = txt.split("L_loop:\n", 1)
        body, tail = rest.split("L_last:\n", 1)
        lines = body.split("\n")
        keep = []
        for ln in lines:
            t = ln.strip()
            if "mfma" in o.drop and t.startswith("v_mfma"): continue
            if "qk" in o.drop and t.startswith("v_mfma_f32_16x16x32"): continue
            if "pv" in o.drop and t.startswith("v_mfma_f32_16x16x16"): continue
            if "valu" in o.drop and t.startswith("v_") and not t.startswith("v_mfma") and not t.startswith("v_writelane") and not t.startswith("v_mov_b32 v2,") and not t.startswith("v_mov_b32 v3,"): continue
            keep.append(ln)
        txt = a + "L_loop:\n" + "\n".join(keep) + "L_last:\n" + tail
    out += txt
    acc = min(256, (o.vgpr + 3) // 4 * 4)
    out += f""".section .rodata,"a"
.p2align 6
.amdhsa_kernel {KN}
  .amdhsa_next_free_vgpr {o.vgpr}
  .amdhsa_next_free_sgpr 102
  .amdhsa_accum_offset {acc}
  .amdhsa_group_segment_fixed_size 0
  .amdhsa_kernarg_size 64
  .amdhsa_user_sgpr_count 2
  .amdhsa_user_sgpr_kernarg_segment_ptr 1
  .amdhsa_system_sgpr_workgroup_id_x 1
.end_amdhsa_kernel
"""
    return out

if __name__ == "__main__":
    ap = argparse.ArgumentParser()
    ap.add_argument("out")
    ap.add_argument("--flags", default="nt")
    ap.add_argument("--map", type=int, default=0)
    ap.add_argument("--window", type=int, default=7)
    ap.add_argument("--vgpr", type=int, default=512)
    ap.add_argument("--lds", type=int, default=8256)
    ap.add_argument("--sleep", type=int, default=16)
    ap.add_argument("--tight", type=int, default=6)
    ap.add_argument("--noncewg", type=int, default=255)
    ap.add_argument("--nopoll", action="store_true")
    ap.add_argument("--wlast", type=int, default=12)
    ap.add_argument("--xr", type=int, default=0)
    ap.add_argument("--wpat", default=None)
    ap.add_argument("--pollow", action="store_true")
    ap.add_argument("--spread", action="store_true")
    ap.add_argument("--drop", default="")
    ap.add_argument("--fb", action="store_true")
    ap.add_argument("--touch", default="")
    ap.add_argument("--ackfirst", action="store_true")
    ap.add_argument("--presleep", type=int, default=0)
    ap.add_argument("--thf", type=int, default=25)
    ap.add_argument("--ths", type=int, default=25)
    ap.add_argument("--need", type=int, default=28)
    ap.add_argument("--horizon", type=int, default=3)
    ap.add_argument("--bias", type=int, default=0)
    ap.add_argument("--outflags", default="")
    ap.add_argument("--tight2", type=int, default=99)
    ap.add_argument("--sleep2", type=int, default=32)
    ap.add_argument("--stamps", type=int, default=0)
    ap.add_argument("--itstamps", action="store_true")
    o = ap.parse_args()
    open(o.out, "w").write(gen(o))
```

```python
import sys, argparse

KN = "standalone__paged_block_table_kv_pagedattention__decode_kernel"
HEADER = open("standalone__paged_block_table_kv_pagedattention__decode.s.ref").read().split("; Override launch")[0]

KV_BYTES = 4100 * 65536
STAMP_OFF = 512 << 20
ARR = 1 << 20
REF = (1 << 20) + (1 << 17)

class Asm:
    def __init__(self):
        self.l = []
    def __call__(self, s):
        for line in s.strip("\n").split("\n"):
            t = line.strip()
            if not t:
                continue
            self.l.append(t if t.endswith(":") else "    " + t)
    def text(self):
        return "\n".join(self.l) + "\n"

def vr(b, n):
    return f"v[{b}:{b+n-1}]"
DPPM = "row_mask:0xf bank_mask:0xf"

def gen(o):
    A = Asm()
    flk = (" " + o.flags.replace("_", " ")) if o.flags != "none" else ""
    flv = flk
    W = o.window
    assert 2 <= W <= 8
    NW = 4
    STRIDE = 32 * NW
    NP = 8
    vK0, vV0 = 2, 4
    vM, vL = 8, 9
    vT, vU, vAL, vMN = 10, 11, 12, 13
    vP = 14
    vS = 16
    vD1 = 20
    vACC = 24
    vMASK = 32
    vAE = 40
    vB = 56
    vQ = 72
    vG4 = 88
    vLW, vLM, vL16, vRX, vRX2, vRM, vFX, vFM, vOUT, vZ = range(90, 100)
    vKB = 100
    vVB = 132
    vO = 164
    vB1 = 176
    vSP = 168
    nst = o.stamps
    sST = 60
    def stamp(i):
        if nst and i < nst:
            A(f"s_memrealtime s[{sST+2*i}:{sST+2*i+1}]")

    A(f"s_cmp_ge_u32 s2, 256")
    A(f"s_cbranch_scc1 {'L_agg' if o.fb else 'L_end'}")
    stamp(0)
    A(f"""
    s_load_dwordx8 s[4:11], s[0:1], 0
    s_load_dwordx8 s[12:19], s[0:1], 32
    v_lshrrev_b32 v10, 6, v0
    v_and_b32 v1, 63, v0
    v_readfirstlane_b32 s29, v10
    """)
    if o.map == 0:
        A("s_and_b32 s30, s2, 7\ns_lshr_b32 s31, s2, 3")
    elif o.map == 1:
        A("s_lshr_b32 s30, s2, 5\ns_and_b32 s31, s2, 31")
    elif o.map == 2:
        A("s_bfe_u32 s30, s2, 0x30003\ns_lshr_b32 s31, s2, 6\ns_lshl_b32 s31, s31, 3\ns_and_b32 s40, s2, 7\ns_or_b32 s31, s31, s40")
    if o.xr:
        XR0 = f"""s_mul_i32 s58, s30, {o.xr}
        s_and_b32 s58, s58, 15
        s_lshl_b32 s58, s58, 9
        s_xor_b32 s59, s34, s58
        s_load_dword s43, s[10:11], s59
        s_load_dword s28, s[12:13], 0
        s_xor_b32 s59, s59, 512
        s_load_dword s39, s[10:11], s59"""
        XRL = """s_xor_b32 s59, s34, s58
        s_cmp_lt_u32 s34, 0x2000
        s_cselect_b32 s40, s59, s34
        s_and_b32 s40, s40, 0x3ffc"""
    else:
        XR0 = f"""s_load_dword s43, s[10:11], s34
        s_load_dword s28, s[12:13], 0
        s_load_dword s39, s[10:11], s34 offset:{STRIDE*4}"""
        XRL = "s_and_b32 s40, s34, 0x3ffc"
    A(f"""
    v_and_b32 v10, 15, v1
    v_lshrrev_b32 v11, 4, v1
    s_lshl_b32 s32, s29, 5
    s_add_u32 s32, s32, s31
    s_lshl_b32 s34, s32, 2
    s_lshl_b32 s41, s30, 9
    v_bfe_u32 v15, v1, 1, 1
    v_lshlrev_b32 v12, 9, v15
    v_lshl_add_u32 v12, v11, 4, v12
    v_and_b32 v14, 1, v1
    v_lshl_add_u32 v12, v14, 6, v12
    s_lshl_b32 s42, s30, 10
    v_add_u32 v12, s42, v12
    v_and_b32 v{vK0}, 7, v1
    v_lshlrev_b32 v{vK0}, 12, v{vK0}
    v_bfe_u32 v{vK0+1}, v1, 3, 1
    v_lshl_add_u32 v{vK0}, v{vK0+1}, 6, v{vK0}
    v_lshl_add_u32 v{vK0}, v11, 4, v{vK0}
    v_add_u32 v{vK0}, s41, v{vK0}
    v_add_u32 v{vK0+1}, 0x8000, v{vK0}
    v_lshlrev_b32 v{vV0}, 14, v11
    v_lshl_add_u32 v{vV0}, v10, 4, v{vV0}
    v_add_u32 v{vV0}, s41, v{vV0}
    v_add_u32 v{vV0+1}, 0x1000, v{vV0}
    v_add_u32 v{vV0+2}, 0x2000, v{vV0}
    v_add_u32 v{vV0+3}, 0x3000, v{vV0}
    s_mov_b32 s22, {KV_BYTES}
    s_mov_b32 s23, 0x20000
    s_mov_b32 s36, 0x3db8aa3b
    s_waitcnt lgkmcnt(0)
    {XR0}
    """)
    TL = """s_lshr_b32 s56, s2, 3
    s_lshl_b32 s56, s56, 2
    s_add_u32 s56, s56, s29
    s_lshl_b32 s56, s56, 21
    s_load_dword s100, s[6:7], s56
    s_load_dword s101, s[8:9], s56"""
    if o.tlb == "e":
        A(TL)
    stamp(1)
    for j in range(4):
        A(f"global_load_dwordx4 {vr(vQ+4*j,4)}, v12, s[4:5] offset:{128*j}")
    A(f"""
    s_mov_b32 s20, s6
    s_and_b32 s21, s7, 0xffff
    s_mov_b32 s24, s8
    s_and_b32 s25, s9, 0xffff
    s_mov_b32 s26, {KV_BYTES}
    s_mov_b32 s27, 0x20000
    s_add_u32 s34, s34, {2*STRIDE*4}
    s_waitcnt lgkmcnt(0)
    s_lshl_b32 s43, s43, 16
    s_cmp_lt_i32 s28, 1
    s_cselect_b32 s36, 0, s36
    s_cselect_b32 s28, 0x10000, s28
    s_min_i32 s28, s28, 0x10000
    s_sub_u32 s33, s28, 1
    s_lshr_b32 s33, s33, 11
    s_cbranch_scc0 L_skip0
    """)
    stamp(2)

    def load(i, sreg, vbase=None):
        if vbase is not None and i >= 8:
            hf, j = (i - 8) >> 2, (i - 8) & 3
            A(f"buffer_load_dwordx4 {vr(vVB+4*(i-8),4)}, v{vbase+j}, s[24:27], {sreg} offen offset:{256*hf}{flv}")
            return
        if i < 8:
            j, hp = i >> 1, i & 1
            A(f"buffer_load_dwordx4 {vr(vKB+4*i,4)}, v{vK0+hp}, s[20:23], {sreg} offen offset:{128*j}{flk}")
        else:
            hf, j = (i - 8) >> 2, (i - 8) & 3
            A(f"buffer_load_dwordx4 {vr(vVB+4*(i-8),4)}, v{vV0+j}, s[24:27], {sreg} offen offset:{256*hf}{flv}")

    wp0 = [int(ch, 16) for ch in o.wpat] if o.wpat else [W] * 16
    X0 = o.x0
    NB = W if X0 == 0 else max(W, max(c + wp0[c] + 1 for c in range(X0)))
    assert NB <= 16 and X0 <= 8
    for i in range(NB):
        load(i, "s43")
    A(f"""
    L_skip0:
    {TL if o.tlb == "l" else ""}
    s_lshl_b32 s40, s33, 11
    s_sub_u32 s40, s28, s40
    s_mul_i32 s45, s40, s32
    s_add_u32 s35, s45, s40
    s_lshr_b32 s45, s45, 7
    s_lshr_b32 s35, s35, 7
    s_sub_u32 s35, s35, s45
    s_lshr_b32 s40, s45, 4
    s_lshl_b32 s54, s33, 7
    s_add_u32 s40, s40, s54
    s_lshl_b32 s40, s40, 2
    s_and_b32 s40, s40, 0x3ffc
    s_load_dword s54, s[10:11], s40
    s_add_u32 s40, s40, 4
    s_and_b32 s40, s40, 0x3ffc
    s_load_dword s55, s[10:11], s40
    s_and_b32 s45, s45, 15
    s_memrealtime s[50:51]
    v_lshlrev_b32 v{vG4}, 2, v11
    v_lshrrev_b32 v13, 2, v10
    v_lshl_add_u32 v13, v13, 1, v14
    """)
    for e in range(8):
        A(f"v_cmp_eq_u32 vcc, {e}, v13")
        A(f"v_mov_b32 v{vACC+e}, 0")
        A(f"s_nop 0")
        A(f"v_cndmask_b32 v{vMASK+e}, 0, -1, vcc")
    PTOUCH = ""
    if "p" in o.touch:
        PTOUCH = f"global_load_dword v193, v{vRX}, s[46:47] {o.tflags}"
    if "P" in o.touch:
        PTOUCH = f"""s_mov_b32 exec_lo, 0x01010101
        s_mov_b32 exec_hi, 0x01010101
        global_load_dword v193, v{vRX}, s[46:47] {o.tflags}
        s_mov_b64 exec, -1"""
    A(f"""
    s_mov_b32 s37, 0x05040100
    s_mov_b32 s38, 0x07060302
    v_mov_b32 v{vM}, 0xf149f2ca
    v_mov_b32 v{vL}, 0
    v_mov_b32 v{vZ}, 0
    v_lshlrev_b32 v{vL16}, 4, v1
    s_lshl_b32 s40, s29, 11
    v_add_u32 v{vLW}, s40, v{vL16}
    s_lshl_b32 s40, s29, 4
    v_lshl_add_u32 v{vLM}, v15, 3, s40
    s_lshl_b32 s40, s30, 17
    s_add_u32 s46, s18, s40
    s_addc_u32 s47, s19, 0
    v_lshrrev_b32 v12, 3, v1
    v_and_b32 v13, 7, v1
    s_lshl_b32 s40, s31, 7
    s_lshl_b32 s41, s29, 15
    s_add_u32 s40, s40, s41
    v_lshl_add_u32 v{vRX}, v12, 12, s40
    v_lshl_add_u32 v{vRX}, v13, 4, v{vRX}
    s_lshl_b32 s40, s29, 9
    v_lshl_add_u32 v{vRX2}, v1, 3, s40
    v_lshlrev_b32 v{vRM}, 3, v14
    s_and_b32 s40, s31, 7
    s_lshl_b32 s40, s40, 2
    s_add_u32 s40, s40, s29
    s_lshl_b32 s41, s40, 12
    s_add_u32 s48, s46, s41
    s_addc_u32 s49, s47, 0
    s_and_b32 s41, s40, 3
    s_lshl_b32 s41, s41, 6
    s_add_u32 s42, s42, s41
    s_bfe_u32 s41, s40, 0x20002
    s_lshl_b32 s41, s41, 2
    s_add_u32 s42, s42, s41
    s_lshr_b32 s41, s40, 4
    s_lshl_b32 s41, s41, 8
    s_add_u32 s42, s42, s41
    v_lshrrev_b32 v13, 1, v13
    v_lshl_add_u32 v{vOUT}, v13, 4, s42
    v_lshl_add_u32 v{vOUT}, v14, 9, v{vOUT}
    s_waitcnt lgkmcnt(0)
    s_bitset1_b32 s51, 31
    s_bitset0_b32 s50, 31
    v_mov_b32 v{vO}, s50
    v_mov_b32 v{vO+1}, s51
    v_mov_b32 v{vO+2}, 0
    v_mov_b32 v{vO+3}, 0
    s_mov_b64 s[52:53], 0
    s_cmp_lg_u32 s2, {o.noncewg}
    s_cbranch_scc1 L_nononce
    s_cmp_lg_u32 s29, 3
    s_cbranch_scc1 L_nononce
    s_mov_b64 exec, 1
    global_atomic_cmpswap_x2 v{vZ}, {vr(vO,4)}, s[16:17]
    s_mov_b64 exec, -1
    L_nononce:
    {PTOUCH}
    s_lshl_b32 s40, s45, 12
    s_lshl_b32 s54, s54, 16
    s_add_u32 s54, s54, s40
    s_sub_u32 s55, s55, 1
    s_lshl_b32 s55, s55, 16
    s_add_u32 s55, s55, s40
    s_sub_u32 s45, 16, s45
    v_mov_b32 v12, s54
    v_mov_b32 v13, s55
    v_bfrev_b32 v15, 1
    """)
    ZINIT = ""
    FBINIT = ""
    if o.fb:
        FBINIT = f"""s_mov_b64 s[80:81], 1
        s_mov_b32 s86, {REF + 256}
        s_mov_b32 s87, 1
        s_mov_b64 vcc, -1
        s_lshr_b32 s40, s31, 2
        s_xor_b32 s40, s40, s30
        s_or_b32 s40, s40, s29
        s_cmp_eq_u32 s40, 0
        s_cselect_b32 s88, 0x80000000, 0
        s_lshl_b32 s40, s31, 6
        s_add_u32 s40, s40, {ARR}
        v_mov_b32 v192, s40
        v_mov_b32 v199, 0"""
    if o.spread:
        ZINIT = "\n".join(f"v_mov_b32 v{r}, 0" for r in list(range(vAE, vAE + 16)) + list(range(vB + 8, vB + 16)) + list(range(vB1, vB1 + 16)))
    for i in range(6):
        src = vK0 + i
        A(f"""
        v_bfe_u32 v14, v{src}, 12, 4
        v_cmp_le_u32 vcc, s45, v14
        v_cmp_gt_u32 s[56:57], s35, v14
        s_nop 0
        v_cndmask_b32 v{vSP+i}, v12, v13, vcc
        v_add_u32 v{vSP+i}, v{vSP+i}, v{src}
        v_cndmask_b32 v{vSP+i}, v15, v{vSP+i}, s[56:57]
        """)
    A(f"""
    {ZINIT if X0 < 6 else ""}
    {FBINIT}
    s_cmp_lg_u32 s33, 0
    s_cbranch_scc1 L_loop0
    {ZINIT if X0 >= 6 else ""}
    v_mov_b32 v{vK0}, v{vSP}
    v_mov_b32 v{vK0+1}, v{vSP+1}
    s_mov_b32 s43, 0
    """)
    for i in range(W):
        load(i, "s43")
    A("s_branch L_last")
    A("L_loop0:")
    if o.itstamps:
        A("s_mov_b32 m0, 0\nv_mov_b32 v89, 0\ns_memrealtime s[98:99]")

    def perms(hf, pair):
        L = lambda j, t: vVB + (hf * 4 + j) * 4 + t
        out = []
        for t in range(4):
            b = (vB1 if (hf and o.spread) else vB) + 4 * t
            out.append(f"v_perm_b32 v{b+pair}, v{L(2*pair+1,t)}, v{L(2*pair,t)}, s37")
            out.append(f"v_perm_b32 v{b+2+pair}, v{L(2*pair+1,t)}, v{L(2*pair,t)}, s38")
        return out
    def pvmfma(hf, e):
        t, x = e >> 1, e & 1
        bb = vB1 if (hf and o.spread) else vB
        return f"v_mfma_f32_16x16x16_bf16 {vr(vACC+4*hf,4)}, {vr(vAE+2*e,2)}, {vr(bb+4*t+2*x,2)}, {vr(vACC+4*hf,4)}"

    DEFER = {0: [(0,4),(0,5)], 1: [(0,6),(0,7)], 2: [(1,0),(1,1)], 3: [(1,2),(1,3)], 4: [(1,4),(1,5)], 5: [(1,6),(1,7)]}
    def consume_spread(c):
        if c == 8:
            A("s_nop 5")
            for r in range(4):
                A(f"v_permlane32_swap_b32 v{vS+r}, v{vD1+r}")
            for r in range(4):
                A(f"v_mov_b32_dpp v{vD1+r}, v{vD1+r} quad_perm:[1,1,3,3] {DPPM}")
            for r in range(4):
                A(f"v_add_f32_dpp v{vS+r}, v{vS+r}, v{vD1+r} quad_perm:[0,0,2,2] {DPPM}")
            A(f"""
            v_max3_f32 v{vT}, v{vS}, v{vS+1}, v{vS+2}
            v_max_f32 v{vT}, v{vT}, v{vS+3}
            v_mov_b32 v{vU}, v{vT}
            """)
        elif c == 9:
            A(f"""
            s_nop 0
            v_permlane32_swap_b32 v{vT}, v{vU}
            v_max_f32 v{vT}, v{vT}, v{vU}
            v_mov_b32 v{vU}, v{vT}
            """)
            ps = perms(0, 0)
            A(ps[0]); A(ps[1])
            A(f"""
            v_permlane16_swap_b32 v{vT}, v{vU}
            v_max_f32 v{vT}, v{vT}, v{vU}
            v_mul_f32 v{vT}, s36, v{vT}
            v_max_f32 v{vMN}, v{vM}, v{vT}
            v_sub_f32 v{vAL}, v{vM}, v{vMN}
            v_exp_f32 v{vAL}, v{vAL}
            v_mov_b32 v{vM}, v{vMN}
            """)
        elif c == 10:
            for r in range(4):
                A(f"v_fma_f32 v{vS+r}, v{vS+r}, s36, -v{vMN}")
            for r in range(4):
                A(f"v_exp_f32 v{vS+r}, v{vS+r}")
            for p in perms(0, 0)[2:]:
                A(p)
        elif c == 11:
            A(f"""
            v_cvt_pk_bf16_f32 v{vP}, v{vS}, v{vS+1}
            v_cvt_pk_bf16_f32 v{vP+1}, v{vS+2}, v{vS+3}
            v_fma_f32 v{vL}, v{vL}, v{vAL}, v{vS}
            v_add_f32 v{vT}, v{vS+1}, v{vS+2}
            v_add_f32 v{vL}, v{vL}, v{vS+3}
            v_add_f32 v{vL}, v{vL}, v{vT}
            """)
            for p in perms(0, 1):
                A(p)
        elif c == 12:
            for e in range(8):
                A(f"v_and_b32 v{vAE+2*e}, v{vMASK+e}, v{vP}")
                A(f"v_and_b32 v{vAE+2*e+1}, v{vMASK+e}, v{vP+1}")
        elif c == 13:
            for i in range(8):
                qp = "[0,0,0,0]" if (i & 3) < 2 else "[2,2,2,2]"
                A(f"v_mul_f32_dpp v{vACC+i}, v{vAL}, v{vACC+i} quad_perm:{qp} {DPPM}")
            for p in perms(1, 0)[:4]:
                A(p)
        elif c == 14:
            ps = perms(1, 0)[4:]
            A(pvmfma(0, 0)); A(ps[0]); A(ps[1]); A(pvmfma(0, 1)); A(ps[2]); A(ps[3])
        elif c == 15:
            ps = perms(1, 1)
            A(pvmfma(0, 2))
            for p in ps[:4]: A(p)
            A(pvmfma(0, 3))
            for p in ps[4:]: A(p)

    def consume(c, last):
        if o.spread and c in DEFER:
            A(pvmfma(*DEFER[c][0]))
            j, hp = c >> 1, c & 1
            d = vD1 if hp else vS
            cc = "0" if j == 0 else vr(d, 4)
            A(f"v_mfma_f32_16x16x32_bf16 {vr(d,4)}, {vr(vKB+4*c,4)}, {vr(vQ+4*j,4)}, {cc}")
            A(pvmfma(*DEFER[c][1]))
            return
        if o.spread and not last and c >= 8:
            consume_spread(c)
            return
        if c < 8:
            j, hp = c >> 1, c & 1
            d = vD1 if hp else vS
            cc = "0" if j == 0 else vr(d, 4)
            A(f"v_mfma_f32_16x16x32_bf16 {vr(d,4)}, {vr(vKB+4*c,4)}, {vr(vQ+4*j,4)}, {cc}")
        elif c == 8:
            A("s_nop 7" if last else "s_nop 5")
            for r in range(4):
                A(f"v_permlane32_swap_b32 v{vS+r}, v{vD1+r}")
            for r in range(4):
                A(f"v_mov_b32_dpp v{vD1+r}, v{vD1+r} quad_perm:[1,1,3,3] {DPPM}")
            for r in range(4):
                A(f"v_add_f32_dpp v{vS+r}, v{vS+r}, v{vD1+r} quad_perm:[0,0,2,2] {DPPM}")
            if last:
                A(f"v_mov_b32 v{vU}, 0xff800000")
                for r in range(4):
                    A(f"v_cmp_gt_i32 vcc, s35, v{vG4}")
                    A(f"s_sub_u32 s35, s35, 1")
                    A(f"s_nop 0")
                    A(f"v_cndmask_b32 v{vS+r}, v{vU}, v{vS+r}, vcc")
            A(f"""
            v_max3_f32 v{vT}, v{vS}, v{vS+1}, v{vS+2}
            v_max_f32 v{vT}, v{vT}, v{vS+3}
            v_mov_b32 v{vU}, v{vT}
            s_nop 1
            v_permlane32_swap_b32 v{vT}, v{vU}
            v_max_f32 v{vT}, v{vT}, v{vU}
            v_mov_b32 v{vU}, v{vT}
            s_nop 1
            v_permlane16_swap_b32 v{vT}, v{vU}
            v_max_f32 v{vT}, v{vT}, v{vU}
            v_mul_f32 v{vT}, s36, v{vT}
            v_max_f32 v{vMN}, v{vM}, v{vT}
            """)
        elif c == 9:
            A(f"""
            v_sub_f32 v{vAL}, v{vM}, v{vMN}
            v_exp_f32 v{vAL}, v{vAL}
            v_mov_b32 v{vM}, v{vMN}
            """)
            for r in range(4):
                A(f"v_fma_f32 v{vS+r}, v{vS+r}, s36, -v{vMN}")
            for r in range(4):
                A(f"v_exp_f32 v{vS+r}, v{vS+r}")
            if last:
                A("s_nop 0")
            else:
                for p in perms(0, 0):
                    A(p)
            A(f"""
            v_cvt_pk_bf16_f32 v{vP}, v{vS}, v{vS+1}
            v_cvt_pk_bf16_f32 v{vP+1}, v{vS+2}, v{vS+3}
            v_fma_f32 v{vL}, v{vL}, v{vAL}, v{vS}
            v_add_f32 v{vT}, v{vS+1}, v{vS+2}
            v_add_f32 v{vL}, v{vL}, v{vS+3}
            v_add_f32 v{vL}, v{vL}, v{vT}
            """)
        elif c == 10:
            for i in range(8):
                qp = "[0,0,0,0]" if (i & 3) < 2 else "[2,2,2,2]"
                A(f"v_mul_f32_dpp v{vACC+i}, v{vAL}, v{vACC+i} quad_perm:{qp} {DPPM}")
            for e in range(8):
                A(f"v_and_b32 v{vAE+2*e}, v{vMASK+e}, v{vP}")
                A(f"v_and_b32 v{vAE+2*e+1}, v{vMASK+e}, v{vP+1}")
        elif c == 13:
            for p in perms(1, 0):
                A(p)
        elif c in (11, 15):
            hf = 0 if c == 11 else 1
            ps = perms(hf, 1)
            for p in ps[:4]:
                A(p)
            for e in range(4):
                A(pvmfma(hf, e))
                A(ps[4 + e])
            for e in range(4, 8):
                A(pvmfma(hf, e))

    for c in range(X0):
        A(f"s_waitcnt vmcnt({NB - c - 1})")
        j, hp = c >> 1, c & 1
        d = vD1 if hp else vS
        cc = "0" if j == 0 else vr(d, 4)
        A(f"v_mfma_f32_16x16x32_bf16 {vr(d,4)}, {vr(vKB+4*c,4)}, {vr(vQ+4*j,4)}, {cc}")
    if X0:
        assert X0 >= 6 or not o.spread
        if o.fb:
            A("s_memrealtime s[84:85]\ns_cmp_lg_u32 s87, 0")
        A("s_branch L_in")
    A("L_loop:")
    if o.fb:
        A("s_cmp_lg_u32 s87, 0")
    wp = [int(ch, 16) for ch in o.wpat] if o.wpat else [W] * 16
    assert len(wp) == 16 and wp[15] == W
    nxt = W
    for c in range(16):
        hi = c + wp[c]
        if X0 and c == X0:
            assert nxt == NB
            A("L_in:")
        if nxt <= 16 <= hi:
            A(f"""
            s_waitcnt lgkmcnt(0)
            s_lshl_b32 s44, s39, 16
            {XRL}
            s_load_dword s39, s[10:11], s40
            s_add_u32 s34, s34, {STRIDE*4}
            s_cmp_lg_u32 s33, 1
            s_cbranch_scc1 L_notpen
            v_mov_b32 v{vK0}, v{vSP}
            v_mov_b32 v{vK0+1}, v{vSP+1}
            s_mov_b32 s44, 0
            L_notpen:
            """)
            if o.itstamps:
                A("v_writelane_b32 v89, s98, m0\ns_add_u32 m0, m0, 1\ns_memrealtime s[98:99]")
            if o.fb:
                A(f"""
                s_sub_u32 s40, s84, s82
                s_mov_b32 s58, s52
                s_or_b32 s59, s53, 0x80000000
                s_cmp_eq_u64 s[80:81], s[58:59]
                s_cselect_b32 s40, s40, 0
                s_cmp_gt_i32 s40, {o.thf}
                s_cselect_b64 vcc, 0, -1
                s_cmp_ge_i32 s40, {-o.ths}
                s_cselect_b32 s87, 1, 0
                s_load_dwordx4 s[80:83], s[18:19], s86
                s_add_u32 s86, s86, 256
                s_and_b32 s40, s88, s53
                s_cbranch_scc0 L_nopub
                v_mov_b32 v196, s84
                v_mov_b32 v197, s52
                v_mov_b32 v198, s53
                s_mov_b64 exec, 1
                global_store_dwordx4 v192, v[196:199], s[18:19] sc1
                s_mov_b64 exec, -1
                L_nopub:
                v_add_u32 v192, 0x800, v192
                s_cmp_lg_u32 s53, 0
                s_cbranch_scc1 L_hn
                s_load_dwordx2 s[52:53], s[16:17], 0
                L_hn:
                s_cmp_lg_u32 s87, 0
                """)
        if o.fb and nxt <= hi:
            A(f"""
            s_cbranch_scc1 L_v{c}
            s_waitcnt vmcnt({nxt - c - 3})
            L_v{c}:
            s_cbranch_vccz L_w{c}
            s_waitcnt vmcnt({nxt - c - 2})
            L_w{c}:
            """)
        A(f"s_waitcnt vmcnt({nxt - c - 1})")
        nis = 0
        while nxt <= hi:
            assert nxt < 24
            load(nxt % 16, "s43" if nxt < 16 else "s44")
            nxt += 1
            nis += 1
        cb = min(x for x in range(16) if x + wp[x] >= 16)
        if o.fb and c == cb - 3:
            A("s_memrealtime s[84:85]")
        if c == 8 and nis == 0:
            A("s_nop 0")
        consume(c, False)
    assert nxt == 16 + W
    A(f"""
    s_mov_b32 s43, s44
    s_sub_u32 s33, s33, 1
    s_cmp_lg_u32 s33, 0
    s_cbranch_scc1 L_loop
    """)
    A("L_last:")
    stamp(7)
    A("s_load_dwordx2 s[52:53], s[16:17], 0")
    if o.touch:
        if "1" in o.touch:
            A("s_mov_b64 exec, 1")
        if "r" in o.touch:
            A(f"global_load_dword v193, v{vRX}, s[46:47] sc1")
        if "o" in o.touch:
            A(f"global_load_dword v194, v{vOUT}, s[14:15] sc1")
        if "1" in o.touch:
            A("s_mov_b64 exec, -1")
    WL = o.wlast
    assert W <= WL <= 16
    for i in range(W, WL):
        load(i, "s43", vSP + 2)
    def lstep(c):
        issued = min(16, c + WL)
        A(f"s_waitcnt vmcnt({issued - c - 1})")
        if c + WL < 16:
            load(c + WL, "s43", vSP + 2)
    for c in range(8):
        lstep(c)
        consume(c, True)
    if 8 + WL < 16:
        lstep(8)
    consume(8, True)
    if 9 + WL < 16:
        lstep(9)
    consume(9, True)
    if 10 + WL < 16:
        lstep(10)
    consume(10, True)
    assert 11 + WL >= 16
    A(f"""
    v_mov_b32 v{vU}, v{vL}
    s_nop 1
    v_permlane32_swap_b32 v{vL}, v{vU}
    v_add_f32 v{vL}, v{vL}, v{vU}
    v_mov_b32 v{vU}, v{vL}
    s_nop 1
    v_permlane16_swap_b32 v{vL}, v{vU}
    v_add_f32 v{vL}, v{vL}, v{vU}
    s_waitcnt vmcnt(6)
    """)
    for p in perms(0, 0):
        A(p)
    A("s_waitcnt vmcnt(4)")
    consume(11, True)
    A("s_waitcnt vmcnt(2)")
    consume(13, True)
    A("s_waitcnt vmcnt(0)")
    consume(15, True)
    A("L_done:")
    if o.itstamps:
        A(f"""
        s_waitcnt lgkmcnt(0)
        v_writelane_b32 v89, s98, m0
        s_lshl_b32 s40, s2, 2
        s_add_u32 s40, s40, s29
        s_lshl_b32 s40, s40, 8
        s_add_u32 s40, s40, {STAMP_OFF + (1<<20)}
        v_lshlrev_b32 v{vT}, 2, v1
        v_add_u32 v{vT}, s40, v{vT}
        global_store_dword v{vT}, v89, s[18:19]
        """)
    stamp(3)
    A(f"""
    ds_write_b64 v{vLM}, v[{vM}:{vL}] offset:8192
    ds_write_b128 v{vLW}, {vr(vACC,4)}
    s_nop 5
    ds_write_b128 v{vLW}, {vr(vACC+4,4)} offset:1024
    s_waitcnt vmcnt(0) lgkmcnt(0)
    s_cmp_lg_u32 s53, 0
    s_cbranch_scc1 L_havenonce
    s_mov_b64 exec, 1
    global_atomic_cmpswap_x2 v[{vT}:{vU}], v{vZ}, {vr(vO,4)}, s[16:17] sc0
    s_mov_b64 exec, -1
    s_waitcnt vmcnt(0)
    v_readfirstlane_b32 s52, v{vT}
    v_readfirstlane_b32 s53, v{vU}
    s_cmp_lg_u32 s53, 0
    s_cselect_b32 s52, s52, s50
    s_cselect_b32 s53, s53, s51
    L_havenonce:
    {"s_cmp_ge_u32 s31, 8" if o.pollow else ("s_cmp_lt_u32 s31, %d" % (99 if o.nopoll else 32-NP))}
    s_barrier
    """)
    stamp(4)
    ML = vAE
    X = vAE + 8
    M, Ls, T2 = vB, vB + 1, vB + 2
    O = vO
    A(f"""
    ds_read2_b64 {vr(ML,4)}, v{vRM} offset0:{8192//8-1024+0} offset1:2
    """) if False else None
    for sidx in range(4):
        A(f"ds_read_b64 {vr(ML+2*sidx,2)}, v{vRM} offset:{8192+16*sidx}")
    for sidx in range(4):
        A(f"ds_read_b64 {vr(X+2*sidx,2)}, v{vRX2} offset:{2048*sidx}")
    A(f"""
    s_waitcnt lgkmcnt(4)
    v_max3_f32 v{M}, v{ML}, v{ML+2}, v{ML+4}
    v_max_f32 v{M}, v{M}, v{ML+6}
    """)
    for sidx in range(4):
        A(f"v_sub_f32 v{ML+2*sidx}, v{ML+2*sidx}, v{M}")
    for sidx in range(4):
        A(f"v_exp_f32 v{ML+2*sidx}, v{ML+2*sidx}")
    A(f"v_mul_f32 v{Ls}, v{ML}, v{ML+1}")
    for sidx in range(1, 4):
        A(f"v_fmac_f32 v{Ls}, v{ML+2*sidx}, v{ML+2*sidx+1}")
    A(f"""
    v_max_f32 v{Ls}, 0x0da24260, v{Ls}
    v_log_f32 v{T2}, v{Ls}
    v_rcp_f32 v{Ls}, v{Ls}
    s_waitcnt lgkmcnt(0)
    v_mul_f32 v{O}, v{ML}, v{X}
    v_mul_f32 v{O+2}, v{ML}, v{X+1}
    v_add_f32 v{T2}, v{T2}, v{M}
    """)
    for sidx in range(1, 4):
        A(f"v_fmac_f32 v{O}, v{ML+2*sidx}, v{X+2*sidx}")
        A(f"v_fmac_f32 v{O+2}, v{ML+2*sidx}, v{X+2*sidx+1}")
    A(f"""
    v_xor_b32 v{O+1}, s52, v{T2}
    v_xor_b32 v{O+3}, s53, v{T2}
    v_mul_f32 v{O}, v{O}, v{Ls}
    v_mul_f32 v{O+2}, v{O+2}, v{Ls}
    global_store_dwordx4 v{vRX}, {vr(O,4)}, s[46:47] sc1
    """)
    stamp(5)
    PX = vVB
    PL = vVB + 16
    msk = lambda k: f"s[{90+2*k}:{91+2*k}]"
    A("s_cbranch_scc1 L_fin")
    A("s_xor_b32 s53, s53, s52")
    for k in range(4):
        A(f"s_mov_b64 {msk(k)}, -1")
    if o.ackfirst:
        A("s_waitcnt vmcnt(0)")
    if o.presleep:
        A(f"s_sleep {o.presleep}")
    if o.pp > 1:
        NS = o.pp
        SET = [vKB + 16 * i for i in range(2)] + [vB1]
        def issue(i):
            for k in range(4):
                A(f"s_or_b64 exec, {msk(k)}, 1")
                A(f"global_load_dwordx4 {vr(SET[i]+4*k,4)}, v{vL16}, s[48:49] offset:{1024*k} sc1")
            A("s_mov_b64 exec, -1")
        for i in range(NS):
            for k in range(4):
                A(f"v_mov_b32 v{SET[i]+4*k+1}, 0")
                A(f"v_mov_b32 v{SET[i]+4*k+3}, 0")
        for i in range(NS - 1):
            issue(i)
            A(f"s_sleep {o.ppgap}")
        A("L_poll:")
        for i in range(NS):
            issue((i + NS - 1) % NS)
            Sx = SET[i]
            A(f"s_waitcnt vmcnt({4*(NS-1)})")
            for k in range(4):
                A(f"v_xor_b32 v{PL+4+k}, v{Sx+4*k+1}, v{Sx+4*k+3}")
            for k in range(4):
                A(f"v_xor_b32_dpp v{PL+8+k}, v{Sx+4*k+1}, v{Sx+4*k+1} quad_perm:[2,3,0,1] {DPPM}")
            for k in range(4):
                A(f"v_xor_b32 v{PL+4+k}, s53, v{PL+4+k}")
            for k in range(4):
                A(f"v_or_b32 v{PL+4+k}, v{PL+4+k}, v{PL+8+k}")
            A("s_nop 0")
            for k in range(4):
                A(f"v_or_b32_dpp v{PL+4+k}, v{PL+4+k}, v{PL+4+k} quad_perm:[1,0,3,2] {DPPM}")
            for k in range(4):
                A(f"v_or_b32_dpp v{PL+4+k}, v{PL+4+k}, v{PL+4+k} quad_perm:[2,3,0,1] {DPPM}")
            for k in range(4):
                A(f"v_or_b32_dpp v{PL+4+k}, v{PL+4+k}, v{PL+4+k} row_half_mirror {DPPM}")
            for k in range(4):
                A(f"v_cmp_eq_u32 s[{80+2*k}:{81+2*k}], 0, v{PL+4+k}")
            for k in range(4):
                A(f"s_andn2_b64 {msk(k)}, {msk(k)}, s[{80+2*k}:{81+2*k}]")
                A(f"s_mov_b64 exec, s[{80+2*k}:{81+2*k}]")
                A(f"v_mov_b32 v{PX+4*k}, v{Sx+4*k}")
                A(f"v_mov_b32 v{PX+4*k+2}, v{Sx+4*k+2}")
                A(f"v_xor_b32 v{PL+k}, s52, v{Sx+4*k+1}")
            A(f"""
            s_mov_b64 exec, -1
            s_or_b64 s[40:41], {msk(0)}, {msk(1)}
            s_or_b64 s[42:43], {msk(2)}, {msk(3)}
            s_or_b64 s[44:45], s[40:41], s[42:43]
            s_cbranch_scc0 L_go
            """)
        A("s_branch L_poll")
        A("L_go:")
    else:
        A("L_poll:")
        for k in range(4):
            A(f"s_mov_b64 exec, {msk(k)}")
            A(f"global_load_dwordx4 {vr(PX+4*k,4)}, v{vL16}, s[48:49] offset:{1024*k} sc1")
        A("s_mov_b64 exec, -1")
        A("s_waitcnt vmcnt(0)")
        for k in range(4):
            A(f"v_xor_b32 v{PL+4+k}, v{PX+4*k+1}, v{PX+4*k+3}")
        for k in range(4):
            A(f"v_xor_b32_dpp v{PL+8+k}, v{PX+4*k+1}, v{PX+4*k+1} quad_perm:[2,3,0,1] {DPPM}")
        for k in range(4):
            A(f"v_xor_b32_dpp v{PL+12+k}, v{PX+4*k+1}, v{PX+4*k+1} row_half_mirror {DPPM}") if False else None
            A(f"v_xor_b32 v{PL+4+k}, s53, v{PL+4+k}")
        for k in range(4):
            A(f"v_or_b32 v{PL+4+k}, v{PL+4+k}, v{PL+8+k}")
        A("s_nop 0")
        for k in range(4):
            A(f"v_or_b32_dpp v{PL+4+k}, v{PL+4+k}, v{PL+4+k} quad_perm:[1,0,3,2] {DPPM}")
        for k in range(4):
            A(f"v_or_b32_dpp v{PL+4+k}, v{PL+4+k}, v{PL+4+k} quad_perm:[2,3,0,1] {DPPM}")
        for k in range(4):
            A(f"v_or_b32_dpp v{PL+4+k}, v{PL+4+k}, v{PL+4+k} row_half_mirror {DPPM}")
        for k in range(4):
            A(f"v_cmp_ne_u32 {msk(k)}, 0, v{PL+4+k}")
        for k in range(4):
            A(f"v_xor_b32 v{PL+k}, s52, v{PX+4*k+1}")
        A(f"""
        s_or_b64 s[40:41], {msk(0)}, {msk(1)}
        s_or_b64 s[42:43], {msk(2)}, {msk(3)}
        s_or_b64 s[44:45], s[40:41], s[42:43]
        s_cbranch_scc0 L_go
        s_bcnt1_i32_b64 s40, s[40:41]
        s_bcnt1_i32_b64 s41, s[42:43]
        s_add_u32 s40, s40, s41
        s_cmp_le_u32 s40, {o.tight*8}
        s_cbranch_scc1 L_poll
        s_sleep {o.sleep}
        s_cmp_le_u32 s40, {o.tight2*8}
        s_cbranch_scc1 L_poll
        s_sleep {o.sleep2}
        s_branch L_poll
        L_go:
        """)
    stamp(6)
    A(f"""
    v_max3_f32 v{M}, v{PL}, v{PL+1}, v{PL+2}
    v_max_f32 v{M}, v{M}, v{PL+3}
    v_mov_b32 v{T2}, v{M}
    s_nop 1
    v_permlane32_swap_b32 v{M}, v{T2}
    v_max_f32 v{M}, v{M}, v{T2}
    v_mov_b32 v{T2}, v{M}
    s_nop 1
    v_permlane16_swap_b32 v{M}, v{T2}
    v_max_f32 v{M}, v{M}, v{T2}
    s_nop 1
    v_max_f32_dpp v{M}, v{M}, v{M} row_ror:8 {DPPM}
    """)
    for k in range(4):
        A(f"v_sub_f32 v{PL+k}, v{PL+k}, v{M}")
    for k in range(4):
        A(f"v_exp_f32 v{PL+k}, v{PL+k}")
    A(f"""
    v_mul_f32 v{PX}, v{PL}, v{PX}
    v_mul_f32 v{PX+2}, v{PL}, v{PX+2}
    v_add_f32 v{Ls}, v{PL}, v{PL+1}
    v_add_f32 v{T2}, v{PL+2}, v{PL+3}
    v_add_f32 v{Ls}, v{Ls}, v{T2}
    """)
    for k in range(1, 4):
        A(f"v_fmac_f32 v{PX}, v{PL+k}, v{PX+4*k}")
        A(f"v_fmac_f32 v{PX+2}, v{PL+k}, v{PX+4*k+2}")
    A(f"""
    v_mov_b32 v{T2}, v{Ls}
    v_mov_b32 v{PX+1}, v{PX}
    v_mov_b32 v{PX+3}, v{PX+2}
    v_permlane32_swap_b32 v{Ls}, v{T2}
    v_permlane32_swap_b32 v{PX}, v{PX+1}
    v_permlane32_swap_b32 v{PX+2}, v{PX+3}
    v_add_f32 v{Ls}, v{Ls}, v{T2}
    v_add_f32 v{PX}, v{PX}, v{PX+1}
    v_add_f32 v{PX+2}, v{PX+2}, v{PX+3}
    v_mov_b32 v{T2}, v{Ls}
    v_mov_b32 v{PX+1}, v{PX}
    v_mov_b32 v{PX+3}, v{PX+2}
    v_permlane16_swap_b32 v{Ls}, v{T2}
    v_permlane16_swap_b32 v{PX}, v{PX+1}
    v_permlane16_swap_b32 v{PX+2}, v{PX+3}
    v_add_f32 v{Ls}, v{Ls}, v{T2}
    v_add_f32 v{PX}, v{PX}, v{PX+1}
    v_add_f32 v{PX+2}, v{PX+2}, v{PX+3}
    v_add_f32_dpp v{Ls}, v{Ls}, v{Ls} row_ror:8 {DPPM}
    v_add_f32_dpp v{PX}, v{PX}, v{PX} row_ror:8 {DPPM}
    v_add_f32_dpp v{PX+2}, v{PX+2}, v{PX+2} row_ror:8 {DPPM}
    v_rcp_f32 v{Ls}, v{Ls}
    s_mov_b64 exec, 0xff
    v_mul_f32 v{PX}, v{PX}, v{Ls}
    v_mul_f32 v{PX+2}, v{PX+2}, v{Ls}
    v_cvt_pk_bf16_f32 v{PX}, v{PX}, v{PX+2}
    global_store_dword v{vOUT}, v{PX}, s[14:15] {o.outflags}
    """)
    A("L_fin:")
    if nst:
        A("s_mov_b64 exec, -1")
        A("s_waitcnt vmcnt(0)")
        stamp(nst - 1)
        A(f"""
        s_lshl_b32 s40, s2, 2
        s_add_u32 s40, s40, s29
        s_mul_i32 s40, s40, {nst*8}
        s_add_u32 s40, s40, {STAMP_OFF}
        v_mov_b32 v1, s40
        s_waitcnt lgkmcnt(0)
        s_mov_b64 exec, 1
        """)
        for i in range(nst):
            A(f"v_mov_b32 v2, s{sST+2*i}")
            A(f"v_mov_b32 v3, s{sST+2*i+1}")
            A(f"global_store_dwordx2 v1, v[2:3], s[18:19] offset:{8*i}")
            A(f"s_nop 1")
    A("L_end:")
    A("s_endpgm")
    if o.fb:
        H = o.horizon
        A(f"""
        L_agg:
        s_cmp_lg_u32 s2, 256
        s_cbranch_scc1 L_end
        v_readfirstlane_b32 s29, v0
        s_load_dwordx8 s[12:19], s[0:1], 32
        s_memrealtime s[50:51]
        s_cmp_ge_u32 s29, 64
        s_cbranch_scc1 L_end
        v_lshlrev_b32 v1, 6, v0
        v_add_u32 v1, {ARR + 2048}, v1
        v_mov_b32 v2, 0
        v_mov_b32 v10, 0
        v_mov_b32 v11, 0
        v_mov_b32 v3, {REF + 256 * (1 + H)}
        s_waitcnt lgkmcnt(0)
        s_load_dword s28, s[12:13], 0
        s_bitset1_b32 s51, 31
        s_bitset0_b32 s50, 31
        v_mov_b32 v8, s50
        v_mov_b32 v9, s51
        s_mov_b64 exec, 1
        global_atomic_cmpswap_x2 v[4:5], v2, v[8:11], s[16:17] sc0
        s_mov_b32 exec_lo, -1
        s_waitcnt vmcnt(0) lgkmcnt(0)
        v_readfirstlane_b32 s52, v4
        v_readfirstlane_b32 s53, v5
        s_cmp_lg_u32 s53, 0
        s_cselect_b32 s52, s52, s50
        s_cselect_b32 s53, s53, s51
        s_cmp_lt_i32 s28, 1
        s_cselect_b32 s28, 0x10000, s28
        s_min_i32 s28, s28, 0x10000
        s_sub_u32 s33, s28, 1
        s_lshr_b32 s33, s33, 11
        s_sub_i32 s33, s33, {H}
        v_mov_b32 v12, s52
        v_mov_b32 v13, s53
        v_mov_b32 v15, 0
        s_mov_b32 s34, 1
        s_mov_b32 s36, 0
        s_mov_b32 s37, 0
        L_agg_epoch:
        s_cmp_ge_i32 s34, s33
        s_cbranch_scc1 L_end
        s_mov_b32 s35, 0
        L_agg_poll:
        global_load_dwordx4 v[4:7], v1, s[18:19] sc1
        s_memrealtime s[40:41]
        s_waitcnt vmcnt(0) lgkmcnt(0)
        v_cmp_eq_u32 vcc, s52, v5
        v_cmp_eq_u32 s[42:43], s53, v6
        s_and_b64 vcc, vcc, s[42:43]
        s_bcnt1_i32_b64 s42, vcc
        s_cmp_ge_u32 s42, {o.need}
        s_cbranch_scc1 L_agg_go
        s_add_u32 s35, s35, 1
        s_cmp_gt_u32 s35, 20
        s_cbranch_scc1 L_end
        s_sleep 2
        s_branch L_agg_poll
        L_agg_go:
        v_subrev_u32 v4, s40, v4
        v_cndmask_b32 v4, 0, v4, vcc
        s_nop 1
        v_add_u32_dpp v4, v4, v4 quad_perm:[1,0,3,2] {DPPM}
        s_nop 1
        v_add_u32_dpp v4, v4, v4 quad_perm:[2,3,0,1] {DPPM}
        s_nop 1
        v_add_u32_dpp v4, v4, v4 row_half_mirror {DPPM}
        s_nop 1
        v_add_u32_dpp v4, v4, v4 row_mirror {DPPM}
        s_nop 1
        v_readlane_b32 s42, v4, 0
        v_readlane_b32 s43, v4, 16
        s_add_u32 s42, s42, s43
        s_ashr_i32 s42, s42, 5
        s_add_u32 s42, s42, s40
        s_lshl_b32 s43, s36, 1
        s_sub_u32 s43, s43, s42
        s_cmp_eq_u32 s34, 2
        s_cselect_b32 s37, s43, s37
        s_sub_u32 s43, s42, s37
        s_mul_i32 s43, s43, {H}
        s_ashr_i32 s43, s43, 1
        s_add_u32 s43, s43, s42
        s_add_u32 s43, s43, {o.bias}
        v_mov_b32 v14, s43
        s_mov_b32 s37, s36
        s_mov_b32 s36, s42
        s_cmp_lt_u32 s34, 2
        s_cbranch_scc1 L_agg_next
        s_mov_b32 exec_lo, 1
        global_store_dwordx4 v3, v[12:15], s[18:19] sc1
        s_mov_b32 exec_lo, -1
        L_agg_next:
        v_add_u32 v1, 0x800, v1
        v_add_u32 v3, 0x100, v3
        s_add_u32 s34, s34, 1
        s_branch L_agg_epoch
        """)
    lds = o.lds
    out = HEADER
    out += f"; @launch grid=({257 if o.fb else 256},1,1) block=(256,1,1) lds={lds}\n"
    out += f""".amdgcn_target "amdgcn-amd-amdhsa--gfx950"
.text
.globl {KN}
.p2align 8
.type {KN},@function
{KN}:
"""
    txt = A.text()
    if o.drop:
        import re
        a, rest = txt.split("L_loop:\n", 1)
        body, tail = rest.split("L_last:\n", 1)
        lines = body.split("\n")
        keep = []
        for ln in lines:
            t = ln.strip()
            if "mfma" in o.drop and t.startswith("v_mfma"): continue
            if "qk" in o.drop and t.startswith("v_mfma_f32_16x16x32"): continue
            if "pv" in o.drop and t.startswith("v_mfma_f32_16x16x16"): continue
            if "valu" in o.drop and t.startswith("v_") and not t.startswith("v_mfma") and not t.startswith("v_writelane") and not t.startswith("v_mov_b32 v2,") and not t.startswith("v_mov_b32 v3,"): continue
            keep.append(ln)
        txt = a + "L_loop:\n" + "\n".join(keep) + "L_last:\n" + tail
    out += txt
    acc = min(256, (o.vgpr + 3) // 4 * 4)
    out += f""".section .rodata,"a"
.p2align 6
.amdhsa_kernel {KN}
  .amdhsa_next_free_vgpr {o.vgpr}
  .amdhsa_next_free_sgpr 102
  .amdhsa_accum_offset {acc}
  .amdhsa_group_segment_fixed_size 0
  .amdhsa_kernarg_size 64
  .amdhsa_user_sgpr_count 2
  .amdhsa_user_sgpr_kernarg_segment_ptr 1
  .amdhsa_system_sgpr_workgroup_id_x 1
.end_amdhsa_kernel
"""
    return out

if __name__ == "__main__":
    ap = argparse.ArgumentParser()
    ap.add_argument("out")
    ap.add_argument("--flags", default="nt")
    ap.add_argument("--map", type=int, default=0)
    ap.add_argument("--window", type=int, default=7)
    ap.add_argument("--vgpr", type=int, default=512)
    ap.add_argument("--lds", type=int, default=8256)
    ap.add_argument("--sleep", type=int, default=16)
    ap.add_argument("--tight", type=int, default=6)
    ap.add_argument("--noncewg", type=int, default=255)
    ap.add_argument("--nopoll", action="store_true")
    ap.add_argument("--wlast", type=int, default=12)
    ap.add_argument("--xr", type=int, default=0)
    ap.add_argument("--wpat", default=None)
    ap.add_argument("--pollow", action="store_true")
    ap.add_argument("--spread", action="store_true")
    ap.add_argument("--drop", default="")
    ap.add_argument("--fb", action="store_true")
    ap.add_argument("--touch", default="")
    ap.add_argument("--ackfirst", action="store_true")
    ap.add_argument("--x0", type=int, default=0)
    ap.add_argument("--tlb", default="")
    ap.add_argument("--tflags", default="sc1")
    ap.add_argument("--pp", type=int, default=1)
    ap.add_argument("--ppgap", type=int, default=4)
    ap.add_argument("--presleep", type=int, default=0)
    ap.add_argument("--thf", type=int, default=25)
    ap.add_argument("--ths", type=int, default=25)
    ap.add_argument("--need", type=int, default=28)
    ap.add_argument("--horizon", type=int, default=3)
    ap.add_argument("--bias", type=int, default=0)
    ap.add_argument("--outflags", default="")
    ap.add_argument("--tight2", type=int, default=99)
    ap.add_argument("--sleep2", type=int, default=32)
    ap.add_argument("--stamps", type=int, default=0)
    ap.add_argument("--itstamps", action="store_true")
    o = ap.parse_args()
    open(o.out, "w").write(gen(o))
```

```python
import sys, argparse

KN = "standalone__paged_block_table_kv_pagedattention__decode_kernel"
HEADER = open("standalone__paged_block_table_kv_pagedattention__decode.s.ref").read().split("; Override launch")[0]

KV_BYTES = 4100 * 65536
STAMP_OFF = 512 << 20
ARR = 1 << 20
REF = (1 << 20) + (1 << 17)

class Asm:
    def __init__(self):
        self.l = []
    def __call__(self, s):
        for line in s.strip("\n").split("\n"):
            t = line.strip()
            if not t:
                continue
            self.l.append(t if t.endswith(":") else "    " + t)
    def text(self):
        return "\n".join(self.l) + "\n"

def vr(b, n):
    return f"v[{b}:{b+n-1}]"
DPPM = "row_mask:0xf bank_mask:0xf"

def gen(o):
    A = Asm()
    flk = (" " + o.flags.replace("_", " ")) if o.flags != "none" else ""
    flv = flk
    W = o.window
    assert 2 <= W <= 8
    NW = 4
    STRIDE = 32 * NW
    NP = 8
    vK0, vV0 = 2, 4
    vM, vL = 8, 9
    vT, vU, vAL, vMN = 10, 11, 12, 13
    vP = 14
    vS = 16
    vD1 = 20
    vACC = 24
    vMASK = 32
    vAE = 40
    vB = 56
    vQ = 72
    vG4 = 88
    vLW, vLM, vL16, vRX, vRX2, vRM, vFX, vFM, vOUT, vZ = range(90, 100)
    vKB = 100
    vVB = 132
    vO = 164
    vB1 = 176
    vSP = 168
    KORD = {"N": [(i >> 1, i & 1) for i in range(8)],
            "M": [(i & 3, i >> 2) for i in range(8)],
            "D": [(0,0),(1,1),(2,0),(3,1),(1,0),(0,1),(3,0),(2,1)],
            "E": [(0,0),(2,1),(1,0),(3,1),(2,0),(0,1),(3,0),(1,1)],
            "F": [(0,0),(1,0),(2,1),(3,1),(2,0),(3,0),(0,1),(1,1)]}[o.kord]
    KFIRST = {hp: min(i for i in range(8) if KORD[i][1] == hp) for hp in (0, 1)}
    nst = o.stamps
    sST = 60
    def stamp(i):
        if nst and i < nst:
            A(f"s_memrealtime s[{sST+2*i}:{sST+2*i+1}]")

    A(f"s_cmp_ge_u32 s2, 256")
    A(f"s_cbranch_scc1 {'L_agg' if o.fb else 'L_end'}")
    stamp(0)
    A(f"""
    s_load_dwordx8 s[4:11], s[0:1], 0
    s_load_dwordx8 s[12:19], s[0:1], 32
    v_lshrrev_b32 v10, 6, v0
    v_and_b32 v1, 63, v0
    v_readfirstlane_b32 s29, v10
    """)
    if o.map == 0:
        A("s_and_b32 s30, s2, 7\ns_lshr_b32 s31, s2, 3")
    elif o.map == 1:
        A("s_lshr_b32 s30, s2, 5\ns_and_b32 s31, s2, 31")
    elif o.map == 2:
        A("s_bfe_u32 s30, s2, 0x30003\ns_lshr_b32 s31, s2, 6\ns_lshl_b32 s31, s31, 3\ns_and_b32 s40, s2, 7\ns_or_b32 s31, s31, s40")
    if o.xr:
        XR0 = f"""s_mul_i32 s58, s30, {o.xr}
        s_and_b32 s58, s58, 15
        s_lshl_b32 s58, s58, 9
        s_xor_b32 s59, s34, s58
        s_load_dword s43, s[10:11], s59
        s_load_dword s28, s[12:13], 0
        s_xor_b32 s59, s59, 512
        s_load_dword s39, s[10:11], s59"""
        XRL = """s_xor_b32 s59, s34, s58
        s_cmp_lt_u32 s34, 0x2000
        s_cselect_b32 s40, s59, s34
        s_and_b32 s40, s40, 0x3ffc"""
    else:
        XR0 = f"""s_load_dword s43, s[10:11], s34
        s_load_dword s28, s[12:13], 0
        s_load_dword s39, s[10:11], s34 offset:{STRIDE*4}"""
        XRL = "s_and_b32 s40, s34, 0x3ffc"
    A(f"""
    v_and_b32 v10, 15, v1
    v_lshrrev_b32 v11, 4, v1
    s_lshl_b32 s32, s29, 5
    s_add_u32 s32, s32, s31
    s_lshl_b32 s34, s32, 2
    s_lshl_b32 s41, s30, 9
    v_bfe_u32 v15, v1, 1, 1
    v_lshlrev_b32 v12, 9, v15
    v_lshl_add_u32 v12, v11, 4, v12
    v_and_b32 v14, 1, v1
    v_lshl_add_u32 v12, v14, 6, v12
    s_lshl_b32 s42, s30, 10
    v_add_u32 v12, s42, v12
    v_and_b32 v{vK0}, 7, v1
    v_lshlrev_b32 v{vK0}, 12, v{vK0}
    v_bfe_u32 v{vK0+1}, v1, 3, 1
    v_lshl_add_u32 v{vK0}, v{vK0+1}, 6, v{vK0}
    v_lshl_add_u32 v{vK0}, v11, 4, v{vK0}
    v_add_u32 v{vK0}, s41, v{vK0}
    v_add_u32 v{vK0+1}, 0x8000, v{vK0}
    v_lshlrev_b32 v{vV0}, 14, v11
    v_lshl_add_u32 v{vV0}, v10, 4, v{vV0}
    v_add_u32 v{vV0}, s41, v{vV0}
    v_add_u32 v{vV0+1}, 0x1000, v{vV0}
    v_add_u32 v{vV0+2}, 0x2000, v{vV0}
    v_add_u32 v{vV0+3}, 0x3000, v{vV0}
    s_mov_b32 s22, {KV_BYTES}
    s_mov_b32 s23, 0x20000
    s_mov_b32 s36, 0x3db8aa3b
    s_waitcnt lgkmcnt(0)
    {XR0}
    """)
    TL = """s_lshr_b32 s56, s2, 3
    s_lshl_b32 s56, s56, 2
    s_add_u32 s56, s56, s29
    s_lshl_b32 s56, s56, 21
    s_load_dword s100, s[6:7], s56
    s_load_dword s101, s[8:9], s56"""
    if o.tlb == "e":
        A(TL)
    stamp(1)
    for j in range(4):
        A(f"global_load_dwordx4 {vr(vQ+4*j,4)}, v12, s[4:5] offset:{128*j}")
    A(f"""
    s_mov_b32 s20, s6
    s_and_b32 s21, s7, 0xffff
    s_mov_b32 s24, s8
    s_and_b32 s25, s9, 0xffff
    s_mov_b32 s26, {KV_BYTES}
    s_mov_b32 s27, 0x20000
    s_add_u32 s34, s34, {2*STRIDE*4}
    s_waitcnt lgkmcnt(0)
    s_lshl_b32 s43, s43, 16
    s_cmp_lt_i32 s28, 1
    s_cselect_b32 s36, 0, s36
    s_cselect_b32 s28, 0x10000, s28
    s_min_i32 s28, s28, 0x10000
    s_sub_u32 s33, s28, 1
    s_lshr_b32 s33, s33, 11
    s_cbranch_scc0 L_skip0
    """)
    stamp(2)

    def load(i, sreg, vbase=None):
        if vbase is not None and i >= 8:
            hf, j = (i - 8) >> 2, (i - 8) & 3
            A(f"buffer_load_dwordx4 {vr(vVB+4*(i-8),4)}, v{vbase+j}, s[24:27], {sreg} offen offset:{256*hf}{flv}")
            return
        if i < 8:
            j, hp = KORD[i]
            A(f"buffer_load_dwordx4 {vr(vKB+4*i,4)}, v{vK0+hp}, s[20:23], {sreg} offen offset:{128*j}{flk}")
        else:
            hf, j = (i - 8) >> 2, (i - 8) & 3
            A(f"buffer_load_dwordx4 {vr(vVB+4*(i-8),4)}, v{vV0+j}, s[24:27], {sreg} offen offset:{256*hf}{flv}")

    wp0 = [int(ch, 16) for ch in o.wpat] if o.wpat else [W] * 16
    X0 = o.x0
    NB = W if X0 == 0 else max(W, max(c + wp0[c] + 1 for c in range(X0)))
    assert NB <= 16 and X0 <= 8
    for i in range(NB):
        load(i, "s43")
    A(f"""
    L_skip0:
    {TL if o.tlb == "l" else ""}
    s_lshl_b32 s40, s33, 11
    s_sub_u32 s40, s28, s40
    s_mul_i32 s45, s40, s32
    s_add_u32 s35, s45, s40
    s_lshr_b32 s45, s45, 7
    s_lshr_b32 s35, s35, 7
    s_sub_u32 s35, s35, s45
    s_lshr_b32 s40, s45, 4
    s_lshl_b32 s54, s33, 7
    s_add_u32 s40, s40, s54
    s_lshl_b32 s40, s40, 2
    s_and_b32 s40, s40, 0x3ffc
    s_load_dword s54, s[10:11], s40
    s_add_u32 s40, s40, 4
    s_and_b32 s40, s40, 0x3ffc
    s_load_dword s55, s[10:11], s40
    s_and_b32 s45, s45, 15
    s_memrealtime s[50:51]
    v_lshlrev_b32 v{vG4}, 2, v11
    v_lshrrev_b32 v13, 2, v10
    v_lshl_add_u32 v13, v13, 1, v14
    """)
    for e in range(8):
        A(f"v_cmp_eq_u32 vcc, {e}, v13")
        A(f"v_mov_b32 v{vACC+e}, 0")
        A(f"s_nop 0")
        A(f"v_cndmask_b32 v{vMASK+e}, 0, -1, vcc")
    PTOUCH = ""
    if "p" in o.touch:
        PTOUCH = f"global_load_dword v193, v{vRX}, s[46:47] {o.tflags}"
    if "P" in o.touch:
        PTOUCH = f"""s_mov_b32 exec_lo, 0x01010101
        s_mov_b32 exec_hi, 0x01010101
        global_load_dword v193, v{vRX}, s[46:47] {o.tflags}
        s_mov_b64 exec, -1"""
    A(f"""
    s_mov_b32 s37, 0x05040100
    s_mov_b32 s38, 0x07060302
    v_mov_b32 v{vM}, 0xf149f2ca
    v_mov_b32 v{vL}, 0
    v_mov_b32 v{vZ}, 0
    v_lshlrev_b32 v{vL16}, 4, v1
    s_lshl_b32 s40, s29, 11
    v_add_u32 v{vLW}, s40, v{vL16}
    s_lshl_b32 s40, s29, 4
    v_lshl_add_u32 v{vLM}, v15, 3, s40
    s_lshl_b32 s40, s30, 17
    s_add_u32 s46, s18, s40
    s_addc_u32 s47, s19, 0
    v_lshrrev_b32 v12, 3, v1
    v_and_b32 v13, 7, v1
    s_lshl_b32 s40, s31, 7
    s_lshl_b32 s41, s29, 15
    s_add_u32 s40, s40, s41
    v_lshl_add_u32 v{vRX}, v12, 12, s40
    v_lshl_add_u32 v{vRX}, v13, 4, v{vRX}
    s_lshl_b32 s40, s29, 9
    v_lshl_add_u32 v{vRX2}, v1, 3, s40
    v_lshlrev_b32 v{vRM}, 3, v14
    s_and_b32 s40, s31, 7
    s_lshl_b32 s40, s40, 2
    s_add_u32 s40, s40, s29
    s_lshl_b32 s41, s40, 12
    s_add_u32 s48, s46, s41
    s_addc_u32 s49, s47, 0
    s_and_b32 s41, s40, 3
    s_lshl_b32 s41, s41, 6
    s_add_u32 s42, s42, s41
    s_bfe_u32 s41, s40, 0x20002
    s_lshl_b32 s41, s41, 2
    s_add_u32 s42, s42, s41
    s_lshr_b32 s41, s40, 4
    s_lshl_b32 s41, s41, 8
    s_add_u32 s42, s42, s41
    v_lshrrev_b32 v13, 1, v13
    v_lshl_add_u32 v{vOUT}, v13, 4, s42
    v_lshl_add_u32 v{vOUT}, v14, 9, v{vOUT}
    s_waitcnt lgkmcnt(0)
    s_bitset1_b32 s51, 31
    s_bitset0_b32 s50, 31
    v_mov_b32 v{vO}, s50
    v_mov_b32 v{vO+1}, s51
    v_mov_b32 v{vO+2}, 0
    v_mov_b32 v{vO+3}, 0
    s_mov_b64 s[52:53], 0
    s_cmp_lg_u32 s2, {o.noncewg}
    s_cbranch_scc1 L_nononce
    s_cmp_lg_u32 s29, 3
    s_cbranch_scc1 L_nononce
    s_mov_b64 exec, 1
    global_atomic_cmpswap_x2 v{vZ}, {vr(vO,4)}, s[16:17]
    s_mov_b64 exec, -1
    L_nononce:
    {PTOUCH}
    s_lshl_b32 s40, s45, 12
    s_lshl_b32 s54, s54, 16
    s_add_u32 s54, s54, s40
    s_sub_u32 s55, s55, 1
    s_lshl_b32 s55, s55, 16
    s_add_u32 s55, s55, s40
    s_sub_u32 s45, 16, s45
    v_mov_b32 v12, s54
    v_mov_b32 v13, s55
    v_bfrev_b32 v15, 1
    """)
    ZINIT = ""
    FBINIT = ""
    if o.fb:
        FBINIT = f"""s_mov_b64 s[80:81], 1
        s_mov_b32 s86, {REF + 256}
        s_mov_b32 s87, 1
        s_mov_b64 vcc, -1
        s_lshr_b32 s40, s31, 2
        s_xor_b32 s40, s40, s30
        s_or_b32 s40, s40, s29
        s_cmp_eq_u32 s40, 0
        s_cselect_b32 s88, 0x80000000, 0
        s_lshl_b32 s40, s31, 6
        s_add_u32 s40, s40, {ARR}
        v_mov_b32 v192, s40
        v_mov_b32 v199, 0"""
    if o.spread:
        ZINIT = "\n".join(f"v_mov_b32 v{r}, 0" for r in list(range(vAE, vAE + 16)) + list(range(vB + 8, vB + 16)) + list(range(vB1, vB1 + 16)))
    for i in range(6):
        src = vK0 + i
        A(f"""
        v_bfe_u32 v14, v{src}, 12, 4
        v_cmp_le_u32 vcc, s45, v14
        v_cmp_gt_u32 s[56:57], s35, v14
        s_nop 0
        v_cndmask_b32 v{vSP+i}, v12, v13, vcc
        v_add_u32 v{vSP+i}, v{vSP+i}, v{src}
        v_cndmask_b32 v{vSP+i}, v15, v{vSP+i}, s[56:57]
        """)
    A(f"""
    {ZINIT if X0 < 6 else ""}
    {FBINIT}
    s_cmp_lg_u32 s33, 0
    s_cbranch_scc1 L_loop0
    {ZINIT if X0 >= 6 else ""}
    v_mov_b32 v{vK0}, v{vSP}
    v_mov_b32 v{vK0+1}, v{vSP+1}
    s_mov_b32 s43, 0
    """)
    for i in range(W):
        load(i, "s43")
    A("s_branch L_last")
    A("L_loop0:")
    if o.itstamps:
        A("s_mov_b32 m0, 0\nv_mov_b32 v89, 0\ns_memrealtime s[98:99]")

    def perms(hf, pair):
        L = lambda j, t: vVB + (hf * 4 + j) * 4 + t
        out = []
        for t in range(4):
            b = (vB1 if (hf and o.spread) else vB) + 4 * t
            out.append(f"v_perm_b32 v{b+pair}, v{L(2*pair+1,t)}, v{L(2*pair,t)}, s37")
            out.append(f"v_perm_b32 v{b+2+pair}, v{L(2*pair+1,t)}, v{L(2*pair,t)}, s38")
        return out
    def pvmfma(hf, e):
        t, x = e >> 1, e & 1
        bb = vB1 if (hf and o.spread) else vB
        return f"v_mfma_f32_16x16x16_bf16 {vr(vACC+4*hf,4)}, {vr(vAE+2*e,2)}, {vr(bb+4*t+2*x,2)}, {vr(vACC+4*hf,4)}"

    DEFER = {0: [(0,4),(0,5)], 1: [(0,6),(0,7)], 2: [(1,0),(1,1)], 3: [(1,2),(1,3)], 4: [(1,4),(1,5)], 5: [(1,6),(1,7)]}
    def consume_spread(c):
        if c == 8:
            A("s_nop 5")
            for r in range(4):
                A(f"v_permlane32_swap_b32 v{vS+r}, v{vD1+r}")
            for r in range(4):
                A(f"v_mov_b32_dpp v{vD1+r}, v{vD1+r} quad_perm:[1,1,3,3] {DPPM}")
            for r in range(4):
                A(f"v_add_f32_dpp v{vS+r}, v{vS+r}, v{vD1+r} quad_perm:[0,0,2,2] {DPPM}")
            A(f"""
            v_max3_f32 v{vT}, v{vS}, v{vS+1}, v{vS+2}
            v_max_f32 v{vT}, v{vT}, v{vS+3}
            v_mov_b32 v{vU}, v{vT}
            """)
        elif c == 9:
            A(f"""
            s_nop 0
            v_permlane32_swap_b32 v{vT}, v{vU}
            v_max_f32 v{vT}, v{vT}, v{vU}
            v_mov_b32 v{vU}, v{vT}
            """)
            ps = perms(0, 0)
            A(ps[0]); A(ps[1])
            A(f"""
            v_permlane16_swap_b32 v{vT}, v{vU}
            v_max_f32 v{vT}, v{vT}, v{vU}
            v_mul_f32 v{vT}, s36, v{vT}
            v_max_f32 v{vMN}, v{vM}, v{vT}
            v_sub_f32 v{vAL}, v{vM}, v{vMN}
            v_exp_f32 v{vAL}, v{vAL}
            v_mov_b32 v{vM}, v{vMN}
            """)
        elif c == 10:
            for r in range(4):
                A(f"v_fma_f32 v{vS+r}, v{vS+r}, s36, -v{vMN}")
            for r in range(4):
                A(f"v_exp_f32 v{vS+r}, v{vS+r}")
            for p in perms(0, 0)[2:]:
                A(p)
        elif c == 11:
            A(f"""
            v_cvt_pk_bf16_f32 v{vP}, v{vS}, v{vS+1}
            v_cvt_pk_bf16_f32 v{vP+1}, v{vS+2}, v{vS+3}
            v_fma_f32 v{vL}, v{vL}, v{vAL}, v{vS}
            v_add_f32 v{vT}, v{vS+1}, v{vS+2}
            v_add_f32 v{vL}, v{vL}, v{vS+3}
            v_add_f32 v{vL}, v{vL}, v{vT}
            """)
            for p in perms(0, 1):
                A(p)
        elif c == 12:
            for e in range(8):
                A(f"v_and_b32 v{vAE+2*e}, v{vMASK+e}, v{vP}")
                A(f"v_and_b32 v{vAE+2*e+1}, v{vMASK+e}, v{vP+1}")
        elif c == 13:
            for i in range(8):
                qp = "[0,0,0,0]" if (i & 3) < 2 else "[2,2,2,2]"
                A(f"v_mul_f32_dpp v{vACC+i}, v{vAL}, v{vACC+i} quad_perm:{qp} {DPPM}")
            for p in perms(1, 0)[:4]:
                A(p)
        elif c == 14:
            ps = perms(1, 0)[4:]
            A(pvmfma(0, 0)); A(ps[0]); A(ps[1]); A(pvmfma(0, 1)); A(ps[2]); A(ps[3])
        elif c == 15:
            ps = perms(1, 1)
            A(pvmfma(0, 2))
            for p in ps[:4]: A(p)
            A(pvmfma(0, 3))
            for p in ps[4:]: A(p)

    def consume(c, last):
        if o.spread and c in DEFER:
            A(pvmfma(*DEFER[c][0]))
            j, hp = KORD[c]
            d = vD1 if hp else vS
            cc = "0" if c == KFIRST[hp] else vr(d, 4)
            A(f"v_mfma_f32_16x16x32_bf16 {vr(d,4)}, {vr(vKB+4*c,4)}, {vr(vQ+4*j,4)}, {cc}")
            A(pvmfma(*DEFER[c][1]))
            return
        if o.spread and not last and c >= 8:
            consume_spread(c)
            return
        if c < 8:
            j, hp = KORD[c]
            d = vD1 if hp else vS
            cc = "0" if c == KFIRST[hp] else vr(d, 4)
            A(f"v_mfma_f32_16x16x32_bf16 {vr(d,4)}, {vr(vKB+4*c,4)}, {vr(vQ+4*j,4)}, {cc}")
        elif c == 8:
            A("s_nop 7" if last else "s_nop 5")
            for r in range(4):
                A(f"v_permlane32_swap_b32 v{vS+r}, v{vD1+r}")
            for r in range(4):
                A(f"v_mov_b32_dpp v{vD1+r}, v{vD1+r} quad_perm:[1,1,3,3] {DPPM}")
            for r in range(4):
                A(f"v_add_f32_dpp v{vS+r}, v{vS+r}, v{vD1+r} quad_perm:[0,0,2,2] {DPPM}")
            if last:
                A(f"v_mov_b32 v{vU}, 0xff800000")
                for r in range(4):
                    A(f"v_cmp_gt_i32 vcc, s35, v{vG4}")
                    A(f"s_sub_u32 s35, s35, 1")
                    A(f"s_nop 0")
                    A(f"v_cndmask_b32 v{vS+r}, v{vU}, v{vS+r}, vcc")
            A(f"""
            v_max3_f32 v{vT}, v{vS}, v{vS+1}, v{vS+2}
            v_max_f32 v{vT}, v{vT}, v{vS+3}
            v_mov_b32 v{vU}, v{vT}
            s_nop 1
            v_permlane32_swap_b32 v{vT}, v{vU}
            v_max_f32 v{vT}, v{vT}, v{vU}
            v_mov_b32 v{vU}, v{vT}
            s_nop 1
            v_permlane16_swap_b32 v{vT}, v{vU}
            v_max_f32 v{vT}, v{vT}, v{vU}
            v_mul_f32 v{vT}, s36, v{vT}
            v_max_f32 v{vMN}, v{vM}, v{vT}
            """)
        elif c == 9:
            A(f"""
            v_sub_f32 v{vAL}, v{vM}, v{vMN}
            v_exp_f32 v{vAL}, v{vAL}
            v_mov_b32 v{vM}, v{vMN}
            """)
            for r in range(4):
                A(f"v_fma_f32 v{vS+r}, v{vS+r}, s36, -v{vMN}")
            for r in range(4):
                A(f"v_exp_f32 v{vS+r}, v{vS+r}")
            if last:
                A("s_nop 0")
            else:
                for p in perms(0, 0):
                    A(p)
            A(f"""
            v_cvt_pk_bf16_f32 v{vP}, v{vS}, v{vS+1}
            v_cvt_pk_bf16_f32 v{vP+1}, v{vS+2}, v{vS+3}
            v_fma_f32 v{vL}, v{vL}, v{vAL}, v{vS}
            v_add_f32 v{vT}, v{vS+1}, v{vS+2}
            v_add_f32 v{vL}, v{vL}, v{vS+3}
            v_add_f32 v{vL}, v{vL}, v{vT}
            """)
        elif c == 10:
            for i in range(8):
                qp = "[0,0,0,0]" if (i & 3) < 2 else "[2,2,2,2]"
                A(f"v_mul_f32_dpp v{vACC+i}, v{vAL}, v{vACC+i} quad_perm:{qp} {DPPM}")
            for e in range(8):
                A(f"v_and_b32 v{vAE+2*e}, v{vMASK+e}, v{vP}")
                A(f"v_and_b32 v{vAE+2*e+1}, v{vMASK+e}, v{vP+1}")
        elif c == 13:
            for p in perms(1, 0):
                A(p)
        elif c in (11, 15):
            hf = 0 if c == 11 else 1
            ps = perms(hf, 1)
            for p in ps[:4]:
                A(p)
            for e in range(4):
                A(pvmfma(hf, e))
                A(ps[4 + e])
            for e in range(4, 8):
                A(pvmfma(hf, e))

    for c in range(X0):
        A(f"s_waitcnt vmcnt({NB - c - 1})")
        j, hp = KORD[c]
        d = vD1 if hp else vS
        cc = "0" if c == KFIRST[hp] else vr(d, 4)
        A(f"v_mfma_f32_16x16x32_bf16 {vr(d,4)}, {vr(vKB+4*c,4)}, {vr(vQ+4*j,4)}, {cc}")
    if X0:
        assert X0 >= 6 or not o.spread
        if o.fb:
            A("s_memrealtime s[84:85]\ns_cmp_lg_u32 s87, 0")
        A("s_branch L_in")
    A("L_loop:")
    if o.fb:
        A("s_cmp_lg_u32 s87, 0")
    wp = [int(ch, 16) for ch in o.wpat] if o.wpat else [W] * 16
    assert len(wp) == 16 and wp[15] == W
    nxt = W
    pend = []
    for c in range(16):
        hi = c + wp[c]
        if X0 and c == X0:
            assert nxt == NB
            A("L_in:")
        if nxt <= 16 <= hi:
            A(f"""
            s_waitcnt lgkmcnt(0)
            s_lshl_b32 s44, s39, 16
            {XRL}
            s_load_dword s39, s[10:11], s40
            s_add_u32 s34, s34, {STRIDE*4}
            s_cmp_lg_u32 s33, 1
            s_cbranch_scc1 L_notpen
            v_mov_b32 v{vK0}, v{vSP}
            v_mov_b32 v{vK0+1}, v{vSP+1}
            s_mov_b32 s44, 0
            L_notpen:
            """)
            if o.itstamps:
                A("v_writelane_b32 v89, s98, m0\ns_add_u32 m0, m0, 1\ns_memrealtime s[98:99]")
            if o.fb:
                A(f"""
                s_sub_u32 s40, s84, s82
                s_mov_b32 s58, s52
                s_or_b32 s59, s53, 0x80000000
                s_cmp_eq_u64 s[80:81], s[58:59]
                s_cselect_b32 s40, s40, 0
                s_cmp_gt_i32 s40, {o.thf}
                s_cselect_b64 vcc, 0, -1
                s_cmp_ge_i32 s40, {-o.ths}
                s_cselect_b32 s87, 1, 0
                s_load_dwordx4 s[80:83], s[18:19], s86
                s_add_u32 s86, s86, 256
                s_and_b32 s40, s88, s53
                s_cbranch_scc0 L_nopub
                v_mov_b32 v196, s84
                v_mov_b32 v197, s52
                v_mov_b32 v198, s53
                s_mov_b64 exec, 1
                global_store_dwordx4 v192, v[196:199], s[18:19] sc1
                s_mov_b64 exec, -1
                L_nopub:
                v_add_u32 v192, 0x800, v192
                s_cmp_lg_u32 s53, 0
                s_cbranch_scc1 L_hn
                s_load_dwordx2 s[52:53], s[16:17], 0
                L_hn:
                s_cmp_lg_u32 s87, 0
                """)
        if o.fb and nxt <= hi:
            A(f"""
            s_cbranch_scc1 L_v{c}
            s_waitcnt vmcnt({nxt - c - 3})
            L_v{c}:
            s_cbranch_vccz L_w{c}
            s_waitcnt vmcnt({nxt - c - 2})
            L_w{c}:
            """)
        if o.defer and nxt > hi:
            assert c < 15
            pend.append(c)
            continue
        A(f"s_waitcnt vmcnt({nxt - c - 1})")
        nis = 0
        while nxt <= hi:
            assert nxt < 24
            load(nxt % 16, "s43" if nxt < 16 else "s44")
            nxt += 1
            nis += 1
        cb = min(x for x in range(16) if x + wp[x] >= 16)
        if o.fb and c == cb - 3:
            A("s_memrealtime s[84:85]")
        if c == 8 and nis == 0:
            A("s_nop 0")
        for pc in pend:
            consume(pc, False)
            if pc == 7:
                A("s_nop 1")
            if pc == 8:
                A("s_nop 0")
        pend = []
        consume(c, False)
    assert nxt == 16 + W
    A(f"""
    s_mov_b32 s43, s44
    s_sub_u32 s33, s33, 1
    s_cmp_lg_u32 s33, 0
    s_cbranch_scc1 L_loop
    """)
    A("L_last:")
    stamp(7)
    A("s_load_dwordx2 s[52:53], s[16:17], 0")
    if o.touch:
        if "1" in o.touch:
            A("s_mov_b64 exec, 1")
        if "r" in o.touch:
            A(f"global_load_dword v193, v{vRX}, s[46:47] sc1")
        if "o" in o.touch:
            A(f"global_load_dword v194, v{vOUT}, s[14:15] sc1")
        if "1" in o.touch:
            A("s_mov_b64 exec, -1")
    WL = o.wlast
    assert W <= WL <= 16
    for i in range(W, WL):
        load(i, "s43", vSP + 2)
    def lstep(c):
        issued = min(16, c + WL)
        A(f"s_waitcnt vmcnt({issued - c - 1})")
        if c + WL < 16:
            load(c + WL, "s43", vSP + 2)
    for c in range(8):
        lstep(c)
        consume(c, True)
    if 8 + WL < 16:
        lstep(8)
    consume(8, True)
    if 9 + WL < 16:
        lstep(9)
    consume(9, True)
    if 10 + WL < 16:
        lstep(10)
    consume(10, True)
    assert 11 + WL >= 16
    A(f"""
    v_mov_b32 v{vU}, v{vL}
    s_nop 1
    v_permlane32_swap_b32 v{vL}, v{vU}
    v_add_f32 v{vL}, v{vL}, v{vU}
    v_mov_b32 v{vU}, v{vL}
    s_nop 1
    v_permlane16_swap_b32 v{vL}, v{vU}
    v_add_f32 v{vL}, v{vL}, v{vU}
    s_waitcnt vmcnt(6)
    """)
    for p in perms(0, 0):
        A(p)
    A("s_waitcnt vmcnt(4)")
    consume(11, True)
    A("s_waitcnt vmcnt(2)")
    consume(13, True)
    A("s_waitcnt vmcnt(0)")
    consume(15, True)
    A("L_done:")
    if o.itstamps:
        A(f"""
        s_waitcnt lgkmcnt(0)
        v_writelane_b32 v89, s98, m0
        s_lshl_b32 s40, s2, 2
        s_add_u32 s40, s40, s29
        s_lshl_b32 s40, s40, 8
        s_add_u32 s40, s40, {STAMP_OFF + (1<<20)}
        v_lshlrev_b32 v{vT}, 2, v1
        v_add_u32 v{vT}, s40, v{vT}
        global_store_dword v{vT}, v89, s[18:19]
        """)
    stamp(3)
    A(f"""
    ds_write_b64 v{vLM}, v[{vM}:{vL}] offset:8192
    ds_write_b128 v{vLW}, {vr(vACC,4)}
    s_nop 5
    ds_write_b128 v{vLW}, {vr(vACC+4,4)} offset:1024
    s_waitcnt vmcnt(0) lgkmcnt(0)
    s_cmp_lg_u32 s53, 0
    s_cbranch_scc1 L_havenonce
    s_mov_b64 exec, 1
    global_atomic_cmpswap_x2 v[{vT}:{vU}], v{vZ}, {vr(vO,4)}, s[16:17] sc0
    s_mov_b64 exec, -1
    s_waitcnt vmcnt(0)
    v_readfirstlane_b32 s52, v{vT}
    v_readfirstlane_b32 s53, v{vU}
    s_cmp_lg_u32 s53, 0
    s_cselect_b32 s52, s52, s50
    s_cselect_b32 s53, s53, s51
    L_havenonce:
    {"s_cmp_ge_u32 s31, 8" if o.pollow else ("s_cmp_lt_u32 s31, %d" % (99 if o.nopoll else 32-NP))}
    s_barrier
    """)
    stamp(4)
    ML = vAE
    X = vAE + 8
    M, Ls, T2 = vB, vB + 1, vB + 2
    O = vO
    A(f"""
    ds_read2_b64 {vr(ML,4)}, v{vRM} offset0:{8192//8-1024+0} offset1:2
    """) if False else None
    for sidx in range(4):
        A(f"ds_read_b64 {vr(ML+2*sidx,2)}, v{vRM} offset:{8192+16*sidx}")
    for sidx in range(4):
        A(f"ds_read_b64 {vr(X+2*sidx,2)}, v{vRX2} offset:{2048*sidx}")
    A(f"""
    s_waitcnt lgkmcnt(4)
    v_max3_f32 v{M}, v{ML}, v{ML+2}, v{ML+4}
    v_max_f32 v{M}, v{M}, v{ML+6}
    """)
    for sidx in range(4):
        A(f"v_sub_f32 v{ML+2*sidx}, v{ML+2*sidx}, v{M}")
    for sidx in range(4):
        A(f"v_exp_f32 v{ML+2*sidx}, v{ML+2*sidx}")
    A(f"v_mul_f32 v{Ls}, v{ML}, v{ML+1}")
    for sidx in range(1, 4):
        A(f"v_fmac_f32 v{Ls}, v{ML+2*sidx}, v{ML+2*sidx+1}")
    A(f"""
    v_max_f32 v{Ls}, 0x0da24260, v{Ls}
    v_log_f32 v{T2}, v{Ls}
    v_rcp_f32 v{Ls}, v{Ls}
    s_waitcnt lgkmcnt(0)
    v_mul_f32 v{O}, v{ML}, v{X}
    v_mul_f32 v{O+2}, v{ML}, v{X+1}
    v_add_f32 v{T2}, v{T2}, v{M}
    """)
    for sidx in range(1, 4):
        A(f"v_fmac_f32 v{O}, v{ML+2*sidx}, v{X+2*sidx}")
        A(f"v_fmac_f32 v{O+2}, v{ML+2*sidx}, v{X+2*sidx+1}")
    A(f"""
    v_xor_b32 v{O+1}, s52, v{T2}
    v_xor_b32 v{O+3}, s53, v{T2}
    v_mul_f32 v{O}, v{O}, v{Ls}
    v_mul_f32 v{O+2}, v{O+2}, v{Ls}
    global_store_dwordx4 v{vRX}, {vr(O,4)}, s[46:47] sc1
    """)
    stamp(5)
    PX = vVB
    PL = vVB + 16
    msk = lambda k: f"s[{90+2*k}:{91+2*k}]"
    A("s_cbranch_scc1 L_fin")
    A("s_xor_b32 s53, s53, s52")
    for k in range(4):
        A(f"s_mov_b64 {msk(k)}, -1")
    if o.ackfirst:
        A("s_waitcnt vmcnt(0)")
    if o.presleep:
        A(f"s_sleep {o.presleep}")
    if o.pp > 1:
        NS = o.pp
        SET = [vKB + 16 * i for i in range(2)] + [vB1]
        def issue(i):
            for k in range(4):
                A(f"s_or_b64 exec, {msk(k)}, 1")
                A(f"global_load_dwordx4 {vr(SET[i]+4*k,4)}, v{vL16}, s[48:49] offset:{1024*k} sc1")
            A("s_mov_b64 exec, -1")
        for i in range(NS):
            for k in range(4):
                A(f"v_mov_b32 v{SET[i]+4*k+1}, 0")
                A(f"v_mov_b32 v{SET[i]+4*k+3}, 0")
        for i in range(NS - 1):
            issue(i)
            A(f"s_sleep {o.ppgap}")
        A("L_poll:")
        for i in range(NS):
            issue((i + NS - 1) % NS)
            Sx = SET[i]
            A(f"s_waitcnt vmcnt({4*(NS-1)})")
            for k in range(4):
                A(f"v_xor_b32 v{PL+4+k}, v{Sx+4*k+1}, v{Sx+4*k+3}")
            for k in range(4):
                A(f"v_xor_b32_dpp v{PL+8+k}, v{Sx+4*k+1}, v{Sx+4*k+1} quad_perm:[2,3,0,1] {DPPM}")
            for k in range(4):
                A(f"v_xor_b32 v{PL+4+k}, s53, v{PL+4+k}")
            for k in range(4):
                A(f"v_or_b32 v{PL+4+k}, v{PL+4+k}, v{PL+8+k}")
            A("s_nop 0")
            for k in range(4):
                A(f"v_or_b32_dpp v{PL+4+k}, v{PL+4+k}, v{PL+4+k} quad_perm:[1,0,3,2] {DPPM}")
            for k in range(4):
                A(f"v_or_b32_dpp v{PL+4+k}, v{PL+4+k}, v{PL+4+k} quad_perm:[2,3,0,1] {DPPM}")
            for k in range(4):
                A(f"v_or_b32_dpp v{PL+4+k}, v{PL+4+k}, v{PL+4+k} row_half_mirror {DPPM}")
            for k in range(4):
                A(f"v_cmp_eq_u32 s[{80+2*k}:{81+2*k}], 0, v{PL+4+k}")
            for k in range(4):
                A(f"s_andn2_b64 {msk(k)}, {msk(k)}, s[{80+2*k}:{81+2*k}]")
                A(f"s_mov_b64 exec, s[{80+2*k}:{81+2*k}]")
                A(f"v_mov_b32 v{PX+4*k}, v{Sx+4*k}")
                A(f"v_mov_b32 v{PX+4*k+2}, v{Sx+4*k+2}")
                A(f"v_xor_b32 v{PL+k}, s52, v{Sx+4*k+1}")
            A(f"""
            s_mov_b64 exec, -1
            s_or_b64 s[40:41], {msk(0)}, {msk(1)}
            s_or_b64 s[42:43], {msk(2)}, {msk(3)}
            s_or_b64 s[44:45], s[40:41], s[42:43]
            s_cbranch_scc0 L_go
            """)
        A("s_branch L_poll")
        A("L_go:")
    else:
        A("L_poll:")
        for k in range(4):
            A(f"s_mov_b64 exec, {msk(k)}")
            A(f"global_load_dwordx4 {vr(PX+4*k,4)}, v{vL16}, s[48:49] offset:{1024*k} sc1")
        A("s_mov_b64 exec, -1")
        A("s_waitcnt vmcnt(0)")
        for k in range(4):
            A(f"v_xor_b32 v{PL+4+k}, v{PX+4*k+1}, v{PX+4*k+3}")
        for k in range(4):
            A(f"v_xor_b32_dpp v{PL+8+k}, v{PX+4*k+1}, v{PX+4*k+1} quad_perm:[2,3,0,1] {DPPM}")
        for k in range(4):
            A(f"v_xor_b32_dpp v{PL+12+k}, v{PX+4*k+1}, v{PX+4*k+1} row_half_mirror {DPPM}") if False else None
            A(f"v_xor_b32 v{PL+4+k}, s53, v{PL+4+k}")
        for k in range(4):
            A(f"v_or_b32 v{PL+4+k}, v{PL+4+k}, v{PL+8+k}")
        A("s_nop 0")
        for k in range(4):
            A(f"v_or_b32_dpp v{PL+4+k}, v{PL+4+k}, v{PL+4+k} quad_perm:[1,0,3,2] {DPPM}")
        for k in range(4):
            A(f"v_or_b32_dpp v{PL+4+k}, v{PL+4+k}, v{PL+4+k} quad_perm:[2,3,0,1] {DPPM}")
        for k in range(4):
            A(f"v_or_b32_dpp v{PL+4+k}, v{PL+4+k}, v{PL+4+k} row_half_mirror {DPPM}")
        for k in range(4):
            A(f"v_cmp_ne_u32 {msk(k)}, 0, v{PL+4+k}")
        for k in range(4):
            A(f"v_xor_b32 v{PL+k}, s52, v{PX+4*k+1}")
        A(f"""
        s_or_b64 s[40:41], {msk(0)}, {msk(1)}
        s_or_b64 s[42:43], {msk(2)}, {msk(3)}
        s_or_b64 s[44:45], s[40:41], s[42:43]
        s_cbranch_scc0 L_go
        s_bcnt1_i32_b64 s40, s[40:41]
        s_bcnt1_i32_b64 s41, s[42:43]
        s_add_u32 s40, s40, s41
        s_cmp_le_u32 s40, {o.tight*8}
        s_cbranch_scc1 L_poll
        s_sleep {o.sleep}
        s_cmp_le_u32 s40, {o.tight2*8}
        s_cbranch_scc1 L_poll
        s_sleep {o.sleep2}
        s_branch L_poll
        L_go:
        """)
    stamp(6)
    A(f"""
    v_max3_f32 v{M}, v{PL}, v{PL+1}, v{PL+2}
    v_max_f32 v{M}, v{M}, v{PL+3}
    v_mov_b32 v{T2}, v{M}
    s_nop 1
    v_permlane32_swap_b32 v{M}, v{T2}
    v_max_f32 v{M}, v{M}, v{T2}
    v_mov_b32 v{T2}, v{M}
    s_nop 1
    v_permlane16_swap_b32 v{M}, v{T2}
    v_max_f32 v{M}, v{M}, v{T2}
    s_nop 1
    v_max_f32_dpp v{M}, v{M}, v{M} row_ror:8 {DPPM}
    """)
    for k in range(4):
        A(f"v_sub_f32 v{PL+k}, v{PL+k}, v{M}")
    for k in range(4):
        A(f"v_exp_f32 v{PL+k}, v{PL+k}")
    A(f"""
    v_mul_f32 v{PX}, v{PL}, v{PX}
    v_mul_f32 v{PX+2}, v{PL}, v{PX+2}
    v_add_f32 v{Ls}, v{PL}, v{PL+1}
    v_add_f32 v{T2}, v{PL+2}, v{PL+3}
    v_add_f32 v{Ls}, v{Ls}, v{T2}
    """)
    for k in range(1, 4):
        A(f"v_fmac_f32 v{PX}, v{PL+k}, v{PX+4*k}")
        A(f"v_fmac_f32 v{PX+2}, v{PL+k}, v{PX+4*k+2}")
    A(f"""
    v_mov_b32 v{T2}, v{Ls}
    v_mov_b32 v{PX+1}, v{PX}
    v_mov_b32 v{PX+3}, v{PX+2}
    v_permlane32_swap_b32 v{Ls}, v{T2}
    v_permlane32_swap_b32 v{PX}, v{PX+1}
    v_permlane32_swap_b32 v{PX+2}, v{PX+3}
    v_add_f32 v{Ls}, v{Ls}, v{T2}
    v_add_f32 v{PX}, v{PX}, v{PX+1}
    v_add_f32 v{PX+2}, v{PX+2}, v{PX+3}
    v_mov_b32 v{T2}, v{Ls}
    v_mov_b32 v{PX+1}, v{PX}
    v_mov_b32 v{PX+3}, v{PX+2}
    v_permlane16_swap_b32 v{Ls}, v{T2}
    v_permlane16_swap_b32 v{PX}, v{PX+1}
    v_permlane16_swap_b32 v{PX+2}, v{PX+3}
    v_add_f32 v{Ls}, v{Ls}, v{T2}
    v_add_f32 v{PX}, v{PX}, v{PX+1}
    v_add_f32 v{PX+2}, v{PX+2}, v{PX+3}
    v_add_f32_dpp v{Ls}, v{Ls}, v{Ls} row_ror:8 {DPPM}
    v_add_f32_dpp v{PX}, v{PX}, v{PX} row_ror:8 {DPPM}
    v_add_f32_dpp v{PX+2}, v{PX+2}, v{PX+2} row_ror:8 {DPPM}
    v_rcp_f32 v{Ls}, v{Ls}
    s_mov_b64 exec, 0xff
    v_mul_f32 v{PX}, v{PX}, v{Ls}
    v_mul_f32 v{PX+2}, v{PX+2}, v{Ls}
    v_cvt_pk_bf16_f32 v{PX}, v{PX}, v{PX+2}
    global_store_dword v{vOUT}, v{PX}, s[14:15] {o.outflags}
    """)
    A("L_fin:")
    if nst:
        A("s_mov_b64 exec, -1")
        A("s_waitcnt vmcnt(0)")
        stamp(nst - 1)
        A(f"""
        s_lshl_b32 s40, s2, 2
        s_add_u32 s40, s40, s29
        s_mul_i32 s40, s40, {nst*8}
        s_add_u32 s40, s40, {STAMP_OFF}
        v_mov_b32 v1, s40
        s_waitcnt lgkmcnt(0)
        s_mov_b64 exec, 1
        """)
        for i in range(nst):
            A(f"v_mov_b32 v2, s{sST+2*i}")
            A(f"v_mov_b32 v3, s{sST+2*i+1}")
            A(f"global_store_dwordx2 v1, v[2:3], s[18:19] offset:{8*i}")
            A(f"s_nop 1")
    A("L_end:")
    A("s_endpgm")
    if o.fb:
        H = o.horizon
        A(f"""
        L_agg:
        s_cmp_lg_u32 s2, 256
        s_cbranch_scc1 L_end
        v_readfirstlane_b32 s29, v0
        s_load_dwordx8 s[12:19], s[0:1], 32
        s_memrealtime s[50:51]
        s_cmp_ge_u32 s29, 64
        s_cbranch_scc1 L_end
        v_lshlrev_b32 v1, 6, v0
        v_add_u32 v1, {ARR + 2048}, v1
        v_mov_b32 v2, 0
        v_mov_b32 v10, 0
        v_mov_b32 v11, 0
        v_mov_b32 v3, {REF + 256 * (1 + H)}
        s_waitcnt lgkmcnt(0)
        s_load_dword s28, s[12:13], 0
        s_bitset1_b32 s51, 31
        s_bitset0_b32 s50, 31
        v_mov_b32 v8, s50
        v_mov_b32 v9, s51
        s_mov_b64 exec, 1
        global_atomic_cmpswap_x2 v[4:5], v2, v[8:11], s[16:17] sc0
        s_mov_b32 exec_lo, -1
        s_waitcnt vmcnt(0) lgkmcnt(0)
        v_readfirstlane_b32 s52, v4
        v_readfirstlane_b32 s53, v5
        s_cmp_lg_u32 s53, 0
        s_cselect_b32 s52, s52, s50
        s_cselect_b32 s53, s53, s51
        s_cmp_lt_i32 s28, 1
        s_cselect_b32 s28, 0x10000, s28
        s_min_i32 s28, s28, 0x10000
        s_sub_u32 s33, s28, 1
        s_lshr_b32 s33, s33, 11
        s_sub_i32 s33, s33, {H}
        v_mov_b32 v12, s52
        v_mov_b32 v13, s53
        v_mov_b32 v15, 0
        s_mov_b32 s34, 1
        s_mov_b32 s36, 0
        s_mov_b32 s37, 0
        L_agg_epoch:
        s_cmp_ge_i32 s34, s33
        s_cbranch_scc1 L_end
        s_mov_b32 s35, 0
        L_agg_poll:
        global_load_dwordx4 v[4:7], v1, s[18:19] sc1
        s_memrealtime s[40:41]
        s_waitcnt vmcnt(0) lgkmcnt(0)
        v_cmp_eq_u32 vcc, s52, v5
        v_cmp_eq_u32 s[42:43], s53, v6
        s_and_b64 vcc, vcc, s[42:43]
        s_bcnt1_i32_b64 s42, vcc
        s_cmp_ge_u32 s42, {o.need}
        s_cbranch_scc1 L_agg_go
        s_add_u32 s35, s35, 1
        s_cmp_gt_u32 s35, 20
        s_cbranch_scc1 L_end
        s_sleep 2
        s_branch L_agg_poll
        L_agg_go:
        v_subrev_u32 v4, s40, v4
        v_cndmask_b32 v4, 0, v4, vcc
        s_nop 1
        v_add_u32_dpp v4, v4, v4 quad_perm:[1,0,3,2] {DPPM}
        s_nop 1
        v_add_u32_dpp v4, v4, v4 quad_perm:[2,3,0,1] {DPPM}
        s_nop 1
        v_add_u32_dpp v4, v4, v4 row_half_mirror {DPPM}
        s_nop 1
        v_add_u32_dpp v4, v4, v4 row_mirror {DPPM}
        s_nop 1
        v_readlane_b32 s42, v4, 0
        v_readlane_b32 s43, v4, 16
        s_add_u32 s42, s42, s43
        s_ashr_i32 s42, s42, 5
        s_add_u32 s42, s42, s40
        s_lshl_b32 s43, s36, 1
        s_sub_u32 s43, s43, s42
        s_cmp_eq_u32 s34, 2
        s_cselect_b32 s37, s43, s37
        s_sub_u32 s43, s42, s37
        s_mul_i32 s43, s43, {H}
        s_ashr_i32 s43, s43, 1
        s_add_u32 s43, s43, s42
        s_add_u32 s43, s43, {o.bias}
        v_mov_b32 v14, s43
        s_mov_b32 s37, s36
        s_mov_b32 s36, s42
        s_cmp_lt_u32 s34, 2
        s_cbranch_scc1 L_agg_next
        s_mov_b32 exec_lo, 1
        global_store_dwordx4 v3, v[12:15], s[18:19] sc1
        s_mov_b32 exec_lo, -1
        L_agg_next:
        v_add_u32 v1, 0x800, v1
        v_add_u32 v3, 0x100, v3
        s_add_u32 s34, s34, 1
        s_branch L_agg_epoch
        """)
    lds = o.lds
    out = HEADER
    out += f"; @launch grid=({257 if o.fb else 256},1,1) block=(256,1,1) lds={lds}\n"
    out += f""".amdgcn_target "amdgcn-amd-amdhsa--gfx950"
.text
.globl {KN}
.p2align 8
.type {KN},@function
{KN}:
"""
    txt = A.text()
    if o.drop:
        import re
        a, rest = txt.split("L_loop:\n", 1)
        body, tail = rest.split("L_last:\n", 1)
        lines = body.split("\n")
        keep = []
        for ln in lines:
            t = ln.strip()
            if "mfma" in o.drop and t.startswith("v_mfma"): continue
            if "qk" in o.drop and t.startswith("v_mfma_f32_16x16x32"): continue
            if "pv" in o.drop and t.startswith("v_mfma_f32_16x16x16"): continue
            if "valu" in o.drop and t.startswith("v_") and not t.startswith("v_mfma") and not t.startswith("v_writelane") and not t.startswith("v_mov_b32 v2,") and not t.startswith("v_mov_b32 v3,"): continue
            keep.append(ln)
        txt = a + "L_loop:\n" + "\n".join(keep) + "L_last:\n" + tail
    out += txt
    acc = min(256, (o.vgpr + 3) // 4 * 4)
    out += f""".section .rodata,"a"
.p2align 6
.amdhsa_kernel {KN}
  .amdhsa_next_free_vgpr {o.vgpr}
  .amdhsa_next_free_sgpr 102
  .amdhsa_accum_offset {acc}
  .amdhsa_group_segment_fixed_size 0
  .amdhsa_kernarg_size 64
  .amdhsa_user_sgpr_count 2
  .amdhsa_user_sgpr_kernarg_segment_ptr 1
  .amdhsa_system_sgpr_workgroup_id_x 1
.end_amdhsa_kernel
"""
    return out

if __name__ == "__main__":
    ap = argparse.ArgumentParser()
    ap.add_argument("out")
    ap.add_argument("--flags", default="nt")
    ap.add_argument("--map", type=int, default=0)
    ap.add_argument("--window", type=int, default=7)
    ap.add_argument("--vgpr", type=int, default=512)
    ap.add_argument("--lds", type=int, default=8256)
    ap.add_argument("--sleep", type=int, default=16)
    ap.add_argument("--tight", type=int, default=6)
    ap.add_argument("--noncewg", type=int, default=255)
    ap.add_argument("--nopoll", action="store_true")
    ap.add_argument("--wlast", type=int, default=12)
    ap.add_argument("--xr", type=int, default=0)
    ap.add_argument("--wpat", default=None)
    ap.add_argument("--pollow", action="store_true")
    ap.add_argument("--spread", action="store_true")
    ap.add_argument("--drop", default="")
    ap.add_argument("--fb", action="store_true")
    ap.add_argument("--touch", default="")
    ap.add_argument("--ackfirst", action="store_true")
    ap.add_argument("--x0", type=int, default=0)
    ap.add_argument("--kord", default="N")
    ap.add_argument("--defer", action="store_true")
    ap.add_argument("--tlb", default="")
    ap.add_argument("--tflags", default="sc1")
    ap.add_argument("--pp", type=int, default=1)
    ap.add_argument("--ppgap", type=int, default=4)
    ap.add_argument("--presleep", type=int, default=0)
    ap.add_argument("--thf", type=int, default=25)
    ap.add_argument("--ths", type=int, default=25)
    ap.add_argument("--need", type=int, default=28)
    ap.add_argument("--horizon", type=int, default=3)
    ap.add_argument("--bias", type=int, default=0)
    ap.add_argument("--outflags", default="")
    ap.add_argument("--tight2", type=int, default=99)
    ap.add_argument("--sleep2", type=int, default=32)
    ap.add_argument("--stamps", type=int, default=0)
    ap.add_argument("--itstamps", action="store_true")
    o = ap.parse_args()
    open(o.out, "w").write(gen(o))
```

```python
import sys, argparse

KN = "standalone__paged_block_table_kv_pagedattention__decode_kernel"
HEADER = open("standalone__paged_block_table_kv_pagedattention__decode.s.ref").read().split("; Override launch")[0]
KV_BYTES = 4100 * 65536
STAMP_OFF = 512 << 20
ML_OFF = 16384
SC_OFF = 16640

class Asm:
    def __init__(self):
        self.l = []
    def __call__(self, s):
        for line in s.strip("\n").split("\n"):
            t = line.strip()
            if not t:
                continue
            self.l.append(t if t.endswith(":") else "    " + t)
    def text(self):
        return "\n".join(self.l) + "\n"

def vr(b, n):
    return f"v[{b}:{b+n-1}]"
DPPM = "row_mask:0xf bank_mask:0xf"

def gen(o):
    A = Asm()
    fl = " nt"
    STRIDE = 128
    NP = 8
    wk = [int(ch, 16) for ch in o.wk]
    wv = [int(ch, 16) for ch in o.wv]
    assert len(wk) == 8 and len(wv) == 8 and max(wk) <= 7 and max(wv) <= 7
    vK0, vV0 = 2, 4
    vM, vL = 8, 9
    vT, vU, vX2, vX3 = 10, 11, 12, 13
    vP = 14
    vS = 16
    vD1 = 20
    vMASK = 24
    vA = 28
    vAE = 40
    vB = 56
    vACC = 200
    vQ = 72
    vG4 = 88
    vLW, vLM, vL16, vRX, vRX2, vRM, vSA, vSB, vOUT, vZ = range(90, 100)
    vKB = 100
    vVB = 132
    vO = 164
    vSP = 168
    vH = 176
    vE = 192
    KORD = {"N": [(i >> 1, i & 1) for i in range(8)],
            "M": [(i & 3, i >> 2) for i in range(8)],
            "D": [(0,0),(1,1),(2,0),(3,1),(1,0),(0,1),(3,0),(2,1)],
            "E": [(0,0),(2,1),(1,0),(3,1),(2,0),(0,1),(3,0),(1,1)]}[o.kord]
    KFIRST = {hp: min(i for i in range(8) if KORD[i][1] == hp) for hp in (0, 1)}
    VORD = {"D": [(0,0),(1,1),(2,0),(3,1),(1,0),(0,1),(3,0),(2,1)],
            "I": [(0,0),(3,1),(2,0),(1,1),(1,0),(2,1),(3,0),(0,1)],
            "J": [(0,0),(2,0),(1,1),(3,1),(1,0),(3,0),(0,1),(2,1)]}[o.vord]
    PARTNER = {i: [k for k in range(4) if VORD[k][0] == VORD[i][0]][0] for i in range(4, 8)}
    nst = o.stamps
    sST = 60
    def stamp(i):
        if nst and i < nst:
            A(f"s_memrealtime s[{sST+2*i}:{sST+2*i+1}]")
    def itstamp():
        if o.itstamps:
            A("v_writelane_b32 v89, s98, m0\ns_add_u32 m0, m0, 1\ns_memrealtime s[98:99]")

    def kload(i, sreg):
        j, hp = KORD[i]
        A(f"buffer_load_dwordx4 {vr(vKB+4*i,4)}, v{vK0+hp}, s[20:23], {sreg} offen offset:{128*j}{fl}")
    def vload(i, sreg):
        cb, t = VORD[i]
        A(f"buffer_load_dwordx4 {vr(vVB+4*i,4)}, v{vV0+t}, s[24:27], {sreg} offen offset:{128*cb}{fl}")
    def qk(c):
        j, hp = KORD[c]
        d = vD1 if hp else vS
        cc = "0" if c == KFIRST[hp] else vr(d, 4)
        A(f"v_mfma_f32_16x16x32_bf16 {vr(d,4)}, {vr(vKB+4*c,4)}, {vr(vQ+4*j,4)}, {cc}")
    def pvstep(i, held):
        cb, t = VORD[i]
        k = PARTNER[i]
        me, other = vVB + 4 * i, (vH if held else vVB) + 4 * k
        l0, l1 = (me, other) if t == 0 else (other, me)
        bb = vB + 8 * (i & 1)
        ps, ms = [], []
        for w in range(4):
            ps.append(f"v_perm_b32 v{bb+2*w}, v{l1+w}, v{l0+w}, s37")
            ps.append(f"v_perm_b32 v{bb+2*w+1}, v{l1+w}, v{l0+w}, s38")
            acc = vACC + (cb * 2 + (w >> 1)) * 4
            ms.append(f"v_mfma_f32_16x16x16_bf16 {vr(acc,4)}, {vr(vA+2*(w&1),2)}, {vr(bb+2*w,2)}, {vr(acc,4)}")
        for x in ps[:4] + [ms[0]] + ps[4:6] + [ms[1]] + ps[6:8] + [ms[2], "s_nop 0", ms[3]]:
            A(x)

    def finalize(mask):
        for r in range(4):
            A(f"v_permlane32_swap_b32 v{vS+r}, v{vD1+r}")
        for r in range(4):
            A(f"v_mov_b32_dpp v{vD1+r}, v{vD1+r} quad_perm:[1,1,3,3] {DPPM}")
        for r in range(4):
            A(f"v_add_f32_dpp v{vE+r}, v{vS+r}, v{vD1+r} quad_perm:[0,0,2,2] {DPPM}")
        if mask:
            A(f"v_mov_b32 v{vU}, 0xff800000")
            for r in range(4):
                A(f"v_cmp_gt_i32 vcc, s35, v{vG4}")
                A(f"s_sub_u32 s35, s35, 1")
                A(f"s_nop 0")
                A(f"v_cndmask_b32 v{vE+r}, v{vU}, v{vE+r}, vcc")
        A(f"""
        s_mov_b64 exec, s[56:57]
        ds_write_b128 v{vSA}, {vr(vE,4)}
        s_mov_b64 exec, -1
        v_max3_f32 v{vM}, v{vM}, v{vE}, v{vE+1}
        v_add_u32 v{vSA}, 0x80, v{vSA}
        v_max3_f32 v{vM}, v{vM}, v{vE+2}, v{vE+3}
        """)

    A("s_cmp_ge_u32 s2, 256")
    A("s_cbranch_scc1 L_end")
    stamp(0)
    A(f"""
    s_load_dwordx8 s[4:11], s[0:1], 0
    s_load_dwordx8 s[12:19], s[0:1], 32
    v_lshrrev_b32 v10, 6, v0
    v_and_b32 v1, 63, v0
    v_readfirstlane_b32 s29, v10
    """)
    if o.map == 1:
        A("s_lshr_b32 s30, s2, 5\ns_and_b32 s31, s2, 31")
    else:
        A("s_bfe_u32 s30, s2, 0x30003\ns_lshr_b32 s31, s2, 6\ns_lshl_b32 s31, s31, 3\ns_and_b32 s40, s2, 7\ns_or_b32 s31, s31, s40")
    A(f"""
    v_and_b32 v10, 15, v1
    v_lshrrev_b32 v11, 4, v1
    s_lshl_b32 s32, s29, 5
    s_add_u32 s32, s32, s31
    s_lshl_b32 s34, s32, 2
    s_lshl_b32 s41, s30, 9
    v_bfe_u32 v15, v1, 1, 1
    v_lshlrev_b32 v12, 9, v15
    v_lshl_add_u32 v12, v11, 4, v12
    v_and_b32 v14, 1, v1
    v_lshl_add_u32 v12, v14, 6, v12
    s_lshl_b32 s42, s30, 10
    v_add_u32 v12, s42, v12
    v_and_b32 v{vK0}, 7, v1
    v_lshlrev_b32 v{vK0}, 12, v{vK0}
    v_bfe_u32 v{vK0+1}, v1, 3, 1
    v_lshl_add_u32 v{vK0}, v{vK0+1}, 6, v{vK0}
    v_lshl_add_u32 v{vK0}, v11, 4, v{vK0}
    v_add_u32 v{vK0}, s41, v{vK0}
    v_add_u32 v{vK0+1}, 0x8000, v{vK0}
    s_mov_b32 s22, {KV_BYTES}
    s_mov_b32 s23, 0x20000
    s_mov_b32 s36, 0x3db8aa3b
    s_waitcnt lgkmcnt(0)
    s_load_dword s43, s[10:11], s34
    s_load_dword s28, s[12:13], 0
    s_load_dword s39, s[10:11], s34 offset:{STRIDE*4}
    """)
    stamp(1)
    for j in range(4):
        A(f"global_load_dwordx4 {vr(vQ+4*j,4)}, v12, s[4:5] offset:{128*j}")
    A(f"""
    s_mov_b32 s20, s6
    s_and_b32 s21, s7, 0xffff
    s_mov_b32 s24, s8
    s_and_b32 s25, s9, 0xffff
    s_mov_b32 s26, {KV_BYTES}
    s_mov_b32 s27, 0x20000
    s_add_u32 s34, s34, {2*STRIDE*4}
    s_waitcnt lgkmcnt(0)
    s_lshl_b32 s43, s43, 16
    s_cmp_lt_i32 s28, 1
    s_cselect_b32 s36, 0, s36
    s_cselect_b32 s28, 0x10000, s28
    s_min_i32 s28, s28, 0x10000
    s_sub_u32 s33, s28, 1
    s_lshr_b32 s33, s33, 11
    s_cbranch_scc0 L_skip0
    """)
    stamp(2)
    NB = 1 + wk[0]
    for i in range(NB):
        kload(i, "s43")
    A(f"""
    L_skip0:
    s_mov_b32 s58, s43
    s_mov_b32 s59, s39
    s_mov_b32 s78, s33
    s_mov_b32 s79, s34
    s_lshl_b32 s40, s33, 11
    s_sub_u32 s40, s28, s40
    s_mul_i32 s45, s40, s32
    s_add_u32 s35, s45, s40
    s_lshr_b32 s45, s45, 7
    s_lshr_b32 s35, s35, 7
    s_sub_u32 s35, s35, s45
    s_lshr_b32 s40, s45, 4
    s_lshl_b32 s54, s33, 7
    s_add_u32 s40, s40, s54
    s_lshl_b32 s40, s40, 2
    s_and_b32 s40, s40, 0x3ffc
    s_add_u32 s44, s40, 4
    s_and_b32 s44, s44, 0x3ffc
    s_load_dword s54, s[10:11], s40
    s_load_dword s55, s[10:11], s44
    s_and_b32 s45, s45, 15
    s_memrealtime s[50:51]
    v_lshrrev_b32 v12, 3, v1
    v_and_b32 v13, 7, v1
    v_lshlrev_b32 v{vV0}, 12, v12
    v_lshl_add_u32 v{vV0}, v13, 4, v{vV0}
    v_add_u32 v{vV0}, s41, v{vV0}
    v_add_u32 v{vV0+1}, 0x8000, v{vV0}
    v_lshlrev_b32 v{vG4}, 2, v11
    v_and_b32 v6, 5, v1
    """)
    for e, val in enumerate((0, 1, 4, 5)):
        A(f"v_cmp_eq_u32 vcc, {val}, v6")
        A(f"v_mov_b32 v{vACC+2*e}, 0")
        A(f"v_mov_b32 v{vACC+2*e+1}, 0")
        A(f"v_cndmask_b32 v{vMASK+e}, 0, -1, vcc")
    for e in range(8, 32):
        A(f"v_mov_b32 v{vACC+e}, 0")
    A(f"""
    s_mov_b32 s37, 0x05040100
    s_mov_b32 s38, 0x07060302
    v_mov_b32 v{vM}, 0xff7fffff
    v_mov_b32 v{vL}, 0
    v_mov_b32 v{vZ}, 0
    s_lshl_b32 s40, s29, 12
    s_add_u32 s40, s40, {SC_OFF}
    v_lshl_add_u32 v{vSA}, v11, 5, s40
    v_lshl_add_u32 v{vSA}, v15, 4, v{vSA}
    v_lshrrev_b32 v6, 2, v12
    v_lshl_add_u32 v{vSB}, v6, 5, s40
    v_lshl_add_u32 v{vSB}, v15, 4, v{vSB}
    v_and_b32 v6, 3, v12
    v_lshl_add_u32 v{vSB}, v6, 2, v{vSB}
    v_lshlrev_b32 v{vL16}, 4, v1
    s_lshl_b32 s40, s29, 12
    v_lshrrev_b32 v6, 5, v1
    v_lshl_add_u32 v{vLW}, v6, 11, s40
    v_lshl_add_u32 v{vLW}, v13, 6, v{vLW}
    v_and_b32 v6, 1, v11
    v_lshl_add_u32 v{vLW}, v6, 4, v{vLW}
    s_lshl_b32 s40, s29, 4
    v_lshl_add_u32 v{vLM}, v15, 3, s40
    s_lshl_b32 s40, s30, 17
    s_add_u32 s46, s18, s40
    s_addc_u32 s47, s19, 0
    s_lshl_b32 s40, s31, 7
    s_lshl_b32 s41, s29, 15
    s_add_u32 s40, s40, s41
    v_lshl_add_u32 v{vRX}, v12, 12, s40
    v_lshl_add_u32 v{vRX}, v13, 4, v{vRX}
    s_lshl_b32 s40, s29, 9
    v_lshl_add_u32 v{vRX2}, v1, 3, s40
    v_lshlrev_b32 v{vRM}, 3, v14
    s_and_b32 s40, s31, 7
    s_lshl_b32 s40, s40, 2
    s_add_u32 s40, s40, s29
    s_lshl_b32 s41, s40, 12
    s_add_u32 s48, s46, s41
    s_addc_u32 s49, s47, 0
    s_lshl_b32 s41, s40, 4
    s_add_u32 s42, s42, s41
    v_lshrrev_b32 v13, 1, v13
    v_lshl_add_u32 v{vOUT}, v13, 2, s42
    v_lshl_add_u32 v{vOUT}, v14, 9, v{vOUT}
    s_waitcnt lgkmcnt(0)
    s_bitset1_b32 s51, 31
    s_bitset0_b32 s50, 31
    v_mov_b32 v{vO}, s50
    v_mov_b32 v{vO+1}, s51
    v_mov_b32 v{vO+2}, 0
    v_mov_b32 v{vO+3}, 0
    s_cmp_lg_u32 s2, 255
    s_cbranch_scc1 L_nononce
    s_cmp_lg_u32 s29, 3
    s_cbranch_scc1 L_nononce
    s_mov_b64 exec, 1
    global_atomic_cmpswap_x2 v{vZ}, {vr(vO,4)}, s[16:17]
    s_mov_b64 exec, -1
    L_nononce:
    s_lshl_b32 s40, s45, 12
    s_lshl_b32 s54, s54, 16
    s_add_u32 s54, s54, s40
    s_sub_u32 s55, s55, 1
    s_lshl_b32 s55, s55, 16
    s_add_u32 s55, s55, s40
    s_sub_u32 s45, 16, s45
    v_mov_b32 v12, s54
    v_mov_b32 v13, s55
    v_bfrev_b32 v15, 1
    """)
    for i in range(4):
        src = vK0 + i
        A(f"""
        v_bfe_u32 v14, v{src}, 12, 4
        v_cmp_le_u32 vcc, s45, v14
        v_cmp_gt_u32 s[56:57], s35, v14
        s_nop 0
        v_cndmask_b32 v{vSP+i}, v12, v13, vcc
        v_add_u32 v{vSP+i}, v{vSP+i}, v{src}
        v_cndmask_b32 v{vSP+i}, v15, v{vSP+i}, s[56:57]
        """)
    A(f"""
    s_mov_b32 s56, 0x00050005
    s_mov_b32 s57, 0x00050005
    s_cmp_lg_u32 s33, 0
    s_cbranch_scc1 L_k0
    v_mov_b32 v{vK0}, v{vSP}
    v_mov_b32 v{vK0+1}, v{vSP+1}
    v_mov_b32 v{vV0}, v{vSP+2}
    v_mov_b32 v{vV0+1}, v{vSP+3}
    s_mov_b32 s43, 0
    s_mov_b32 s58, 0
    """)
    for i in range(NB):
        kload(i, "s43")
    A(f"s_waitcnt vmcnt({NB-1})")
    qk(0)
    A("s_branch L_klast")
    A("L_k0:")
    if o.itstamps:
        A("s_mov_b32 m0, 0\nv_mov_b32 v89, 0\ns_memrealtime s[98:99]")
    A(f"s_waitcnt vmcnt({NB-1})")
    qk(0)

    A("L_kloop:")
    nxt = NB
    for c in list(range(1, 8)) + [8]:
        hi = c + wk[c & 7]
        if nxt <= 8 <= hi:
            A(f"""
            s_waitcnt lgkmcnt(0)
            s_lshl_b32 s44, s39, 16
            s_and_b32 s40, s34, 0x3ffc
            s_load_dword s39, s[10:11], s40
            s_add_u32 s34, s34, {STRIDE*4}
            """)
            itstamp()
        A(f"s_waitcnt vmcnt({nxt - c - 1})")
        nis = 0
        while nxt <= hi:
            if nxt == 8:
                A(f"""
                s_cmp_lg_u32 s33, 1
                s_cbranch_scc1 L_knotpen
                v_mov_b32 v{vK0}, v{vSP}
                v_mov_b32 v{vK0+1}, v{vSP+1}
                s_mov_b32 s44, 0
                L_knotpen:
                """)
            assert nxt - 8 < c, "K register reuse"
            kload(nxt & 7, "s43" if nxt < 8 else "s44")
            nxt += 1
            nis += 1
        if c == 8:
            A(f"s_mov_b32 s43, s44\ns_sub_u32 s33, s33, 1\ns_cmp_lg_u32 s33, 0")
            A(f"s_nop {max(0, 7 - 4 - nis)}")
            finalize(False)
        qk(c & 7)
    assert nxt == 8 + NB
    A("s_cbranch_scc1 L_kloop")
    A("L_klast:")
    stamp(7)
    NV = wv[7]
    nxt = NB
    for c in range(1, 8):
        hi = min(c + wk[c], 7 + NV)
        A(f"s_waitcnt vmcnt({nxt - c - 1})")
        while nxt <= hi:
            if nxt < 8:
                kload(nxt, "s43")
            else:
                vload(nxt - 8, "s58")
            nxt += 1
        qk(c)
    while nxt < 8 + NV:
        vload(nxt - 8, "s58")
        nxt += 1
    A(f"""
    s_mov_b32 s43, s58
    s_mov_b32 s33, s78
    s_mov_b32 s34, s79
    s_waitcnt lgkmcnt(0)
    s_mov_b32 s39, s59
    s_nop 2
    """)
    finalize(True)
    A(f"""
    ds_read2_b32 {vr(vS,2)}, v{vSB} offset0:0 offset1:16
    v_mov_b32 v{vU}, v{vM}
    v_add_u32 v{vSB}, 0x80, v{vSB}
    s_nop 0
    v_permlane32_swap_b32 v{vM}, v{vU}
    v_max_f32 v{vM}, v{vM}, v{vU}
    v_mov_b32 v{vU}, v{vM}
    s_nop 1
    v_permlane16_swap_b32 v{vM}, v{vU}
    v_max_f32 v{vM}, v{vM}, v{vU}
    v_mul_f32 v{vM}, s36, v{vM}
    v_max_f32 v{vM}, 0xf149f2ca, v{vM}
    s_cmp_eq_u32 s33, 0
    s_cbranch_scc1 L_vlast
    """)

    def vtop():
        for r in range(2):
            A(f"v_fma_f32 v{vE+r}, v{vS+r}, s36, -v{vM}")
    def pc(stage):
        if stage == 0:
            A(f"v_exp_f32 v{vE}, v{vE}\nv_exp_f32 v{vE+1}, v{vE+1}")
        if stage == 1:
            A(f"v_cvt_pk_bf16_f32 v{vP}, v{vE}, v{vE+1}\nv_add_f32 v{vL}, v{vL}, v{vE}\nv_add_f32 v{vL}, v{vL}, v{vE+1}")
        if stage == 2:
            for e in range(4):
                A(f"v_and_b32 v{vA+e}, v{vMASK+e}, v{vP}")
    def vconsume(c):
        if c < 4:
            pc(c)
            for w in range(4):
                A(f"v_mov_b32 v{vH+4*c+w}, v{vVB+4*c+w}")
        else:
            pvstep(c, True)

    A("L_vloop:")
    A(f"""
    s_waitcnt lgkmcnt(0)
    s_lshl_b32 s44, s39, 16
    s_and_b32 s40, s34, 0x3ffc
    s_load_dword s39, s[10:11], s40
    s_add_u32 s34, s34, {STRIDE*4}
    """)
    itstamp()
    vtop()
    A(f"ds_read2_b32 {vr(vS,2)}, v{vSB} offset0:0 offset1:16")
    A(f"v_add_u32 v{vSB}, 0x80, v{vSB}")
    nxt = NV
    for c in range(8):
        hi = c + wv[c]
        A(f"s_waitcnt vmcnt({nxt - c - 1})")
        while nxt <= hi:
            if nxt == 8:
                A(f"""
                s_cmp_lg_u32 s33, 1
                s_cbranch_scc1 L_vnotpen
                v_mov_b32 v{vV0}, v{vSP+2}
                v_mov_b32 v{vV0+1}, v{vSP+3}
                s_mov_b32 s44, 0
                L_vnotpen:
                """)
            assert nxt - 8 < c, "V register reuse"
            vload(nxt & 7, "s43" if nxt < 8 else "s44")
            nxt += 1
        vconsume(c)
    assert nxt == 8 + NV
    A(f"""
    s_mov_b32 s43, s44
    s_sub_u32 s33, s33, 1
    s_cmp_lg_u32 s33, 0
    s_cbranch_scc1 L_vloop
    """)
    A("L_vlast:")
    for i in range(NV, 8):
        vload(i, "s43")
    A("s_waitcnt lgkmcnt(0)")
    A("s_load_dwordx2 s[52:53], s[16:17], 0")
    vtop()
    pc(0)
    A("s_nop 0")
    pc(1)
    pc(2)
    A(f"""
    v_mov_b32 v{vU}, v{vL}
    s_mov_b32 s56, 0x00ff00ff
    s_mov_b32 s57, 0xff00ff00
    v_permlane32_swap_b32 v{vL}, v{vU}
    v_add_f32 v{vL}, v{vL}, v{vU}
    v_mov_b32 v{vU}, v{vL}
    s_nop 1
    v_permlane16_swap_b32 v{vL}, v{vU}
    v_add_f32 v{vL}, v{vL}, v{vU}
    s_nop 1
    v_add_f32_dpp v{vL}, v{vL}, v{vL} row_ror:8 {DPPM}
    ds_write_b64 v{vLM}, v[{vM}:{vL}] offset:{ML_OFF}
    """)
    def tilewrite(cb):
        A("s_mov_b64 exec, s[56:57]")
        for wh in range(2):
            A(f"ds_write_b128 v{vLW}, {vr(vACC+(cb*2+wh)*4,4)} offset:{cb*512+wh*32}")
        A("s_mov_b64 exec, -1")
    for i in range(4, 8):
        A(f"s_waitcnt vmcnt({7 - i})")
        pvstep(i, False)
        if i > 4:
            tilewrite(VORD[i-1][0])
    if o.itstamps:
        A(f"""
        s_waitcnt lgkmcnt(0)
        v_writelane_b32 v89, s98, m0
        s_lshl_b32 s40, s2, 2
        s_add_u32 s40, s40, s29
        s_lshl_b32 s40, s40, 8
        s_add_u32 s40, s40, {STAMP_OFF + (1<<20)}
        v_lshlrev_b32 v{vT}, 2, v1
        v_add_u32 v{vT}, s40, v{vT}
        global_store_dword v{vT}, v89, s[18:19]
        """)
    stamp(3)
    A(f"""
    s_mov_b64 exec, s[56:57]
    s_nop 0
    ds_write_b128 v{vLW}, {vr(vACC+(VORD[7][0]*2)*4,4)} offset:{VORD[7][0]*512}
    s_nop 0
    ds_write_b128 v{vLW}, {vr(vACC+(VORD[7][0]*2+1)*4,4)} offset:{VORD[7][0]*512+32}
    s_mov_b64 exec, -1
    s_waitcnt lgkmcnt(0)
    s_cmp_lg_u32 s53, 0
    s_cbranch_scc1 L_havenonce
    s_mov_b64 exec, 1
    global_atomic_cmpswap_x2 v[{vT}:{vU}], v{vZ}, {vr(vO,4)}, s[16:17] sc0
    s_mov_b64 exec, -1
    s_waitcnt vmcnt(0)
    v_readfirstlane_b32 s52, v{vT}
    v_readfirstlane_b32 s53, v{vU}
    s_cmp_lg_u32 s53, 0
    s_cselect_b32 s52, s52, s50
    s_cselect_b32 s53, s53, s51
    L_havenonce:
    s_cmp_lt_u32 s31, {32-NP}
    s_barrier
    """)
    stamp(4)
    ML = vAE
    X = vKB
    M, Ls, T2 = vB, vB + 1, vB + 2
    O = vO
    for s in range(4):
        A(f"ds_read_b64 {vr(ML+2*s,2)}, v{vRM} offset:{ML_OFF+16*s}")
    for s in range(4):
        A(f"ds_read2st64_b64 {vr(X+4*s,4)}, v{vRX2} offset0:{8*s} offset1:{8*s+4}")
    A(f"""
    s_waitcnt lgkmcnt(4)
    v_max3_f32 v{M}, v{ML}, v{ML+2}, v{ML+4}
    v_max_f32 v{M}, v{M}, v{ML+6}
    """)
    for s in range(4):
        A(f"v_sub_f32 v{ML+2*s}, v{ML+2*s}, v{M}")
    for s in range(4):
        A(f"v_exp_f32 v{ML+2*s}, v{ML+2*s}")
    A(f"v_mul_f32 v{Ls}, v{ML}, v{ML+1}")
    for s in range(1, 4):
        A(f"v_fmac_f32 v{Ls}, v{ML+2*s}, v{ML+2*s+1}")
    A(f"""
    v_max_f32 v{Ls}, 0x0da24260, v{Ls}
    v_log_f32 v{T2}, v{Ls}
    v_rcp_f32 v{Ls}, v{Ls}
    s_waitcnt lgkmcnt(0)
    v_mul_f32 v{O}, v{ML}, v{X}
    v_mul_f32 v{O+2}, v{ML}, v{X+1}
    v_add_f32 v{T2}, v{T2}, v{M}
    """)
    for s in range(1, 8):
        A(f"v_fmac_f32 v{O}, v{ML+2*(s>>1)}, v{X+2*s}")
        A(f"v_fmac_f32 v{O+2}, v{ML+2*(s>>1)}, v{X+2*s+1}")
    A(f"""
    v_xor_b32 v{O+1}, s52, v{T2}
    v_xor_b32 v{O+3}, s53, v{T2}
    v_mul_f32 v{O}, v{O}, v{Ls}
    v_mul_f32 v{O+2}, v{O+2}, v{Ls}
    global_store_dwordx4 v{vRX}, {vr(O,4)}, s[46:47] sc1
    """)
    stamp(5)
    PX = vVB
    PL = vVB + 16
    msk = lambda k: f"s[{90+2*k}:{91+2*k}]"
    A("s_cbranch_scc1 L_fin")
    A("s_xor_b32 s53, s53, s52")
    for k in range(4):
        A(f"s_mov_b64 {msk(k)}, -1")
    A("s_waitcnt vmcnt(0)")
    A("L_poll:")
    for k in range(4):
        A(f"s_mov_b64 exec, {msk(k)}")
        A(f"global_load_dwordx4 {vr(PX+4*k,4)}, v{vL16}, s[48:49] offset:{1024*k} sc1")
    A("s_mov_b64 exec, -1")
    A("s_waitcnt vmcnt(0)")
    for k in range(4):
        A(f"v_xor_b32 v{PL+4+k}, v{PX+4*k+1}, v{PX+4*k+3}")
    for k in range(4):
        A(f"v_xor_b32_dpp v{PL+8+k}, v{PX+4*k+1}, v{PX+4*k+1} quad_perm:[2,3,0,1] {DPPM}")
    for k in range(4):
        A(f"v_xor_b32 v{PL+4+k}, s53, v{PL+4+k}")
    for k in range(4):
        A(f"v_or_b32 v{PL+4+k}, v{PL+4+k}, v{PL+8+k}")
    for k in range(4):
        A(f"v_or_b32_dpp v{PL+4+k}, v{PL+4+k}, v{PL+4+k} quad_perm:[1,0,3,2] {DPPM}")
    for k in range(4):
        A(f"v_or_b32_dpp v{PL+4+k}, v{PL+4+k}, v{PL+4+k} quad_perm:[2,3,0,1] {DPPM}")
    for k in range(4):
        A(f"v_or_b32_dpp v{PL+4+k}, v{PL+4+k}, v{PL+4+k} row_half_mirror {DPPM}")
    for k in range(4):
        A(f"v_cmp_ne_u32 {msk(k)}, 0, v{PL+4+k}")
    for k in range(4):
        A(f"v_xor_b32 v{PL+k}, s52, v{PX+4*k+1}")
    A(f"""
    s_or_b64 s[40:41], {msk(0)}, {msk(1)}
    s_or_b64 s[42:43], {msk(2)}, {msk(3)}
    s_or_b64 s[44:45], s[40:41], s[42:43]
    s_cbranch_scc0 L_go
    s_bcnt1_i32_b64 s40, s[40:41]
    s_bcnt1_i32_b64 s41, s[42:43]
    s_add_u32 s40, s40, s41
    s_cmp_le_u32 s40, {o.tight*8}
    s_cbranch_scc1 L_poll
    s_sleep {o.sleep}
    s_branch L_poll
    L_go:
    """)
    stamp(6)
    A(f"""
    v_max3_f32 v{M}, v{PL}, v{PL+1}, v{PL+2}
    v_max_f32 v{M}, v{M}, v{PL+3}
    v_mov_b32 v{T2}, v{M}
    s_nop 1
    v_permlane32_swap_b32 v{M}, v{T2}
    v_max_f32 v{M}, v{M}, v{T2}
    v_mov_b32 v{T2}, v{M}
    s_nop 1
    v_permlane16_swap_b32 v{M}, v{T2}
    v_max_f32 v{M}, v{M}, v{T2}
    s_nop 1
    v_max_f32_dpp v{M}, v{M}, v{M} row_ror:8 {DPPM}
    """)
    for k in range(4):
        A(f"v_sub_f32 v{PL+k}, v{PL+k}, v{M}")
    for k in range(4):
        A(f"v_exp_f32 v{PL+k}, v{PL+k}")
    A(f"""
    v_mul_f32 v{PX}, v{PL}, v{PX}
    v_mul_f32 v{PX+2}, v{PL}, v{PX+2}
    v_add_f32 v{Ls}, v{PL}, v{PL+1}
    v_add_f32 v{T2}, v{PL+2}, v{PL+3}
    v_add_f32 v{Ls}, v{Ls}, v{T2}
    """)
    for k in range(1, 4):
        A(f"v_fmac_f32 v{PX}, v{PL+k}, v{PX+4*k}")
        A(f"v_fmac_f32 v{PX+2}, v{PL+k}, v{PX+4*k+2}")
    A(f"""
    v_mov_b32 v{T2}, v{Ls}
    v_mov_b32 v{PX+1}, v{PX}
    v_mov_b32 v{PX+3}, v{PX+2}
    v_permlane32_swap_b32 v{Ls}, v{T2}
    v_permlane32_swap_b32 v{PX}, v{PX+1}
    v_permlane32_swap_b32 v{PX+2}, v{PX+3}
    v_add_f32 v{Ls}, v{Ls}, v{T2}
    v_add_f32 v{PX}, v{PX}, v{PX+1}
    v_add_f32 v{PX+2}, v{PX+2}, v{PX+3}
    v_mov_b32 v{T2}, v{Ls}
    v_mov_b32 v{PX+1}, v{PX}
    v_mov_b32 v{PX+3}, v{PX+2}
    v_permlane16_swap_b32 v{Ls}, v{T2}
    v_permlane16_swap_b32 v{PX}, v{PX+1}
    v_permlane16_swap_b32 v{PX+2}, v{PX+3}
    v_add_f32 v{Ls}, v{Ls}, v{T2}
    v_add_f32 v{PX}, v{PX}, v{PX+1}
    v_add_f32 v{PX+2}, v{PX+2}, v{PX+3}
    v_add_f32_dpp v{Ls}, v{Ls}, v{Ls} row_ror:8 {DPPM}
    v_add_f32_dpp v{PX}, v{PX}, v{PX} row_ror:8 {DPPM}
    v_add_f32_dpp v{PX+2}, v{PX+2}, v{PX+2} row_ror:8 {DPPM}
    v_rcp_f32 v{Ls}, v{Ls}
    s_mov_b64 exec, 0xff
    v_mul_f32 v{PX}, v{PX}, v{Ls}
    v_mul_f32 v{PX+2}, v{PX+2}, v{Ls}
    v_cvt_pk_bf16_f32 v{PX}, v{PX}, v{PX+2}
    global_store_dword v{vOUT}, v{PX}, s[14:15]
    """)
    A("L_fin:")
    if nst:
        A("s_mov_b64 exec, -1")
        A("s_waitcnt vmcnt(0)")
        stamp(nst - 1)
        A(f"""
        s_lshl_b32 s40, s2, 2
        s_add_u32 s40, s40, s29
        s_mul_i32 s40, s40, {nst*8}
        s_add_u32 s40, s40, {STAMP_OFF}
        v_mov_b32 v1, s40
        s_waitcnt lgkmcnt(0)
        s_mov_b64 exec, 1
        """)
        for i in range(nst):
            A(f"v_mov_b32 v2, s{sST+2*i}")
            A(f"v_mov_b32 v3, s{sST+2*i+1}")
            A(f"global_store_dwordx2 v1, v[2:3], s[18:19] offset:{8*i}")
            A(f"s_nop 1")
    A("L_end:")
    A("s_endpgm")
    lds = SC_OFF + 4 * 4096
    out = HEADER
    out += f"; @launch grid=(256,1,1) block=(256,1,1) lds={lds}\n"
    out += f""".amdgcn_target "amdgcn-amd-amdhsa--gfx950"
.text
.globl {KN}
.p2align 8
.type {KN},@function
{KN}:
"""
    out += A.text()
    acc = min(256, (o.vgpr + 3) // 4 * 4)
    out += f""".section .rodata,"a"
.p2align 6
.amdhsa_kernel {KN}
  .amdhsa_next_free_vgpr {o.vgpr}
  .amdhsa_next_free_sgpr 102
  .amdhsa_accum_offset {acc}
  .amdhsa_group_segment_fixed_size 0
  .amdhsa_kernarg_size 64
  .amdhsa_user_sgpr_count 2
  .amdhsa_user_sgpr_kernarg_segment_ptr 1
  .amdhsa_system_sgpr_workgroup_id_x 1
.end_amdhsa_kernel
"""
    return out

if __name__ == "__main__":
    ap = argparse.ArgumentParser()
    ap.add_argument("out")
    ap.add_argument("--map", type=int, default=1)
    ap.add_argument("--wk", default="65656565")
    ap.add_argument("--wv", default="65656565")
    ap.add_argument("--kord", default="D")
    ap.add_argument("--vord", default="D")
    ap.add_argument("--vgpr", type=int, default=512)
    ap.add_argument("--sleep", type=int, default=6)
    ap.add_argument("--tight", type=int, default=4)
    ap.add_argument("--stamps", type=int, default=0)
    ap.add_argument("--itstamps", action="store_true")
    o = ap.parse_args()
    open(o.out, "w").write(gen(o))
```

```python
import sys, argparse

KN = "standalone__paged_block_table_kv_pagedattention__decode_kernel"
HEADER = open("standalone__paged_block_table_kv_pagedattention__decode.s.ref").read().split("; Override launch")[0]
KV_BYTES = 4100 * 65536
STAMP_OFF = 512 << 20
ML_OFF = 16384
SC_OFF = 16640

class Asm:
    def __init__(self):
        self.l = []
    def __call__(self, s):
        for line in s.strip("\n").split("\n"):
            t = line.strip()
            if not t:
                continue
            self.l.append(t if t.endswith(":") else "    " + t)
    def text(self):
        return "\n".join(self.l) + "\n"

def vr(b, n):
    return f"v[{b}:{b+n-1}]"
DPPM = "row_mask:0xf bank_mask:0xf"

def gen(o):
    A = Asm()
    fl = " nt"
    STRIDE = 128
    NP = 8
    wk = [int(ch, 16) for ch in o.wk]
    wv = [int(ch, 16) for ch in o.wv]
    assert len(wk) == 8 and len(wv) == 8 and max(wk) <= 7 and max(wv) <= 7
    vK0, vV0 = 2, 4
    vM, vL = 8, 9
    vT, vU, vX2, vX3 = 10, 11, 12, 13
    vP = 14
    vS = 16
    vD1 = 20
    vMASK = 24
    vA = 28
    vAE = 40
    vB = 56
    vACC = 200
    vQ = 72
    vG4 = 88
    vLW, vLM, vL16, vRX, vRX2, vRM, vSA, vSB, vOUT, vZ = range(90, 100)
    vKB = 100
    vVB = 132
    vO = 164
    vSP = 168
    vH = 176
    vBT = 196
    vE = 192
    KORD = {"N": [(i >> 1, i & 1) for i in range(8)],
            "M": [(i & 3, i >> 2) for i in range(8)],
            "D": [(0,0),(1,1),(2,0),(3,1),(1,0),(0,1),(3,0),(2,1)],
            "E": [(0,0),(2,1),(1,0),(3,1),(2,0),(0,1),(3,0),(1,1)]}[o.kord]
    KFIRST = {hp: min(i for i in range(8) if KORD[i][1] == hp) for hp in (0, 1)}
    VORD = {"D": [(0,0),(1,1),(2,0),(3,1),(1,0),(0,1),(3,0),(2,1)],
            "I": [(0,0),(3,1),(2,0),(1,1),(1,0),(2,1),(3,0),(0,1)],
            "J": [(0,0),(2,0),(1,1),(3,1),(1,0),(3,0),(0,1),(2,1)]}[o.vord]
    PARTNER = {i: [k for k in range(4) if VORD[k][0] == VORD[i][0]][0] for i in range(4, 8)}
    nst = o.stamps
    sST = 60
    def stamp(i):
        if nst and i < nst:
            A(f"s_memrealtime s[{sST+2*i}:{sST+2*i+1}]")
    def itstamp():
        if o.itstamps:
            A("v_writelane_b32 v89, s98, m0\ns_add_u32 m0, m0, 1\ns_memrealtime s[98:99]")

    def kload(i, sreg):
        j, hp = KORD[i]
        A(f"buffer_load_dwordx4 {vr(vKB+4*i,4)}, v{vK0+hp}, s[20:23], {sreg} offen offset:{128*j}{fl}")
    def vload(i, sreg):
        cb, t = VORD[i]
        A(f"buffer_load_dwordx4 {vr(vVB+4*i,4)}, v{vV0+t}, s[24:27], {sreg} offen offset:{128*cb}{fl}")
    def qk(c):
        j, hp = KORD[c]
        d = vD1 if hp else vS
        cc = "0" if c == KFIRST[hp] else vr(d, 4)
        A(f"v_mfma_f32_16x16x32_bf16 {vr(d,4)}, {vr(vKB+4*c,4)}, {vr(vQ+4*j,4)}, {cc}")
    def pvstep(i, held):
        cb, t = VORD[i]
        k = PARTNER[i]
        me, other = vVB + 4 * i, (vH if held else vVB) + 4 * k
        l0, l1 = (me, other) if t == 0 else (other, me)
        bb = vB + 8 * (i & 1)
        ps, ms = [], []
        for w in range(4):
            ps.append(f"v_perm_b32 v{bb+2*w}, v{l1+w}, v{l0+w}, s37")
            ps.append(f"v_perm_b32 v{bb+2*w+1}, v{l1+w}, v{l0+w}, s38")
            acc = vACC + (cb * 2 + (w >> 1)) * 4
            ms.append(f"v_mfma_f32_16x16x16_bf16 {vr(acc,4)}, {vr(vA+2*(w&1),2)}, {vr(bb+2*w,2)}, {vr(acc,4)}")
        for x in ps[:4] + [ms[0]] + ps[4:6] + [ms[1]] + ps[6:8] + [ms[2], "s_nop 0", ms[3]]:
            A(x)

    def finalize(mask):
        for r in range(4):
            A(f"v_permlane32_swap_b32 v{vS+r}, v{vD1+r}")
        for r in range(4):
            A(f"v_mov_b32_dpp v{vD1+r}, v{vD1+r} quad_perm:[1,1,3,3] {DPPM}")
        for r in range(4):
            A(f"v_add_f32_dpp v{vE+r}, v{vS+r}, v{vD1+r} quad_perm:[0,0,2,2] {DPPM}")
        if mask:
            A(f"v_mov_b32 v{vU}, 0xff800000")
            for r in range(4):
                A(f"v_cmp_gt_i32 vcc, s35, v{vG4}")
                A(f"s_sub_u32 s35, s35, 1")
                A(f"s_nop 0")
                A(f"v_cndmask_b32 v{vE+r}, v{vU}, v{vE+r}, vcc")
        A(f"""
        s_mov_b64 exec, s[56:57]
        ds_write_b128 v{vSA}, {vr(vE,4)}
        s_mov_b64 exec, -1
        v_max3_f32 v{vM}, v{vM}, v{vE}, v{vE+1}
        v_add_u32 v{vSA}, 0x80, v{vSA}
        v_max3_f32 v{vM}, v{vM}, v{vE+2}, v{vE+3}
        """)

    A("s_cmp_ge_u32 s2, 256")
    A("s_cbranch_scc1 L_end")
    stamp(0)
    A(f"""
    s_load_dwordx8 s[4:11], s[0:1], 0
    s_load_dwordx8 s[12:19], s[0:1], 32
    v_lshrrev_b32 v10, 6, v0
    v_and_b32 v1, 63, v0
    v_readfirstlane_b32 s29, v10
    """)
    if o.map == 1:
        A("s_lshr_b32 s30, s2, 5\ns_and_b32 s31, s2, 31")
    elif o.map == 0:
        A("s_and_b32 s30, s2, 7\ns_lshr_b32 s31, s2, 3")
    else:
        A("s_bfe_u32 s30, s2, 0x30003\ns_lshr_b32 s31, s2, 6\ns_lshl_b32 s31, s31, 3\ns_and_b32 s40, s2, 7\ns_or_b32 s31, s31, s40")
    if o.sort == 2:
        BTADDR = """s_lshl_b32 s40, s31, 2
        v_lshl_add_u32 v6, v10, 9, s40
        v_lshl_add_u32 v6, v11, 7, v6
        v_add_u32 v7, 0x2000, v6"""
        BTLD2 = f"global_load_dword v{vBT+1}, v7, s[10:11]"
    else:
        BTADDR = "v_and_b32 v7, 31, v1\nv_lshl_add_u32 v6, v7, 9, s34"
        BTLD2 = ""
    A(f"""
    v_and_b32 v10, 15, v1
    v_lshrrev_b32 v11, 4, v1
    s_lshl_b32 s32, s29, 5
    s_add_u32 s32, s32, s31
    s_lshl_b32 s34, s32, 2
    s_lshl_b32 s41, s30, 9
    v_bfe_u32 v15, v1, 1, 1
    v_lshlrev_b32 v12, 9, v15
    v_lshl_add_u32 v12, v11, 4, v12
    v_and_b32 v14, 1, v1
    v_lshl_add_u32 v12, v14, 6, v12
    s_lshl_b32 s42, s30, 10
    v_add_u32 v12, s42, v12
    v_and_b32 v{vK0}, 7, v1
    v_lshlrev_b32 v{vK0}, 12, v{vK0}
    v_bfe_u32 v{vK0+1}, v1, 3, 1
    v_lshl_add_u32 v{vK0}, v{vK0+1}, 6, v{vK0}
    v_lshl_add_u32 v{vK0}, v11, 4, v{vK0}
    v_add_u32 v{vK0}, s41, v{vK0}
    v_add_u32 v{vK0+1}, 0x8000, v{vK0}
    s_mov_b32 s22, {KV_BYTES}
    s_mov_b32 s23, 0x20000
    s_mov_b32 s36, 0x3db8aa3b
    {BTADDR}
    s_waitcnt lgkmcnt(0)
    s_load_dword s43, s[10:11], s34
    s_load_dword s28, s[12:13], 0
    global_load_dword v{vBT}, v6, s[10:11]
    {BTLD2}
    """)
    stamp(1)
    for j in range(4):
        A(f"global_load_dwordx4 {vr(vQ+4*j,4)}, v12, s[4:5] offset:{128*j}")
    A(f"""
    s_mov_b32 s20, s6
    s_and_b32 s21, s7, 0xffff
    s_mov_b32 s24, s8
    s_and_b32 s25, s9, 0xffff
    s_mov_b32 s26, {KV_BYTES}
    s_mov_b32 s27, 0x20000
    s_waitcnt lgkmcnt(0)
    s_lshl_b32 s43, s43, 16
    s_cmp_lt_i32 s28, 1
    s_cselect_b32 s36, 0, s36
    s_cselect_b32 s28, 0x10000, s28
    s_min_i32 s28, s28, 0x10000
    s_sub_u32 s33, s28, 1
    s_lshr_b32 s33, s33, 11
    s_cbranch_scc0 L_skip0
    """)
    stamp(2)
    LV = [0x0, 0x2, 0xa, 0xe, 0xf]
    THR = ""
    if o.thr:
        tab = sum(LV[int(ch)] << (4 * i) for i, ch in enumerate(o.thr))
        THR = f"""s_getreg_b32 s40, hwreg(HW_REG_XCC_ID)
        s_and_b32 s40, s40, 7
        s_lshl_b32 s40, s40, 2
        s_lshr_b32 s81, {tab:#x}, s40"""
        if o.thrk:
            tabk = sum(LV[int(ch)] << (4 * i) for i, ch in enumerate(o.thrk))
            THR += f"\ns_lshr_b32 s80, {tabk:#x}, s40"
    SKEW = ""
    if o.skew:
        d = [int(x) for x in o.skew.split(",")]
        assert len(d) == 8 and sum(d) == 0
        cum = [0]
        for x in d: cum.append(cum[-1] + x)
        off = -min(cum)
        assert max(cum) + off <= 15
        tab = sum(((cum[i] + off) & 15) << (4 * i) for i in range(8))
        lo = max(0, -min(d)) * 128
        hi = (16 - max(d) - 1) * 128 + 128
        SKEW = f"""s_and_b32 s54, s32, 7
        s_lshl_b32 s54, s54, 2
        s_lshr_b32 s55, {tab:#x}, s54
        s_and_b32 s55, s55, 15
        s_add_u32 s54, s54, 4
        s_and_b32 s54, s54, 31
        s_lshr_b32 s54, {tab:#x}, s54
        s_and_b32 s54, s54, 15
        s_sub_u32 s44, s40, {lo}
        s_cmp_le_u32 s44, {hi - lo}
        s_cselect_b32 s55, s55, {off}
        s_cselect_b32 s54, s54, {off}
        s_add_u32 s45, s45, s55
        s_add_u32 s35, s35, s54
        s_sub_u32 s45, s45, {off}
        s_sub_u32 s35, s35, {off}"""
    NB = 1 + wk[0]
    for i in range(NB):
        kload(i, "s43")
    A(f"""
    L_skip0:
    s_mov_b32 s58, s43
    s_mov_b32 s78, s33
    s_lshl_b32 s40, s33, 11
    s_sub_u32 s40, s28, s40
    s_mul_i32 s45, s40, s32
    s_add_u32 s35, s45, s40
    s_lshr_b32 s45, s45, 7
    s_lshr_b32 s35, s35, 7
    {SKEW}
    s_sub_u32 s35, s35, s45
    s_lshr_b32 s40, s45, 4
    s_lshl_b32 s54, s33, 7
    s_add_u32 s40, s40, s54
    s_lshl_b32 s40, s40, 2
    s_and_b32 s40, s40, 0x3ffc
    s_add_u32 s44, s40, 4
    s_and_b32 s44, s44, 0x3ffc
    s_load_dword s54, s[10:11], s40
    s_load_dword s55, s[10:11], s44
    s_and_b32 s45, s45, 15
    s_memrealtime s[50:51]
    """)
    if o.sort == 2:
        kq, kt, ka, kb = 16, 17, 18, 19
        R = [20, 21, 22, 23]
        A(f"""
        s_mov_b32 s59, s33
        s_mov_b32 s39, 0
        v_mov_b32 v7, 0
        v_mov_b32 v{vBT+2}, 0
        s_waitcnt vmcnt({NB + 4})
        L_sort:
        v_cmp_gt_i32 vcc, s59, v10
        v_mov_b32 v{kt}, 0x800000
        v_and_b32 v{kq}, 0xffff, v{vBT}
        v_add_u32 v{kq}, 1, v{kq}
        v_cndmask_b32 v{kq}, v{kt}, v{kq}, vcc
        v_cmp_ne_u32 vcc, v7, v10
        v_lshlrev_b32 v{vBT}, 16, v{vBT}
        v_mov_b32 v7, -1
        v_cndmask_b32 v{kq}, 0, v{kq}, vcc
        v_lshl_or_b32 v{kq}, v{kq}, 6, v1
        v_mov_b32 v{R[0]}, v{kq}
        v_mov_b32 v{R[1]}, v{kq}
        s_nop 1
        v_permlane16_swap_b32 v{R[0]}, v{R[1]}
        v_mov_b32 v{R[2]}, v{R[0]}
        v_mov_b32 v{R[3]}, v{R[1]}
        s_nop 0
        v_permlane32_swap_b32 v{R[0]}, v{R[2]}
        v_permlane32_swap_b32 v{R[1]}, v{R[3]}
        """)
        for j in range(4):
            acc = ka if j < 2 else kb
            A(f"v_sub_u32 v{kt}, v{R[j]}, v{kq}")
            A(f"v_alignbit_b32 v{acc}, v{acc}, v{kt}, 31")
            for r in range(1, 16):
                A(f"v_sub_u32_dpp v{kt}, v{R[j]}, v{kq} row_ror:{r} {DPPM}")
                A(f"v_alignbit_b32 v{acc}, v{acc}, v{kt}, 31")
        A(f"""
        v_bcnt_u32_b32 v{ka}, v{ka}, 0
        v_bcnt_u32_b32 v{ka}, v{kb}, v{ka}
        v_and_b32 v{kt}, 3, v{ka}
        v_cmp_eq_u32 vcc, s29, v{kt}
        v_and_b32 v{ka}, 60, v{ka}
        v_add_u32 v{ka}, s39, v{ka}
        v_mov_b32 v{kt}, 0xfc
        v_cndmask_b32 v{ka}, v{kt}, v{ka}, vcc
        ds_permute_b32 v{kt}, v{ka}, v{vBT}
        v_mov_b32 v{vBT}, v{vBT+1}
        s_sub_i32 s59, s59, 16
        s_add_u32 s39, s39, 64
        s_cmp_gt_i32 s59, 0
        s_waitcnt lgkmcnt(0)
        v_or_b32 v{vBT+2}, v{vBT+2}, v{kt}
        s_cbranch_scc1 L_sort
        v_mov_b32 v{vBT}, v{vBT+2}
        """)
    else:
        kq, ko, kt, ka = 16, 17, 18, 19
        A(f"""
        v_cmp_gt_u32 vcc, s33, v7
        s_waitcnt vmcnt({NB + 4})
        v_mov_b32 v{kt}, 0x1000000
        v_and_b32 v{kq}, 0xffff, v{vBT}
        v_add_u32 v{kq}, 1, v{kq}
        v_cndmask_b32 v{kq}, v{kt}, v{kq}, vcc
        v_cmp_ne_u32 vcc, 0, v7
        v_lshlrev_b32 v{vBT}, 16, v{vBT}
        v_mov_b32 v{ka}, 0
        v_cndmask_b32 v{kq}, 0, v{kq}, vcc
        {"" if o.sort else f"v_mov_b32 v{kq}, 0"}
        v_lshl_or_b32 v{kq}, v{kq}, 5, v7
        v_mov_b32 v{ko}, v{kq}
        v_mov_b32 v{kt}, v{kq}
        s_nop 1
        v_permlane16_swap_b32 v{ko}, v{kt}
        s_nop 1
        v_permlane32_swap_b32 v{ko}, v{kt}
        s_nop 0
        v_sub_u32 v{kt}, v{ko}, v{kq}
        v_alignbit_b32 v{ka}, v{ka}, v{kt}, 31
        """)
        for r in range(1, 16):
            A(f"v_sub_u32_dpp v{kt}, v{ko}, v{kq} row_ror:{r} {DPPM}")
            A(f"v_alignbit_b32 v{ka}, v{ka}, v{kt}, 31")
        A(f"""
        v_bcnt_u32_b32 v{ka}, v{ka}, 0
        v_mov_b32 v{kt}, v{ka}
        v_and_b32 v{ko}, 32, v1
        s_nop 0
        v_permlane32_swap_b32 v{ka}, v{kt}
        v_add3_u32 v{ka}, v{ka}, v{kt}, v{ko}
        v_lshlrev_b32 v{ka}, 2, v{ka}
        ds_permute_b32 v{vBT}, v{ka}, v{vBT}
        """)
    A(f"""
    s_mov_b32 s34, 1
    {THR}
    v_mov_b32 v{vM}, 0xff7fffff
    s_lshl_b32 s79, s29, 12
    s_add_u32 s79, s79, {SC_OFF}
    v_lshl_add_u32 v{vSA}, v11, 5, s79
    v_lshl_add_u32 v{vSA}, v15, 4, v{vSA}
    s_mov_b32 s56, 0x00050005
    s_mov_b32 s57, 0x00050005
    v_mov_b32 v{vZ}, 0
    s_waitcnt lgkmcnt(0)
    s_bitset1_b32 s51, 31
    s_bitset0_b32 s50, 31
    v_mov_b32 v{vO}, s50
    v_mov_b32 v{vO+1}, s51
    v_mov_b32 v{vO+2}, 0
    v_mov_b32 v{vO+3}, 0
    s_lshl_b32 s40, s2, 2
    s_add_u32 s40, s40, s29
    s_cmp_lg_u32 s40, 1023
    s_cbranch_scc1 L_nononce
    s_mov_b64 exec, 1
    global_atomic_cmpswap_x2 v{vZ}, {vr(vO,4)}, s[16:17]
    s_mov_b64 exec, -1
    L_nononce:
    s_lshl_b32 s40, s45, 12
    s_lshl_b32 s54, s54, 16
    s_add_u32 s54, s54, s40
    s_sub_u32 s55, s55, 1
    s_lshl_b32 s55, s55, 16
    s_add_u32 s55, s55, s40
    s_sub_u32 s45, 16, s45
    v_mov_b32 v{vSP+4}, s54
    v_mov_b32 v{vSP+5}, s55
    v_bfrev_b32 v{vSP+6}, 1
    """)
    def special(i):
        src = vK0 + i
        A(f"""
        v_bfe_u32 v6, v{src}, 12, 4
        v_cmp_le_u32 vcc, s45, v6
        v_cmp_gt_u32 s[82:83], s35, v6
        s_nop 0
        v_cndmask_b32 v{vSP+i}, v{vSP+4}, v{vSP+5}, vcc
        v_add_u32 v{vSP+i}, v{vSP+i}, v{src}
        v_cndmask_b32 v{vSP+i}, v{vSP+6}, v{vSP+i}, s[82:83]
        """)
    special(0)
    special(1)
    A(f"""
    s_cmp_lg_u32 s33, 0
    s_cbranch_scc1 L_k0
    v_mov_b32 v{vK0}, v{vSP}
    v_mov_b32 v{vK0+1}, v{vSP+1}
    s_mov_b32 s43, 0
    """)
    for i in range(NB):
        kload(i, "s43")
    A(f"s_waitcnt vmcnt({NB-1})")
    qk(0)
    A("s_branch L_klast")
    A("L_k0:")
    if o.itstamps:
        A("s_mov_b32 m0, 0\nv_mov_b32 v89, 0\ns_memrealtime s[98:99]")
    A(f"s_waitcnt vmcnt({NB-1})")
    qk(0)

    A("L_kloop:")
    nxt = NB
    for c in list(range(1, 8)) + [8]:
        hi = c + wk[c & 7]
        if c == 1:
            assert nxt <= 8
            A(f"v_readlane_b32 s44, v{vBT}, s34\ns_add_u32 s34, s34, 1")
            if o.itstamps:
                A("s_waitcnt lgkmcnt(0)")
            itstamp()
            if hi >= 8:
                A("s_nop 1")
        A(f"s_waitcnt vmcnt({nxt - c - 1})")
        nis = 0
        while nxt <= hi:
            if nxt == 8:
                A(f"""
                s_cmp_lg_u32 s33, 1
                s_cbranch_scc1 L_knotpen
                v_mov_b32 v{vK0}, v{vSP}
                v_mov_b32 v{vK0+1}, v{vSP+1}
                s_mov_b32 s44, 0
                L_knotpen:
                """)
            assert nxt - 8 < c, "K register reuse"
            kload(nxt & 7, "s43" if nxt < 8 else "s44")
            nxt += 1
            nis += 1
            if o.thrk and nxt == hi:
                A(f"""
                s_bitcmp0_b32 s80, {(c >> 1) & 3}
                s_cbranch_scc1 L_kt{c}
                s_waitcnt vmcnt({nxt - c - 2})
                L_kt{c}:
                """)
        if c == 8:
            A(f"s_mov_b32 s43, s44\ns_sub_u32 s33, s33, 1\ns_cmp_lg_u32 s33, 0")
            A(f"s_nop {max(0, 7 - 4 - nis)}")
            finalize(False)
        qk(c & 7)
    assert nxt == 8 + NB
    A("s_cbranch_scc1 L_kloop")
    A("L_klast:")
    stamp(7)
    NV = wv[7]
    A(f"""
    v_lshrrev_b32 v12, 3, v1
    v_and_b32 v13, 7, v1
    v_lshlrev_b32 v{vV0}, 12, v12
    v_lshl_add_u32 v{vV0}, v13, 4, v{vV0}
    v_add_u32 v{vV0}, s41, v{vV0}
    v_add_u32 v{vV0+1}, 0x8000, v{vV0}
    """)
    special(2)
    special(3)
    A(f"""
    s_cmp_lg_u32 s78, 0
    s_cbranch_scc1 L_vnorm
    v_mov_b32 v{vV0}, v{vSP+2}
    v_mov_b32 v{vV0+1}, v{vSP+3}
    s_mov_b32 s58, 0
    L_vnorm:
    """)
    def ksetup(c):
        if c == 2:
            A("v_and_b32 v6, 5, v1")
            for e, val in enumerate((0, 1, 4, 5)):
                A(f"v_cmp_eq_u32 vcc, {val}, v6")
                A(f"v_mov_b32 v{vACC+2*e}, 0")
                A(f"v_mov_b32 v{vACC+2*e+1}, 0")
                A(f"v_cndmask_b32 v{vMASK+e}, 0, -1, vcc")
        if c == 4:
            for e in range(8, 24):
                A(f"v_mov_b32 v{vACC+e}, 0")
        if c == 6:
            for e in range(24, 32):
                A(f"v_mov_b32 v{vACC+e}, 0")
            A(f"""
            v_lshlrev_b32 v{vG4}, 2, v11
            s_mov_b32 s37, 0x05040100
            s_mov_b32 s38, 0x07060302
            v_mov_b32 v{vL}, 0
            v_lshrrev_b32 v6, 2, v12
            v_lshl_add_u32 v{vSB}, v6, 5, s79
            v_lshl_add_u32 v{vSB}, v15, 4, v{vSB}
            v_and_b32 v6, 3, v12
            v_lshl_add_u32 v{vSB}, v6, 2, v{vSB}
            """)
    nxt = NB
    for c in range(1, 8):
        hi = min(c + wk[c], 7 + NV)
        A(f"s_waitcnt vmcnt({nxt - c - 1})")
        while nxt <= hi:
            if nxt < 8:
                kload(nxt, "s43")
            else:
                vload(nxt - 8, "s58")
            nxt += 1
        qk(c)
        ksetup(c)
    while nxt < 8 + NV:
        vload(nxt - 8, "s58")
        nxt += 1
    A(f"""
    s_mov_b32 s43, s58
    s_mov_b32 s33, s78
    s_mov_b32 s34, 1
    s_nop 4
    """)
    finalize(True)
    A(f"""
    ds_read2_b32 {vr(vS,2)}, v{vSB} offset0:0 offset1:16
    v_mov_b32 v{vU}, v{vM}
    v_add_u32 v{vSB}, 0x80, v{vSB}
    s_nop 0
    v_permlane32_swap_b32 v{vM}, v{vU}
    v_max_f32 v{vM}, v{vM}, v{vU}
    v_mov_b32 v{vU}, v{vM}
    s_nop 1
    v_permlane16_swap_b32 v{vM}, v{vU}
    v_max_f32 v{vM}, v{vM}, v{vU}
    v_mul_f32 v{vM}, s36, v{vM}
    v_max_f32 v{vM}, 0xf149f2ca, v{vM}
    s_cmp_eq_u32 s33, 0
    s_cbranch_scc1 L_vlast
    """)

    def vtop():
        for r in range(2):
            A(f"v_fma_f32 v{vE+r}, v{vS+r}, s36, -v{vM}")
    def pc(stage):
        if stage == 0:
            A(f"v_exp_f32 v{vE}, v{vE}\nv_exp_f32 v{vE+1}, v{vE+1}")
        if stage == 1:
            A(f"v_cvt_pk_bf16_f32 v{vP}, v{vE}, v{vE+1}\nv_add_f32 v{vL}, v{vL}, v{vE}\nv_add_f32 v{vL}, v{vL}, v{vE+1}")
        if stage == 2:
            for e in range(4):
                A(f"v_and_b32 v{vA+e}, v{vMASK+e}, v{vP}")
    def vconsume(c):
        if c < 4:
            pc(c)
            for w in range(4):
                A(f"v_mov_b32 v{vH+4*c+w}, v{vVB+4*c+w}")
        else:
            pvstep(c, True)

    A("L_vloop:")
    A(f"""
    v_readlane_b32 s44, v{vBT}, s34
    s_add_u32 s34, s34, 1
    s_waitcnt lgkmcnt(0)
    """)
    itstamp()
    vtop()
    A(f"ds_read2_b32 {vr(vS,2)}, v{vSB} offset0:0 offset1:16")
    A(f"v_add_u32 v{vSB}, 0x80, v{vSB}")
    nxt = NV
    for c in range(8):
        hi = c + wv[c]
        A(f"s_waitcnt vmcnt({nxt - c - 1})")
        while nxt <= hi:
            if nxt == 8:
                A(f"""
                s_cmp_lg_u32 s33, 1
                s_cbranch_scc1 L_vnotpen
                v_mov_b32 v{vV0}, v{vSP+2}
                v_mov_b32 v{vV0+1}, v{vSP+3}
                s_mov_b32 s44, 0
                L_vnotpen:
                """)
            assert nxt - 8 < c, "V register reuse"
            vload(nxt & 7, "s43" if nxt < 8 else "s44")
            nxt += 1
            if o.thr and nxt == hi:
                A(f"""
                s_bitcmp0_b32 s81, {c >> 1}
                s_cbranch_scc1 L_vt{c}
                s_waitcnt vmcnt({nxt - c - 2})
                L_vt{c}:
                """)
        vconsume(c)
    assert nxt == 8 + NV
    A(f"""
    s_mov_b32 s43, s44
    s_sub_u32 s33, s33, 1
    s_cmp_lg_u32 s33, 0
    s_cbranch_scc1 L_vloop
    """)
    A("L_vlast:")
    for i in range(NV, 8):
        vload(i, "s43")
    A("s_waitcnt lgkmcnt(0)")
    A("s_load_dwordx2 s[52:53], s[16:17], 0")
    A(f"""
    v_lshlrev_b32 v{vL16}, 4, v1
    s_lshl_b32 s40, s29, 12
    v_lshrrev_b32 v6, 5, v1
    v_lshl_add_u32 v{vLW}, v6, 11, s40
    v_lshl_add_u32 v{vLW}, v13, 6, v{vLW}
    v_bfe_u32 v6, v1, 4, 1
    v_lshl_add_u32 v{vLW}, v6, 4, v{vLW}
    s_lshl_b32 s40, s29, 4
    v_lshl_add_u32 v{vLM}, v15, 3, s40
    s_lshl_b32 s40, s30, 17
    s_add_u32 s46, s18, s40
    s_addc_u32 s47, s19, 0
    s_lshl_b32 s40, s31, 7
    s_lshl_b32 s41, s29, 15
    s_add_u32 s40, s40, s41
    v_lshl_add_u32 v{vRX}, v12, 12, s40
    v_lshl_add_u32 v{vRX}, v13, 4, v{vRX}
    s_lshl_b32 s40, s29, 9
    v_lshl_add_u32 v{vRX2}, v1, 3, s40
    v_and_b32 v6, 1, v1
    v_lshlrev_b32 v{vRM}, 3, v6
    s_and_b32 s40, s31, 7
    s_lshl_b32 s40, s40, 2
    s_add_u32 s40, s40, s29
    s_lshl_b32 s41, s40, 12
    s_add_u32 s48, s46, s41
    s_addc_u32 s49, s47, 0
    s_lshl_b32 s41, s40, 4
    s_add_u32 s42, s42, s41
    v_lshrrev_b32 v13, 1, v13
    v_lshl_add_u32 v{vOUT}, v13, 2, s42
    v_lshl_add_u32 v{vOUT}, v6, 9, v{vOUT}
    """)
    vtop()
    pc(0)
    A("s_nop 0")
    pc(1)
    pc(2)
    A(f"""
    v_mov_b32 v{vU}, v{vL}
    s_mov_b32 s56, 0x00ff00ff
    s_mov_b32 s57, 0xff00ff00
    v_permlane32_swap_b32 v{vL}, v{vU}
    v_add_f32 v{vL}, v{vL}, v{vU}
    v_mov_b32 v{vU}, v{vL}
    s_nop 1
    v_permlane16_swap_b32 v{vL}, v{vU}
    v_add_f32 v{vL}, v{vL}, v{vU}
    s_nop 1
    v_add_f32_dpp v{vL}, v{vL}, v{vL} row_ror:8 {DPPM}
    ds_write_b64 v{vLM}, v[{vM}:{vL}] offset:{ML_OFF}
    """)
    def tilewrite(cb):
        A("s_mov_b64 exec, s[56:57]")
        for wh in range(2):
            A(f"ds_write_b128 v{vLW}, {vr(vACC+(cb*2+wh)*4,4)} offset:{cb*512+wh*32}")
        A("s_mov_b64 exec, -1")
    for i in range(4, 8):
        A(f"s_waitcnt vmcnt({7 - i})")
        pvstep(i, False)
        if i > 4:
            tilewrite(VORD[i-1][0])
    if o.itstamps:
        A(f"""
        s_waitcnt lgkmcnt(0)
        v_writelane_b32 v89, s98, m0
        s_lshl_b32 s40, s2, 2
        s_add_u32 s40, s40, s29
        s_lshl_b32 s40, s40, 8
        s_add_u32 s40, s40, {STAMP_OFF + (1<<20)}
        v_lshlrev_b32 v{vT}, 2, v1
        v_add_u32 v{vT}, s40, v{vT}
        global_store_dword v{vT}, v89, s[18:19]
        """)
    stamp(3)
    A(f"""
    s_mov_b64 exec, s[56:57]
    s_nop 0
    ds_write_b128 v{vLW}, {vr(vACC+(VORD[7][0]*2)*4,4)} offset:{VORD[7][0]*512}
    s_nop 0
    ds_write_b128 v{vLW}, {vr(vACC+(VORD[7][0]*2+1)*4,4)} offset:{VORD[7][0]*512+32}
    s_mov_b64 exec, -1
    s_waitcnt lgkmcnt(0)
    s_cmp_lg_u32 s53, 0
    s_cbranch_scc1 L_havenonce
    s_mov_b64 exec, 1
    global_atomic_cmpswap_x2 v[{vT}:{vU}], v{vZ}, {vr(vO,4)}, s[16:17] sc0
    s_mov_b64 exec, -1
    s_waitcnt vmcnt(0)
    v_readfirstlane_b32 s52, v{vT}
    v_readfirstlane_b32 s53, v{vU}
    s_cmp_lg_u32 s53, 0
    s_cselect_b32 s52, s52, s50
    s_cselect_b32 s53, s53, s51
    L_havenonce:
    s_cmp_lt_u32 s31, {32-NP}
    s_barrier
    """)
    stamp(4)
    ML = vAE
    X = vKB
    M, Ls, T2 = vB, vB + 1, vB + 2
    O = vO
    for s in range(4):
        A(f"ds_read_b64 {vr(ML+2*s,2)}, v{vRM} offset:{ML_OFF+16*s}")
    for s in range(4):
        A(f"ds_read2st64_b64 {vr(X+4*s,4)}, v{vRX2} offset0:{8*s} offset1:{8*s+4}")
    A(f"""
    s_waitcnt lgkmcnt(4)
    v_max3_f32 v{M}, v{ML}, v{ML+2}, v{ML+4}
    v_max_f32 v{M}, v{M}, v{ML+6}
    """)
    for s in range(4):
        A(f"v_sub_f32 v{ML+2*s}, v{ML+2*s}, v{M}")
    for s in range(4):
        A(f"v_exp_f32 v{ML+2*s}, v{ML+2*s}")
    A(f"v_mul_f32 v{Ls}, v{ML}, v{ML+1}")
    for s in range(1, 4):
        A(f"v_fmac_f32 v{Ls}, v{ML+2*s}, v{ML+2*s+1}")
    A(f"""
    v_max_f32 v{Ls}, 0x0da24260, v{Ls}
    v_log_f32 v{T2}, v{Ls}
    v_rcp_f32 v{Ls}, v{Ls}
    s_waitcnt lgkmcnt(0)
    v_mul_f32 v{O}, v{ML}, v{X}
    v_mul_f32 v{O+2}, v{ML}, v{X+1}
    v_add_f32 v{T2}, v{T2}, v{M}
    """)
    for s in range(1, 8):
        A(f"v_fmac_f32 v{O}, v{ML+2*(s>>1)}, v{X+2*s}")
        A(f"v_fmac_f32 v{O+2}, v{ML+2*(s>>1)}, v{X+2*s+1}")
    A(f"""
    v_xor_b32 v{O+1}, s52, v{T2}
    v_xor_b32 v{O+3}, s53, v{T2}
    v_mul_f32 v{O}, v{O}, v{Ls}
    v_mul_f32 v{O+2}, v{O+2}, v{Ls}
    global_store_dwordx4 v{vRX}, {vr(O,4)}, s[46:47] {o.stf}
    """)
    if o.dual:
        A(f"v_add_u32 v{vRX}, 0x100000, v{vRX}")
        A(f"global_store_dwordx4 v{vRX}, {vr(O,4)}, s[46:47] sc1")
    stamp(5)
    PX = vVB
    PL = vVB + 16
    msk = lambda k: f"s[{90+2*k}:{91+2*k}]"
    A("s_cbranch_scc1 L_fin")
    A("s_xor_b32 s53, s53, s52")
    for k in range(4):
        A(f"s_mov_b64 {msk(k)}, -1")
    if not o.noack:
        A("s_waitcnt vmcnt(0)")
    if o.dual:
        A(f"s_mov_b32 s59, {o.dual}")
    A("L_poll:")
    if o.dual:
        A(f"""
        s_sub_u32 s59, s59, 1
        s_cmp_lg_u32 s59, 0
        s_cbranch_scc1 L_nosw
        v_xor_b32 v{vL16}, 0x100000, v{vL16}
        s_mov_b32 s59, {o.dual}
        L_nosw:
        """)
    for k in range(4):
        A(f"s_mov_b64 exec, {msk(k)}")
        A(f"global_load_dwordx4 {vr(PX+4*k,4)}, v{vL16}, s[48:49] offset:{1024*k} {o.ldf}")
    A("s_mov_b64 exec, -1")
    A("s_waitcnt vmcnt(0)")
    for k in range(4):
        A(f"v_xor_b32 v{PL+4+k}, v{PX+4*k+1}, v{PX+4*k+3}")
    for k in range(4):
        A(f"v_xor_b32_dpp v{PL+8+k}, v{PX+4*k+1}, v{PX+4*k+1} quad_perm:[2,3,0,1] {DPPM}")
    for k in range(4):
        A(f"v_xor_b32 v{PL+4+k}, s53, v{PL+4+k}")
    for k in range(4):
        A(f"v_or_b32 v{PL+4+k}, v{PL+4+k}, v{PL+8+k}")
    for k in range(4):
        A(f"v_or_b32_dpp v{PL+4+k}, v{PL+4+k}, v{PL+4+k} quad_perm:[1,0,3,2] {DPPM}")
    for k in range(4):
        A(f"v_or_b32_dpp v{PL+4+k}, v{PL+4+k}, v{PL+4+k} quad_perm:[2,3,0,1] {DPPM}")
    for k in range(4):
        A(f"v_or_b32_dpp v{PL+4+k}, v{PL+4+k}, v{PL+4+k} row_half_mirror {DPPM}")
    for k in range(4):
        A(f"v_cmp_ne_u32 {msk(k)}, 0, v{PL+4+k}")
    for k in range(4):
        A(f"v_xor_b32 v{PL+k}, s52, v{PX+4*k+1}")
    A(f"""
    s_or_b64 s[40:41], {msk(0)}, {msk(1)}
    s_or_b64 s[42:43], {msk(2)}, {msk(3)}
    s_or_b64 s[44:45], s[40:41], s[42:43]
    s_cbranch_scc0 L_go
    s_bcnt1_i32_b64 s40, s[40:41]
    s_bcnt1_i32_b64 s41, s[42:43]
    s_add_u32 s40, s40, s41
    s_cmp_le_u32 s40, {o.tight*8}
    s_cbranch_scc1 L_poll
    s_sleep {o.sleep}
    s_branch L_poll
    L_go:
    """)
    stamp(6)
    A(f"""
    v_max3_f32 v{M}, v{PL}, v{PL+1}, v{PL+2}
    v_max_f32 v{M}, v{M}, v{PL+3}
    v_mov_b32 v{T2}, v{M}
    s_nop 1
    v_permlane32_swap_b32 v{M}, v{T2}
    v_max_f32 v{M}, v{M}, v{T2}
    v_mov_b32 v{T2}, v{M}
    s_nop 1
    v_permlane16_swap_b32 v{M}, v{T2}
    v_max_f32 v{M}, v{M}, v{T2}
    s_nop 1
    v_max_f32_dpp v{M}, v{M}, v{M} row_ror:8 {DPPM}
    """)
    for k in range(4):
        A(f"v_sub_f32 v{PL+k}, v{PL+k}, v{M}")
    for k in range(4):
        A(f"v_exp_f32 v{PL+k}, v{PL+k}")
    A(f"""
    v_mul_f32 v{PX}, v{PL}, v{PX}
    v_mul_f32 v{PX+2}, v{PL}, v{PX+2}
    v_add_f32 v{Ls}, v{PL}, v{PL+1}
    v_add_f32 v{T2}, v{PL+2}, v{PL+3}
    v_add_f32 v{Ls}, v{Ls}, v{T2}
    """)
    for k in range(1, 4):
        A(f"v_fmac_f32 v{PX}, v{PL+k}, v{PX+4*k}")
        A(f"v_fmac_f32 v{PX+2}, v{PL+k}, v{PX+4*k+2}")
    A(f"""
    v_mov_b32 v{T2}, v{Ls}
    v_mov_b32 v{PX+1}, v{PX}
    v_mov_b32 v{PX+3}, v{PX+2}
    v_permlane32_swap_b32 v{Ls}, v{T2}
    v_permlane32_swap_b32 v{PX}, v{PX+1}
    v_permlane32_swap_b32 v{PX+2}, v{PX+3}
    v_add_f32 v{Ls}, v{Ls}, v{T2}
    v_add_f32 v{PX}, v{PX}, v{PX+1}
    v_add_f32 v{PX+2}, v{PX+2}, v{PX+3}
    v_mov_b32 v{T2}, v{Ls}
    v_mov_b32 v{PX+1}, v{PX}
    v_mov_b32 v{PX+3}, v{PX+2}
    v_permlane16_swap_b32 v{Ls}, v{T2}
    v_permlane16_swap_b32 v{PX}, v{PX+1}
    v_permlane16_swap_b32 v{PX+2}, v{PX+3}
    v_add_f32 v{Ls}, v{Ls}, v{T2}
    v_add_f32 v{PX}, v{PX}, v{PX+1}
    v_add_f32 v{PX+2}, v{PX+2}, v{PX+3}
    v_add_f32_dpp v{Ls}, v{Ls}, v{Ls} row_ror:8 {DPPM}
    v_add_f32_dpp v{PX}, v{PX}, v{PX} row_ror:8 {DPPM}
    v_add_f32_dpp v{PX+2}, v{PX+2}, v{PX+2} row_ror:8 {DPPM}
    v_rcp_f32 v{Ls}, v{Ls}
    s_mov_b64 exec, 0xff
    v_mul_f32 v{PX}, v{PX}, v{Ls}
    v_mul_f32 v{PX+2}, v{PX+2}, v{Ls}
    v_cvt_pk_bf16_f32 v{PX}, v{PX}, v{PX+2}
    global_store_dword v{vOUT}, v{PX}, s[14:15]
    """)
    A("L_fin:")
    if nst:
        A("s_mov_b64 exec, -1")
        A("s_waitcnt vmcnt(0)")
        stamp(nst - 1)
        A(f"""
        s_lshl_b32 s40, s2, 2
        s_add_u32 s40, s40, s29
        s_mul_i32 s40, s40, {nst*8}
        s_add_u32 s40, s40, {STAMP_OFF}
        v_mov_b32 v1, s40
        s_waitcnt lgkmcnt(0)
        s_mov_b64 exec, 1
        """)
        for i in range(nst):
            A(f"v_mov_b32 v2, s{sST+2*i}")
            A(f"v_mov_b32 v3, s{sST+2*i+1}")
            A(f"global_store_dwordx2 v1, v[2:3], s[18:19] offset:{8*i}")
            A(f"s_nop 1")
    A("L_end:")
    A("s_endpgm")
    lds = SC_OFF + 4 * 4096
    out = HEADER
    out += f"; @launch grid=(256,1,1) block=(256,1,1) lds={lds}\n"
    out += f""".amdgcn_target "amdgcn-amd-amdhsa--gfx950"
.text
.globl {KN}
.p2align 8
.type {KN},@function
{KN}:
"""
    out += A.text()
    acc = min(256, (o.vgpr + 3) // 4 * 4)
    out += f""".section .rodata,"a"
.p2align 6
.amdhsa_kernel {KN}
  .amdhsa_next_free_vgpr {o.vgpr}
  .amdhsa_next_free_sgpr 102
  .amdhsa_accum_offset {acc}
  .amdhsa_group_segment_fixed_size 0
  .amdhsa_kernarg_size 64
  .amdhsa_user_sgpr_count 2
  .amdhsa_user_sgpr_kernarg_segment_ptr 1
  .amdhsa_system_sgpr_workgroup_id_x 1
.end_amdhsa_kernel
"""
    return out

if __name__ == "__main__":
    ap = argparse.ArgumentParser()
    ap.add_argument("out")
    ap.add_argument("--map", type=int, default=1)
    ap.add_argument("--wk", default="65656565")
    ap.add_argument("--wv", default="65656565")
    ap.add_argument("--kord", default="D")
    ap.add_argument("--vord", default="D")
    ap.add_argument("--vgpr", type=int, default=512)
    ap.add_argument("--sleep", type=int, default=6)
    ap.add_argument("--tight", type=int, default=4)
    ap.add_argument("--sort", type=int, default=1)
    ap.add_argument("--stf", default="sc1")
    ape = ap.add_argument("--ldf", default="sc1")
    ap.add_argument("--noack", action="store_true")
    ap.add_argument("--np", type=int, default=8)
    ap.add_argument("--dual", type=int, default=0)
    ap.add_argument("--skew", default="")
    ap.add_argument("--thr", default="")
    ap.add_argument("--thrk", default="")
    ap.add_argument("--stamps", type=int, default=0)
    ap.add_argument("--itstamps", action="store_true")
    o = ap.parse_args()
    open(o.out, "w").write(gen(o))
```

```python
import sys, argparse

KN = "standalone__paged_block_table_kv_pagedattention__decode_kernel"
HEADER = open("standalone__paged_block_table_kv_pagedattention__decode.s.ref").read().split("; Override launch")[0]
KV_BYTES = 4100 * 65536
STAMP_OFF = 512 << 20
ML_OFF = 16384
SC_OFF = 0

class Asm:
    def __init__(self):
        self.l = []
    def __call__(self, s):
        for line in s.strip("\n").split("\n"):
            t = line.strip()
            if not t:
                continue
            self.l.append(t if t.endswith(":") else "    " + t)
    def text(self):
        return "\n".join(self.l) + "\n"

def vr(b, n):
    return f"v[{b}:{b+n-1}]"
DPPM = "row_mask:0xf bank_mask:0xf"

def gen(o):
    A = Asm()
    fl = " nt"
    STRIDE = 128
    NP = 8
    wk = [int(ch, 16) for ch in o.wk]
    wv = [int(ch, 16) for ch in o.wv]
    assert len(wk) == 8 and len(wv) == 8 and max(wk) <= 7 and max(wv) <= 7
    vK0, vV0 = 2, 4
    vM, vL = 8, 9
    vT, vU, vX2, vX3 = 10, 11, 12, 13
    vP = 14
    vS = 16
    vD1 = 20
    vMASK = 24
    vA = 28
    vAE = 40
    vB = 56
    vACC = 200
    vQ = 72
    vG4 = 88
    vLW, vLM, vL16, vRX, vRX2, vRM, vSA, vSB, vOUT, vZ = range(90, 100)
    vKB = 100
    vVB = 132
    vO = 164
    vSP = 168
    vH = 176
    vBT = 196
    vE = 192
    KORD = {"N": [(i >> 1, i & 1) for i in range(8)],
            "M": [(i & 3, i >> 2) for i in range(8)],
            "D": [(0,0),(1,1),(2,0),(3,1),(1,0),(0,1),(3,0),(2,1)],
            "E": [(0,0),(2,1),(1,0),(3,1),(2,0),(0,1),(3,0),(1,1)]}[o.kord]
    KFIRST = {hp: min(i for i in range(8) if KORD[i][1] == hp) for hp in (0, 1)}
    VORD = {"D": [(0,0),(1,1),(2,0),(3,1),(1,0),(0,1),(3,0),(2,1)],
            "I": [(0,0),(3,1),(2,0),(1,1),(1,0),(2,1),(3,0),(0,1)],
            "J": [(0,0),(2,0),(1,1),(3,1),(1,0),(3,0),(0,1),(2,1)]}[o.vord]
    PARTNER = {i: [k for k in range(4) if VORD[k][0] == VORD[i][0]][0] for i in range(4, 8)}
    nst = o.stamps
    sST = 60
    def stamp(i):
        if nst and i < nst:
            A(f"s_memrealtime s[{sST+2*i}:{sST+2*i+1}]")
    def itstamp():
        if o.itstamps:
            A("v_writelane_b32 v89, s98, m0\ns_add_u32 m0, m0, 1\ns_memrealtime s[98:99]")

    def kload(i, sreg):
        j, hp = KORD[i]
        A(f"buffer_load_dwordx4 {vr(vKB+4*i,4)}, v{vK0+hp}, s[20:23], {sreg} offen offset:{128*j}{fl}")
    def vload(i, sreg):
        cb, t = VORD[i]
        A(f"buffer_load_dwordx4 {vr(vVB+4*i,4)}, v{vV0+t}, s[24:27], {sreg} offen offset:{128*cb}{fl}")
    def qk(c):
        j, hp = KORD[c]
        d = vD1 if hp else vS
        cc = "0" if c == KFIRST[hp] else vr(d, 4)
        A(f"v_mfma_f32_16x16x32_bf16 {vr(d,4)}, {vr(vKB+4*c,4)}, {vr(vQ+4*j,4)}, {cc}")
    def pvstep(i, held):
        cb, t = VORD[i]
        k = PARTNER[i]
        me, other = vVB + 4 * i, (vH if held else vVB) + 4 * k
        l0, l1 = (me, other) if t == 0 else (other, me)
        bb = vB + 8 * (i & 1)
        ps, ms = [], []
        for w in range(4):
            ps.append(f"v_perm_b32 v{bb+2*w}, v{l1+w}, v{l0+w}, s37")
            ps.append(f"v_perm_b32 v{bb+2*w+1}, v{l1+w}, v{l0+w}, s38")
            acc = vACC + (cb * 2 + (w >> 1)) * 4
            ms.append(f"v_mfma_f32_16x16x16_bf16 {vr(acc,4)}, {vr(vA+2*(w&1),2)}, {vr(bb+2*w,2)}, {vr(acc,4)}")
        for x in ps[:4] + [ms[0]] + ps[4:6] + [ms[1]] + ps[6:8] + [ms[2], "s_nop 0", ms[3]]:
            A(x)

    def finalize(mask):
        for r in range(4):
            A(f"v_permlane32_swap_b32 v{vS+r}, v{vD1+r}")
        for r in range(4):
            A(f"v_mov_b32_dpp v{vD1+r}, v{vD1+r} quad_perm:[1,1,3,3] {DPPM}")
        for r in range(4):
            A(f"v_add_f32_dpp v{vE+r}, v{vS+r}, v{vD1+r} quad_perm:[0,0,2,2] {DPPM}")
        if mask:
            A(f"v_mov_b32 v{vU}, 0xff800000")
            for r in range(4):
                A(f"v_cmp_gt_i32 vcc, s35, v{vG4}")
                A(f"s_sub_u32 s35, s35, 1")
                A(f"s_nop 0")
                A(f"v_cndmask_b32 v{vE+r}, v{vU}, v{vE+r}, vcc")
        A(f"""
        s_mov_b64 exec, s[56:57]
        ds_write_b128 v{vSA}, {vr(vE,4)}
        s_mov_b64 exec, -1
        v_max3_f32 v{vM}, v{vM}, v{vE}, v{vE+1}
        v_add_u32 v{vSA}, 0x80, v{vSA}
        v_max3_f32 v{vM}, v{vM}, v{vE+2}, v{vE+3}
        """)

    A("s_cmp_ge_u32 s2, 256")
    A("s_cbranch_scc1 L_end")
    stamp(0)
    A(f"""
    s_load_dwordx8 s[4:11], s[0:1], 0
    s_load_dwordx8 s[12:19], s[0:1], 32
    v_lshrrev_b32 v10, 6, v0
    v_and_b32 v1, 63, v0
    v_readfirstlane_b32 s29, v10
    """)
    if o.map == 1:
        A("s_lshr_b32 s30, s2, 5\ns_and_b32 s31, s2, 31")
    elif o.map == 0:
        A("s_and_b32 s30, s2, 7\ns_lshr_b32 s31, s2, 3")
    else:
        A("s_bfe_u32 s30, s2, 0x30003\ns_lshr_b32 s31, s2, 6\ns_lshl_b32 s31, s31, 3\ns_and_b32 s40, s2, 7\ns_or_b32 s31, s31, s40")
    if o.sort == 2:
        BTADDR = """s_lshl_b32 s40, s31, 2
        v_lshl_add_u32 v6, v10, 9, s40
        v_lshl_add_u32 v6, v11, 7, v6
        v_add_u32 v7, 0x2000, v6"""
        BTLD2 = f"global_load_dword v{vBT+1}, v7, s[10:11]"
    else:
        BTADDR = "v_and_b32 v7, 31, v1\nv_lshl_add_u32 v6, v7, 9, s34"
        BTLD2 = ""
    A(f"""
    v_and_b32 v10, 15, v1
    v_lshrrev_b32 v11, 4, v1
    s_lshl_b32 s32, s29, 5
    s_add_u32 s32, s32, s31
    s_lshl_b32 s34, s32, 2
    s_lshl_b32 s41, s30, 9
    v_bfe_u32 v15, v1, 1, 1
    v_lshlrev_b32 v12, 9, v15
    v_lshl_add_u32 v12, v11, 4, v12
    v_and_b32 v14, 1, v1
    v_lshl_add_u32 v12, v14, 6, v12
    s_lshl_b32 s42, s30, 10
    v_add_u32 v12, s42, v12
    v_and_b32 v{vK0}, 7, v1
    v_lshlrev_b32 v{vK0}, 12, v{vK0}
    v_bfe_u32 v{vK0+1}, v1, 3, 1
    v_lshl_add_u32 v{vK0}, v{vK0+1}, 6, v{vK0}
    v_lshl_add_u32 v{vK0}, v11, 4, v{vK0}
    v_add_u32 v{vK0}, s41, v{vK0}
    v_add_u32 v{vK0+1}, 0x8000, v{vK0}
    s_mov_b32 s22, {KV_BYTES}
    s_mov_b32 s23, 0x20000
    s_mov_b32 s36, 0x3db8aa3b
    {BTADDR}
    s_waitcnt lgkmcnt(0)
    s_load_dword s43, s[10:11], s34
    s_load_dword s28, s[12:13], 0
    global_load_dword v{vBT}, v6, s[10:11]
    {BTLD2}
    """)
    stamp(1)
    for j in range(4):
        A(f"global_load_dwordx4 {vr(vQ+4*j,4)}, v12, s[4:5] offset:{128*j}")
    A(f"""
    s_mov_b32 s20, s6
    s_and_b32 s21, s7, 0xffff
    s_mov_b32 s24, s8
    s_and_b32 s25, s9, 0xffff
    s_mov_b32 s26, {KV_BYTES}
    s_mov_b32 s27, 0x20000
    s_waitcnt lgkmcnt(0)
    s_lshl_b32 s43, s43, 16
    s_cmp_lt_i32 s28, 1
    s_cselect_b32 s36, 0, s36
    s_cselect_b32 s28, 0x10000, s28
    s_min_i32 s28, s28, 0x10000
    s_sub_u32 s33, s28, 1
    s_lshr_b32 s33, s33, 11
    s_cbranch_scc0 L_skip0
    """)
    stamp(2)
    LV = [0x0, 0x2, 0xa, 0xe, 0xf]
    THR = ""
    if o.thr:
        tab = sum(LV[int(ch)] << (4 * i) for i, ch in enumerate(o.thr))
        THR = f"""s_getreg_b32 s40, hwreg(HW_REG_XCC_ID)
        s_and_b32 s40, s40, 7
        s_lshl_b32 s40, s40, 2
        s_lshr_b32 s81, {tab:#x}, s40"""
        if o.thrk:
            tabk = sum(LV[int(ch)] << (4 * i) for i, ch in enumerate(o.thrk))
            THR += f"\ns_lshr_b32 s80, {tabk:#x}, s40"
    SKEW = ""
    if o.skew:
        d = [int(x) for x in o.skew.split(",")]
        assert len(d) == 8 and sum(d) == 0
        cum = [0]
        for x in d: cum.append(cum[-1] + x)
        off = -min(cum)
        assert max(cum) + off <= 15
        tab = sum(((cum[i] + off) & 15) << (4 * i) for i in range(8))
        lo = max(0, -min(d)) * 128
        hi = (16 - max(d) - 1) * 128 + 128
        SKEW = f"""s_and_b32 s54, s32, 7
        s_lshl_b32 s54, s54, 2
        s_lshr_b32 s55, {tab:#x}, s54
        s_and_b32 s55, s55, 15
        s_add_u32 s54, s54, 4
        s_and_b32 s54, s54, 31
        s_lshr_b32 s54, {tab:#x}, s54
        s_and_b32 s54, s54, 15
        s_sub_u32 s44, s40, {lo}
        s_cmp_le_u32 s44, {hi - lo}
        s_cselect_b32 s55, s55, {off}
        s_cselect_b32 s54, s54, {off}
        s_add_u32 s45, s45, s55
        s_add_u32 s35, s35, s54
        s_sub_u32 s45, s45, {off}
        s_sub_u32 s35, s35, {off}"""
    NB = 1 + wk[0]
    for i in range(NB):
        kload(i, "s43")
    A(f"""
    L_skip0:
    s_mov_b32 s58, s43
    s_mov_b32 s78, s33
    s_lshl_b32 s40, s33, 11
    s_sub_u32 s40, s28, s40
    s_mul_i32 s45, s40, s32
    s_add_u32 s35, s45, s40
    s_lshr_b32 s45, s45, 7
    s_lshr_b32 s35, s35, 7
    {SKEW}
    s_sub_u32 s35, s35, s45
    s_lshr_b32 s40, s45, 4
    s_lshl_b32 s54, s33, 7
    s_add_u32 s40, s40, s54
    s_lshl_b32 s40, s40, 2
    s_and_b32 s40, s40, 0x3ffc
    s_add_u32 s44, s40, 4
    s_and_b32 s44, s44, 0x3ffc
    s_load_dword s54, s[10:11], s40
    s_load_dword s55, s[10:11], s44
    s_and_b32 s45, s45, 15
    s_memrealtime s[50:51]
    """)
    if o.sort == 2:
        kq, kt, ka, kb = 16, 17, 18, 19
        R = [20, 21, 22, 23]
        A(f"""
        s_mov_b32 s59, s33
        s_mov_b32 s39, 0
        v_mov_b32 v7, 0
        v_mov_b32 v{vBT+2}, 0
        s_waitcnt vmcnt({NB + 4})
        L_sort:
        v_cmp_gt_i32 vcc, s59, v10
        v_mov_b32 v{kt}, 0x800000
        v_and_b32 v{kq}, 0xffff, v{vBT}
        v_add_u32 v{kq}, 1, v{kq}
        v_cndmask_b32 v{kq}, v{kt}, v{kq}, vcc
        v_cmp_ne_u32 vcc, v7, v10
        v_lshlrev_b32 v{vBT}, 16, v{vBT}
        v_mov_b32 v7, -1
        v_cndmask_b32 v{kq}, 0, v{kq}, vcc
        v_lshl_or_b32 v{kq}, v{kq}, 6, v1
        v_mov_b32 v{R[0]}, v{kq}
        v_mov_b32 v{R[1]}, v{kq}
        s_nop 1
        v_permlane16_swap_b32 v{R[0]}, v{R[1]}
        v_mov_b32 v{R[2]}, v{R[0]}
        v_mov_b32 v{R[3]}, v{R[1]}
        s_nop 0
        v_permlane32_swap_b32 v{R[0]}, v{R[2]}
        v_permlane32_swap_b32 v{R[1]}, v{R[3]}
        """)
        for j in range(4):
            acc = ka if j < 2 else kb
            A(f"v_sub_u32 v{kt}, v{R[j]}, v{kq}")
            A(f"v_alignbit_b32 v{acc}, v{acc}, v{kt}, 31")
            for r in range(1, 16):
                A(f"v_sub_u32_dpp v{kt}, v{R[j]}, v{kq} row_ror:{r} {DPPM}")
                A(f"v_alignbit_b32 v{acc}, v{acc}, v{kt}, 31")
        A(f"""
        v_bcnt_u32_b32 v{ka}, v{ka}, 0
        v_bcnt_u32_b32 v{ka}, v{kb}, v{ka}
        v_and_b32 v{kt}, 3, v{ka}
        v_cmp_eq_u32 vcc, s29, v{kt}
        v_and_b32 v{ka}, 60, v{ka}
        v_add_u32 v{ka}, s39, v{ka}
        v_mov_b32 v{kt}, 0xfc
        v_cndmask_b32 v{ka}, v{kt}, v{ka}, vcc
        ds_permute_b32 v{kt}, v{ka}, v{vBT}
        v_mov_b32 v{vBT}, v{vBT+1}
        s_sub_i32 s59, s59, 16
        s_add_u32 s39, s39, 64
        s_cmp_gt_i32 s59, 0
        s_waitcnt lgkmcnt(0)
        v_or_b32 v{vBT+2}, v{vBT+2}, v{kt}
        s_cbranch_scc1 L_sort
        v_mov_b32 v{vBT}, v{vBT+2}
        """)
    else:
        kq, ko, kt, ka = 16, 17, 18, 19
        A(f"""
        v_cmp_gt_u32 vcc, s33, v7
        s_waitcnt vmcnt({NB + 4})
        v_mov_b32 v{kt}, 0x1000000
        v_and_b32 v{kq}, 0xffff, v{vBT}
        v_add_u32 v{kq}, 1, v{kq}
        v_cndmask_b32 v{kq}, v{kt}, v{kq}, vcc
        v_cmp_ne_u32 vcc, 0, v7
        v_lshlrev_b32 v{vBT}, 16, v{vBT}
        v_mov_b32 v{ka}, 0
        v_cndmask_b32 v{kq}, 0, v{kq}, vcc
        {"" if o.sort else f"v_mov_b32 v{kq}, 0"}
        v_lshl_or_b32 v{kq}, v{kq}, 5, v7
        v_mov_b32 v{ko}, v{kq}
        v_mov_b32 v{kt}, v{kq}
        s_nop 1
        v_permlane16_swap_b32 v{ko}, v{kt}
        s_nop 1
        v_permlane32_swap_b32 v{ko}, v{kt}
        s_nop 0
        v_sub_u32 v{kt}, v{ko}, v{kq}
        v_alignbit_b32 v{ka}, v{ka}, v{kt}, 31
        """)
        for r in range(1, 16):
            A(f"v_sub_u32_dpp v{kt}, v{ko}, v{kq} row_ror:{r} {DPPM}")
            A(f"v_alignbit_b32 v{ka}, v{ka}, v{kt}, 31")
        A(f"""
        v_bcnt_u32_b32 v{ka}, v{ka}, 0
        v_mov_b32 v{kt}, v{ka}
        v_and_b32 v{ko}, 32, v1
        s_nop 0
        v_permlane32_swap_b32 v{ka}, v{kt}
        v_add3_u32 v{ka}, v{ka}, v{kt}, v{ko}
        v_lshlrev_b32 v{ka}, 2, v{ka}
        ds_permute_b32 v{vBT}, v{ka}, v{vBT}
        """)
    A(f"""
    s_mov_b32 s34, 1
    {THR}
    v_mov_b32 v{vM}, 0xff7fffff
    s_lshl_b32 s79, s29, 12
    v_lshl_add_u32 v{vSA}, v11, 5, s79
    v_lshl_add_u32 v{vSA}, v15, 4, v{vSA}
    s_mov_b32 s56, 0x00050005
    s_mov_b32 s57, 0x00050005
    v_mov_b32 v{vZ}, 0
    s_waitcnt lgkmcnt(0)
    s_bitset1_b32 s51, 31
    s_bitset0_b32 s50, 31
    v_mov_b32 v{vO}, s50
    v_mov_b32 v{vO+1}, s51
    v_mov_b32 v{vO+2}, 0
    v_mov_b32 v{vO+3}, 0
    s_lshl_b32 s40, s2, 2
    s_add_u32 s40, s40, s29
    s_cmp_lg_u32 s40, 1023
    s_cbranch_scc1 L_nononce
    s_mov_b64 exec, 1
    global_atomic_cmpswap_x2 v{vZ}, {vr(vO,4)}, s[16:17]
    s_mov_b64 exec, -1
    L_nononce:
    s_lshl_b32 s40, s45, 12
    s_lshl_b32 s54, s54, 16
    s_add_u32 s54, s54, s40
    s_sub_u32 s55, s55, 1
    s_lshl_b32 s55, s55, 16
    s_add_u32 s55, s55, s40
    s_sub_u32 s45, 16, s45
    v_mov_b32 v{vSP+4}, s54
    v_mov_b32 v{vSP+5}, s55
    v_bfrev_b32 v{vSP+6}, 1
    """)
    def special(i):
        src = vK0 + i
        A(f"""
        v_bfe_u32 v6, v{src}, 12, 4
        v_cmp_le_u32 vcc, s45, v6
        v_cmp_gt_u32 s[82:83], s35, v6
        s_nop 0
        v_cndmask_b32 v{vSP+i}, v{vSP+4}, v{vSP+5}, vcc
        v_add_u32 v{vSP+i}, v{vSP+i}, v{src}
        v_cndmask_b32 v{vSP+i}, v{vSP+6}, v{vSP+i}, s[82:83]
        """)
    special(0)
    special(1)
    A(f"""
    s_cmp_lg_u32 s33, 0
    s_cbranch_scc1 L_k0
    v_mov_b32 v{vK0}, v{vSP}
    v_mov_b32 v{vK0+1}, v{vSP+1}
    s_mov_b32 s43, 0
    """)
    for i in range(NB):
        kload(i, "s43")
    A(f"s_waitcnt vmcnt({NB-1})")
    qk(0)
    A("s_branch L_klast")
    A("L_k0:")
    if o.itstamps:
        A("s_mov_b32 m0, 0\nv_mov_b32 v89, 0\ns_memrealtime s[98:99]")
    A(f"s_waitcnt vmcnt({NB-1})")
    qk(0)

    A("L_kloop:")
    nxt = NB
    for c in list(range(1, 8)) + [8]:
        hi = c + wk[c & 7]
        if c == 1:
            assert nxt <= 8
            A(f"v_readlane_b32 s44, v{vBT}, s34\ns_add_u32 s34, s34, 1")
            if o.itstamps:
                A("s_waitcnt lgkmcnt(0)")
            itstamp()
            if hi >= 8:
                A("s_nop 1")
        A(f"s_waitcnt vmcnt({nxt - c - 1})")
        nis = 0
        while nxt <= hi:
            if nxt == 8:
                A(f"""
                s_cmp_lg_u32 s33, 1
                s_cbranch_scc1 L_knotpen
                v_mov_b32 v{vK0}, v{vSP}
                v_mov_b32 v{vK0+1}, v{vSP+1}
                s_mov_b32 s44, 0
                L_knotpen:
                """)
            assert nxt - 8 < c, "K register reuse"
            kload(nxt & 7, "s43" if nxt < 8 else "s44")
            nxt += 1
            nis += 1
            if o.thrk and nxt == hi:
                A(f"""
                s_bitcmp0_b32 s80, {(c >> 1) & 3}
                s_cbranch_scc1 L_kt{c}
                s_waitcnt vmcnt({nxt - c - 2})
                L_kt{c}:
                """)
        if c == 8:
            A(f"s_mov_b32 s43, s44\ns_sub_u32 s33, s33, 1\ns_cmp_lg_u32 s33, 0")
            A(f"s_nop {max(0, 7 - 4 - nis)}")
            finalize(False)
        qk(c & 7)
    assert nxt == 8 + NB
    A("s_cbranch_scc1 L_kloop")
    A("L_klast:")
    stamp(7)
    NV = wv[7]
    if o.ff:
        A("s_memrealtime s[84:85]\ns_mov_b32 s86, 0")
    A(f"""
    v_lshrrev_b32 v12, 3, v1
    v_and_b32 v13, 7, v1
    v_lshlrev_b32 v{vV0}, 12, v12
    v_lshl_add_u32 v{vV0}, v13, 4, v{vV0}
    v_add_u32 v{vV0}, s41, v{vV0}
    v_add_u32 v{vV0+1}, 0x8000, v{vV0}
    """)
    special(2)
    special(3)
    A(f"""
    s_cmp_lg_u32 s78, 0
    s_cbranch_scc1 L_vnorm
    v_mov_b32 v{vV0}, v{vSP+2}
    v_mov_b32 v{vV0+1}, v{vSP+3}
    s_mov_b32 s58, 0
    L_vnorm:
    """)
    if o.ff:
        A(f"""
        s_lshl_b32 s40, s29, 8
        s_or_b32 s40, s40, s2
        s_cmp_ge_u32 s40, 8
        s_cbranch_scc1 L_noref
        s_waitcnt lgkmcnt(0)
        s_or_b32 s40, s84, 1
        v_mov_b32 v6, s40
        v_mov_b32 v7, 0
        s_mov_b64 exec, 1
        global_atomic_cmpswap v{vZ}, v[6:7], s[16:17] offset:8
        s_mov_b64 exec, -1
        s_nop 1
        L_noref:
        """)
    def ksetup(c):
        if c == 2:
            A("v_and_b32 v6, 5, v1")
            for e, val in enumerate((0, 1, 4, 5)):
                A(f"v_cmp_eq_u32 vcc, {val}, v6")
                A(f"v_mov_b32 v{vACC+2*e}, 0")
                A(f"v_mov_b32 v{vACC+2*e+1}, 0")
                A(f"v_cndmask_b32 v{vMASK+e}, 0, -1, vcc")
        if c == 4:
            for e in range(8, 24):
                A(f"v_mov_b32 v{vACC+e}, 0")
        if c == 6:
            for e in range(24, 32):
                A(f"v_mov_b32 v{vACC+e}, 0")
            A(f"""
            v_lshlrev_b32 v{vG4}, 2, v11
            s_mov_b32 s37, 0x05040100
            s_mov_b32 s38, 0x07060302
            v_mov_b32 v{vL}, 0
            v_lshrrev_b32 v6, 2, v12
            v_lshl_add_u32 v{vSB}, v6, 5, s79
            v_lshl_add_u32 v{vSB}, v15, 4, v{vSB}
            v_and_b32 v6, 3, v12
            v_lshl_add_u32 v{vSB}, v6, 2, v{vSB}
            """)
    nxt = NB
    for c in range(1, 8):
        hi = min(c + wk[c], 7 + NV)
        A(f"s_waitcnt vmcnt({nxt - c - 1})")
        while nxt <= hi:
            if nxt < 8:
                kload(nxt, "s43")
            else:
                vload(nxt - 8, "s58")
            nxt += 1
        qk(c)
        ksetup(c)
    while nxt < 8 + NV:
        vload(nxt - 8, "s58")
        nxt += 1
    A(f"""
    s_mov_b32 s43, s58
    s_mov_b32 s33, s78
    s_mov_b32 s34, 1
    s_nop 4
    """)
    finalize(True)
    A(f"""
    ds_read2_b32 {vr(vS,2)}, v{vSB} offset0:0 offset1:16
    v_mov_b32 v{vU}, v{vM}
    v_add_u32 v{vSB}, 0x80, v{vSB}
    s_nop 0
    v_permlane32_swap_b32 v{vM}, v{vU}
    v_max_f32 v{vM}, v{vM}, v{vU}
    v_mov_b32 v{vU}, v{vM}
    s_nop 1
    v_permlane16_swap_b32 v{vM}, v{vU}
    v_max_f32 v{vM}, v{vM}, v{vU}
    v_mul_f32 v{vM}, s36, v{vM}
    v_max_f32 v{vM}, 0xf149f2ca, v{vM}
    s_cmp_eq_u32 s33, 0
    s_cbranch_scc1 L_vlast
    """)

    def vtop():
        for r in range(2):
            A(f"v_fma_f32 v{vE+r}, v{vS+r}, s36, -v{vM}")
    def pc(stage):
        if stage == 0:
            A(f"v_exp_f32 v{vE}, v{vE}\nv_exp_f32 v{vE+1}, v{vE+1}")
        if stage == 1:
            A(f"v_cvt_pk_bf16_f32 v{vP}, v{vE}, v{vE+1}\nv_add_f32 v{vL}, v{vL}, v{vE}\nv_add_f32 v{vL}, v{vL}, v{vE+1}")
        if stage == 2:
            for e in range(4):
                A(f"v_and_b32 v{vA+e}, v{vMASK+e}, v{vP}")
    def vconsume(c):
        if c < 4:
            pc(c)
            for w in range(4):
                A(f"v_mov_b32 v{vH+4*c+w}, v{vVB+4*c+w}")
        else:
            pvstep(c, True)

    A("L_vloop:")
    A(f"""
    v_readlane_b32 s44, v{vBT}, s34
    s_add_u32 s34, s34, 1
    s_waitcnt lgkmcnt(0)
    """)
    if o.ff:
        fast, slow, dflt = [LV[int(ch)] for ch in o.fflv]
        A(f"""
        s_sub_u32 s40, s84, s86
        s_sub_i32 s40, s40, {o.ffc0}
        s_mul_i32 s40, s40, {o.ffg}
        s_ashr_i32 s40, s40, 8
        s_add_i32 s40, s40, {o.ffr + 2}
        s_cmp_lt_i32 s34, s40
        s_cselect_b32 s81, {fast}, {slow}
        s_cmp_eq_u32 s86, 0
        s_cselect_b32 s81, {dflt}, s81
        s_cmp_gt_u32 s34, {o.ffr}
        s_cselect_b32 s40, 8, 0x80
        s_load_dword s86, s[16:17], s40
        """)
    itstamp()
    vtop()
    A(f"ds_read2_b32 {vr(vS,2)}, v{vSB} offset0:0 offset1:16")
    A(f"v_add_u32 v{vSB}, 0x80, v{vSB}")
    nxt = NV
    for c in range(8):
        hi = c + wv[c]
        A(f"s_waitcnt vmcnt({nxt - c - 1})")
        while nxt <= hi:
            if nxt == 8:
                A(f"""
                s_cmp_lg_u32 s33, 1
                s_cbranch_scc1 L_vnotpen
                v_mov_b32 v{vV0}, v{vSP+2}
                v_mov_b32 v{vV0+1}, v{vSP+3}
                s_mov_b32 s44, 0
                L_vnotpen:
                """)
            assert nxt - 8 < c, "V register reuse"
            vload(nxt & 7, "s43" if nxt < 8 else "s44")
            nxt += 1
            if (o.thr or o.ff) and nxt == hi:
                A(f"""
                s_bitcmp0_b32 s81, {c >> 1}
                s_cbranch_scc1 L_vt{c}
                s_waitcnt vmcnt({nxt - c - 2})
                L_vt{c}:
                """)
        vconsume(c)
    assert nxt == 8 + NV
    A(f"""
    s_mov_b32 s43, s44
    s_sub_u32 s33, s33, 1
    s_cmp_lg_u32 s33, 0
    s_cbranch_scc1 L_vloop
    """)
    A("L_vlast:")
    for i in range(NV, 8):
        vload(i, "s43")
    A("s_waitcnt lgkmcnt(0)")
    A("s_load_dwordx2 s[52:53], s[16:17], 0")
    A(f"""
    v_lshlrev_b32 v{vL16}, 4, v1
    s_lshl_b32 s40, s29, 12
    v_lshrrev_b32 v6, 5, v1
    v_lshl_add_u32 v{vLW}, v6, 11, s40
    v_lshl_add_u32 v{vLW}, v13, 6, v{vLW}
    v_bfe_u32 v6, v1, 4, 1
    v_lshl_add_u32 v{vLW}, v6, 4, v{vLW}
    s_lshl_b32 s40, s29, 4
    v_lshl_add_u32 v{vLM}, v15, 3, s40
    s_lshl_b32 s40, s30, 17
    s_add_u32 s46, s18, s40
    s_addc_u32 s47, s19, 0
    s_lshl_b32 s40, s31, 7
    s_lshl_b32 s41, s29, 15
    s_add_u32 s40, s40, s41
    v_lshl_add_u32 v{vRX}, v12, 12, s40
    v_lshl_add_u32 v{vRX}, v13, 4, v{vRX}
    s_lshl_b32 s40, s29, 9
    v_lshl_add_u32 v{vRX2}, v1, 3, s40
    v_and_b32 v6, 1, v1
    v_lshlrev_b32 v{vRM}, 3, v6
    s_and_b32 s40, s31, 7
    s_lshl_b32 s40, s40, 2
    s_add_u32 s40, s40, s29
    s_lshl_b32 s41, s40, 12
    s_add_u32 s48, s46, s41
    s_addc_u32 s49, s47, 0
    s_lshl_b32 s41, s40, 4
    s_add_u32 s42, s42, s41
    v_lshrrev_b32 v13, 1, v13
    v_lshl_add_u32 v{vOUT}, v13, 2, s42
    v_lshl_add_u32 v{vOUT}, v6, 9, v{vOUT}
    """)
    vtop()
    pc(0)
    A("s_nop 0")
    pc(1)
    pc(2)
    A(f"""
    v_mov_b32 v{vU}, v{vL}
    s_mov_b32 s56, 0x00ff00ff
    s_mov_b32 s57, 0xff00ff00
    v_permlane32_swap_b32 v{vL}, v{vU}
    v_add_f32 v{vL}, v{vL}, v{vU}
    v_mov_b32 v{vU}, v{vL}
    s_nop 1
    v_permlane16_swap_b32 v{vL}, v{vU}
    v_add_f32 v{vL}, v{vL}, v{vU}
    s_nop 1
    v_add_f32_dpp v{vL}, v{vL}, v{vL} row_ror:8 {DPPM}
    ds_write_b64 v{vLM}, v[{vM}:{vL}] offset:{ML_OFF}
    """)
    def tilewrite(cb):
        A("s_mov_b64 exec, s[56:57]")
        for wh in range(2):
            A(f"ds_write_b128 v{vLW}, {vr(vACC+(cb*2+wh)*4,4)} offset:{cb*512+wh*32}")
        A("s_mov_b64 exec, -1")
    for i in range(4, 8):
        A(f"s_waitcnt vmcnt({7 - i})")
        pvstep(i, False)
        if i > 4:
            tilewrite(VORD[i-1][0])
    if o.itstamps:
        A(f"""
        s_waitcnt lgkmcnt(0)
        v_writelane_b32 v89, s98, m0
        s_lshl_b32 s40, s2, 2
        s_add_u32 s40, s40, s29
        s_lshl_b32 s40, s40, 8
        s_add_u32 s40, s40, {STAMP_OFF + (1<<20)}
        v_lshlrev_b32 v{vT}, 2, v1
        v_add_u32 v{vT}, s40, v{vT}
        global_store_dword v{vT}, v89, s[18:19]
        """)
    stamp(3)
    A(f"""
    s_mov_b64 exec, s[56:57]
    s_nop 0
    ds_write_b128 v{vLW}, {vr(vACC+(VORD[7][0]*2)*4,4)} offset:{VORD[7][0]*512}
    s_nop 0
    ds_write_b128 v{vLW}, {vr(vACC+(VORD[7][0]*2+1)*4,4)} offset:{VORD[7][0]*512+32}
    s_mov_b64 exec, -1
    s_waitcnt lgkmcnt(0)
    s_cmp_lg_u32 s53, 0
    s_cbranch_scc1 L_havenonce
    s_mov_b64 exec, 1
    global_atomic_cmpswap_x2 v[{vT}:{vU}], v{vZ}, {vr(vO,4)}, s[16:17] sc0
    s_mov_b64 exec, -1
    s_waitcnt vmcnt(0)
    v_readfirstlane_b32 s52, v{vT}
    v_readfirstlane_b32 s53, v{vU}
    s_cmp_lg_u32 s53, 0
    s_cselect_b32 s52, s52, s50
    s_cselect_b32 s53, s53, s51
    L_havenonce:
    s_cmp_lt_u32 s31, {32-NP}
    s_barrier
    """)
    stamp(4)
    ML = vAE
    X = vKB
    M, Ls, T2 = vB, vB + 1, vB + 2
    O = vO
    for s in range(4):
        A(f"ds_read_b64 {vr(ML+2*s,2)}, v{vRM} offset:{ML_OFF+16*s}")
    for s in range(4):
        A(f"ds_read2st64_b64 {vr(X+4*s,4)}, v{vRX2} offset0:{8*s} offset1:{8*s+4}")
    A(f"""
    s_waitcnt lgkmcnt(4)
    v_max3_f32 v{M}, v{ML}, v{ML+2}, v{ML+4}
    v_max_f32 v{M}, v{M}, v{ML+6}
    """)
    for s in range(4):
        A(f"v_sub_f32 v{ML+2*s}, v{ML+2*s}, v{M}")
    for s in range(4):
        A(f"v_exp_f32 v{ML+2*s}, v{ML+2*s}")
    A(f"v_mul_f32 v{Ls}, v{ML}, v{ML+1}")
    for s in range(1, 4):
        A(f"v_fmac_f32 v{Ls}, v{ML+2*s}, v{ML+2*s+1}")
    A(f"""
    v_max_f32 v{Ls}, 0x0da24260, v{Ls}
    v_log_f32 v{T2}, v{Ls}
    v_rcp_f32 v{Ls}, v{Ls}
    s_waitcnt lgkmcnt(0)
    v_mul_f32 v{O}, v{ML}, v{X}
    v_mul_f32 v{O+2}, v{ML}, v{X+1}
    v_add_f32 v{T2}, v{T2}, v{M}
    """)
    for s in range(1, 8):
        A(f"v_fmac_f32 v{O}, v{ML+2*(s>>1)}, v{X+2*s}")
        A(f"v_fmac_f32 v{O+2}, v{ML+2*(s>>1)}, v{X+2*s+1}")
    A(f"""
    v_xor_b32 v{O+1}, s52, v{T2}
    v_xor_b32 v{O+3}, s53, v{T2}
    v_mul_f32 v{O}, v{O}, v{Ls}
    v_mul_f32 v{O+2}, v{O+2}, v{Ls}
    global_store_dwordx4 v{vRX}, {vr(O,4)}, s[46:47] {o.stf}
    """)
    if o.dual:
        A(f"v_add_u32 v{vRX}, 0x100000, v{vRX}")
        A(f"global_store_dwordx4 v{vRX}, {vr(O,4)}, s[46:47] sc1")
    stamp(5)
    PX = vVB
    PL = vVB + 16
    msk = lambda k: f"s[{90+2*k}:{91+2*k}]"
    A("s_cbranch_scc1 L_fin")
    A("s_xor_b32 s53, s53, s52")
    for k in range(4):
        A(f"s_mov_b64 {msk(k)}, -1")
    if not o.noack:
        A("s_waitcnt vmcnt(0)")
    if o.dual:
        A(f"s_mov_b32 s59, {o.dual}")
    A("L_poll:")
    if o.dual:
        A(f"""
        s_sub_u32 s59, s59, 1
        s_cmp_lg_u32 s59, 0
        s_cbranch_scc1 L_nosw
        v_xor_b32 v{vL16}, 0x100000, v{vL16}
        s_mov_b32 s59, {o.dual}
        L_nosw:
        """)
    for k in range(4):
        A(f"s_mov_b64 exec, {msk(k)}")
        A(f"global_load_dwordx4 {vr(PX+4*k,4)}, v{vL16}, s[48:49] offset:{1024*k} {o.ldf}")
    A("s_mov_b64 exec, -1")
    A("s_waitcnt vmcnt(0)")
    for k in range(4):
        A(f"v_xor_b32 v{PL+4+k}, v{PX+4*k+1}, v{PX+4*k+3}")
    for k in range(4):
        A(f"v_xor_b32_dpp v{PL+8+k}, v{PX+4*k+1}, v{PX+4*k+1} quad_perm:[2,3,0,1] {DPPM}")
    for k in range(4):
        A(f"v_xor_b32 v{PL+4+k}, s53, v{PL+4+k}")
    for k in range(4):
        A(f"v_or_b32 v{PL+4+k}, v{PL+4+k}, v{PL+8+k}")
    for k in range(4):
        A(f"v_or_b32_dpp v{PL+4+k}, v{PL+4+k}, v{PL+4+k} quad_perm:[1,0,3,2] {DPPM}")
    for k in range(4):
        A(f"v_or_b32_dpp v{PL+4+k}, v{PL+4+k}, v{PL+4+k} quad_perm:[2,3,0,1] {DPPM}")
    for k in range(4):
        A(f"v_or_b32_dpp v{PL+4+k}, v{PL+4+k}, v{PL+4+k} row_half_mirror {DPPM}")
    for k in range(4):
        A(f"v_cmp_ne_u32 {msk(k)}, 0, v{PL+4+k}")
    for k in range(4):
        A(f"v_xor_b32 v{PL+k}, s52, v{PX+4*k+1}")
    A(f"""
    s_or_b64 s[40:41], {msk(0)}, {msk(1)}
    s_or_b64 s[42:43], {msk(2)}, {msk(3)}
    s_or_b64 s[44:45], s[40:41], s[42:43]
    s_cbranch_scc0 L_go
    s_bcnt1_i32_b64 s40, s[40:41]
    s_bcnt1_i32_b64 s41, s[42:43]
    s_add_u32 s40, s40, s41
    s_cmp_le_u32 s40, {o.tight*8}
    s_cbranch_scc1 L_poll
    s_sleep {o.sleep}
    s_branch L_poll
    L_go:
    """)
    stamp(6)
    A(f"""
    v_max3_f32 v{M}, v{PL}, v{PL+1}, v{PL+2}
    v_max_f32 v{M}, v{M}, v{PL+3}
    v_mov_b32 v{T2}, v{M}
    s_nop 1
    v_permlane32_swap_b32 v{M}, v{T2}
    v_max_f32 v{M}, v{M}, v{T2}
    v_mov_b32 v{T2}, v{M}
    s_nop 1
    v_permlane16_swap_b32 v{M}, v{T2}
    v_max_f32 v{M}, v{M}, v{T2}
    s_nop 1
    v_max_f32_dpp v{M}, v{M}, v{M} row_ror:8 {DPPM}
    """)
    for k in range(4):
        A(f"v_sub_f32 v{PL+k}, v{PL+k}, v{M}")
    for k in range(4):
        A(f"v_exp_f32 v{PL+k}, v{PL+k}")
    A(f"""
    v_mul_f32 v{PX}, v{PL}, v{PX}
    v_mul_f32 v{PX+2}, v{PL}, v{PX+2}
    v_add_f32 v{Ls}, v{PL}, v{PL+1}
    v_add_f32 v{T2}, v{PL+2}, v{PL+3}
    v_add_f32 v{Ls}, v{Ls}, v{T2}
    """)
    for k in range(1, 4):
        A(f"v_fmac_f32 v{PX}, v{PL+k}, v{PX+4*k}")
        A(f"v_fmac_f32 v{PX+2}, v{PL+k}, v{PX+4*k+2}")
    A(f"""
    v_mov_b32 v{T2}, v{Ls}
    v_mov_b32 v{PX+1}, v{PX}
    v_mov_b32 v{PX+3}, v{PX+2}
    v_permlane32_swap_b32 v{Ls}, v{T2}
    v_permlane32_swap_b32 v{PX}, v{PX+1}
    v_permlane32_swap_b32 v{PX+2}, v{PX+3}
    v_add_f32 v{Ls}, v{Ls}, v{T2}
    v_add_f32 v{PX}, v{PX}, v{PX+1}
    v_add_f32 v{PX+2}, v{PX+2}, v{PX+3}
    v_mov_b32 v{T2}, v{Ls}
    v_mov_b32 v{PX+1}, v{PX}
    v_mov_b32 v{PX+3}, v{PX+2}
    v_permlane16_swap_b32 v{Ls}, v{T2}
    v_permlane16_swap_b32 v{PX}, v{PX+1}
    v_permlane16_swap_b32 v{PX+2}, v{PX+3}
    v_add_f32 v{Ls}, v{Ls}, v{T2}
    v_add_f32 v{PX}, v{PX}, v{PX+1}
    v_add_f32 v{PX+2}, v{PX+2}, v{PX+3}
    v_add_f32_dpp v{Ls}, v{Ls}, v{Ls} row_ror:8 {DPPM}
    v_add_f32_dpp v{PX}, v{PX}, v{PX} row_ror:8 {DPPM}
    v_add_f32_dpp v{PX+2}, v{PX+2}, v{PX+2} row_ror:8 {DPPM}
    v_rcp_f32 v{Ls}, v{Ls}
    s_mov_b64 exec, 0xff
    v_mul_f32 v{PX}, v{PX}, v{Ls}
    v_mul_f32 v{PX+2}, v{PX+2}, v{Ls}
    v_cvt_pk_bf16_f32 v{PX}, v{PX}, v{PX+2}
    global_store_dword v{vOUT}, v{PX}, s[14:15]
    """)
    A("L_fin:")
    if nst:
        A("s_mov_b64 exec, -1")
        A("s_waitcnt vmcnt(0)")
        stamp(nst - 1)
        A(f"""
        s_lshl_b32 s40, s2, 2
        s_add_u32 s40, s40, s29
        s_mul_i32 s40, s40, {nst*8}
        s_add_u32 s40, s40, {STAMP_OFF}
        v_mov_b32 v1, s40
        s_waitcnt lgkmcnt(0)
        s_mov_b64 exec, 1
        """)
        for i in range(nst):
            A(f"v_mov_b32 v2, s{sST+2*i}")
            A(f"v_mov_b32 v3, s{sST+2*i+1}")
            A(f"global_store_dwordx2 v1, v[2:3], s[18:19] offset:{8*i}")
            A(f"s_nop 1")
    A("L_end:")
    A("s_endpgm")
    lds = ML_OFF + 64
    out = HEADER
    out += f"; @launch grid=(256,1,1) block=(256,1,1) lds={lds}\n"
    out += f""".amdgcn_target "amdgcn-amd-amdhsa--gfx950"
.text
.globl {KN}
.p2align 8
.type {KN},@function
{KN}:
"""
    out += A.text()
    acc = min(256, (o.vgpr + 3) // 4 * 4)
    out += f""".section .rodata,"a"
.p2align 6
.amdhsa_kernel {KN}
  .amdhsa_next_free_vgpr {o.vgpr}
  .amdhsa_next_free_sgpr 102
  .amdhsa_accum_offset {acc}
  .amdhsa_group_segment_fixed_size 0
  .amdhsa_kernarg_size 64
  .amdhsa_user_sgpr_count 2
  .amdhsa_user_sgpr_kernarg_segment_ptr 1
  .amdhsa_system_sgpr_workgroup_id_x 1
.end_amdhsa_kernel
"""
    return out

if __name__ == "__main__":
    ap = argparse.ArgumentParser()
    ap.add_argument("out")
    ap.add_argument("--map", type=int, default=1)
    ap.add_argument("--wk", default="65656565")
    ap.add_argument("--wv", default="65656565")
    ap.add_argument("--kord", default="D")
    ap.add_argument("--vord", default="D")
    ap.add_argument("--vgpr", type=int, default=512)
    ap.add_argument("--sleep", type=int, default=6)
    ap.add_argument("--tight", type=int, default=4)
    ap.add_argument("--sort", type=int, default=1)
    ap.add_argument("--stf", default="sc1")
    ape = ap.add_argument("--ldf", default="sc1")
    ap.add_argument("--noack", action="store_true")
    ap.add_argument("--np", type=int, default=8)
    ap.add_argument("--dual", type=int, default=0)
    ap.add_argument("--skew", default="")
    ap.add_argument("--thr", default="")
    ap.add_argument("--ff", action="store_true")
    ap.add_argument("--fflv", default="032")
    ap.add_argument("--ffc0", type=int, default=20)
    ap.add_argument("--ffg", type=int, default=32)
    ap.add_argument("--ffr", type=int, default=2)
    ap.add_argument("--thrk", default="")
    ap.add_argument("--stamps", type=int, default=0)
    ap.add_argument("--itstamps", action="store_true")
    o = ap.parse_args()
    open(o.out, "w").write(gen(o))
```

```python
import sys, argparse

KN = "standalone__paged_block_table_kv_pagedattention__decode_kernel"
HEADER = open("standalone__paged_block_table_kv_pagedattention__decode.s.ref").read().split("; Override launch")[0]
KV_BYTES = 4100 * 65536
STAMP_OFF = 512 << 20
ML_OFF = 16384
SC_OFF = 0

class Asm:
    def __init__(self):
        self.l = []
    def __call__(self, s):
        for line in s.strip("\n").split("\n"):
            t = line.strip()
            if not t:
                continue
            self.l.append(t if t.endswith(":") else "    " + t)
    def text(self):
        return "\n".join(self.l) + "\n"

def vr(b, n):
    return f"v[{b}:{b+n-1}]"
DPPM = "row_mask:0xf bank_mask:0xf"

def gen(o):
    A = Asm()
    fl = " nt"
    STRIDE = 128
    NP = 8
    wk = [int(ch, 16) for ch in o.wk]
    wv = [int(ch, 16) for ch in o.wv]
    assert len(wk) == 8 and len(wv) == 8 and max(wk) <= 7 and max(wv) <= 7
    vK0, vV0 = 2, 4
    vM, vL = 8, 9
    vT, vU, vX2, vX3 = 10, 11, 12, 13
    vP = 14
    vS = 16
    vD1 = 20
    vMASK = 24
    vA = 28
    vAE = 40
    vB = 56
    vACC = 200
    vQ = 72
    vG4 = 88
    vLW, vLM, vL16, vRX, vRX2, vRM, vSA, vSB, vOUT, vZ = range(90, 100)
    vKB = 100
    vVB = 132
    vO = 164
    vSP = 168
    vH = 176
    vBT = 196
    vE = 192
    KORD = {"N": [(i >> 1, i & 1) for i in range(8)],
            "M": [(i & 3, i >> 2) for i in range(8)],
            "D": [(0,0),(1,1),(2,0),(3,1),(1,0),(0,1),(3,0),(2,1)],
            "E": [(0,0),(2,1),(1,0),(3,1),(2,0),(0,1),(3,0),(1,1)]}[o.kord]
    KFIRST = {hp: min(i for i in range(8) if KORD[i][1] == hp) for hp in (0, 1)}
    VORD = {"D": [(0,0),(1,1),(2,0),(3,1),(1,0),(0,1),(3,0),(2,1)],
            "I": [(0,0),(3,1),(2,0),(1,1),(1,0),(2,1),(3,0),(0,1)],
            "J": [(0,0),(2,0),(1,1),(3,1),(1,0),(3,0),(0,1),(2,1)]}[o.vord]
    PARTNER = {i: [k for k in range(4) if VORD[k][0] == VORD[i][0]][0] for i in range(4, 8)}
    nst = o.stamps
    sST = 60
    def stamp(i):
        if nst and i < nst:
            A(f"s_memrealtime s[{sST+2*i}:{sST+2*i+1}]")
    def itstamp():
        if o.itstamps:
            A("v_writelane_b32 v89, s98, m0\ns_add_u32 m0, m0, 1\ns_memrealtime s[98:99]")

    def kload(i, sreg):
        j, hp = KORD[i]
        A(f"buffer_load_dwordx4 {vr(vKB+4*i,4)}, v{vK0+hp}, s[20:23], {sreg} offen offset:{128*j}{fl}")
    def vload(i, sreg):
        cb, t = VORD[i]
        A(f"buffer_load_dwordx4 {vr(vVB+4*i,4)}, v{vV0+t}, s[24:27], {sreg} offen offset:{128*cb}{fl}")
    def qk(c):
        j, hp = KORD[c]
        d = vD1 if hp else vS
        cc = "0" if c == KFIRST[hp] else vr(d, 4)
        A(f"v_mfma_f32_16x16x32_bf16 {vr(d,4)}, {vr(vKB+4*c,4)}, {vr(vQ+4*j,4)}, {cc}")
    def pvstep(i, held):
        cb, t = VORD[i]
        k = PARTNER[i]
        me, other = vVB + 4 * i, (vH if held else vVB) + 4 * k
        l0, l1 = (me, other) if t == 0 else (other, me)
        bb = vB + 8 * (i & 1)
        ps, ms = [], []
        for w in range(4):
            ps.append(f"v_perm_b32 v{bb+2*w}, v{l1+w}, v{l0+w}, s37")
            ps.append(f"v_perm_b32 v{bb+2*w+1}, v{l1+w}, v{l0+w}, s38")
            acc = vACC + (cb * 2 + (w >> 1)) * 4
            ms.append(f"v_mfma_f32_16x16x16_bf16 {vr(acc,4)}, {vr(vA+2*(w&1),2)}, {vr(bb+2*w,2)}, {vr(acc,4)}")
        for x in ps[:4] + [ms[0]] + ps[4:6] + [ms[1]] + ps[6:8] + [ms[2], "s_nop 0", ms[3]]:
            A(x)

    def finalize(mask):
        for r in range(4):
            A(f"v_permlane32_swap_b32 v{vS+r}, v{vD1+r}")
        for r in range(4):
            A(f"v_mov_b32_dpp v{vD1+r}, v{vD1+r} quad_perm:[1,1,3,3] {DPPM}")
        for r in range(4):
            A(f"v_add_f32_dpp v{vE+r}, v{vS+r}, v{vD1+r} quad_perm:[0,0,2,2] {DPPM}")
        if mask:
            A(f"v_mov_b32 v{vU}, 0xff800000")
            for r in range(4):
                A(f"v_cmp_gt_i32 vcc, s35, v{vG4}")
                A(f"s_sub_u32 s35, s35, 1")
                A(f"s_nop 0")
                A(f"v_cndmask_b32 v{vE+r}, v{vU}, v{vE+r}, vcc")
        A(f"""
        s_mov_b64 exec, s[56:57]
        ds_write_b128 v{vSA}, {vr(vE,4)}
        s_mov_b64 exec, -1
        v_max3_f32 v{vM}, v{vM}, v{vE}, v{vE+1}
        v_add_u32 v{vSA}, 0x80, v{vSA}
        v_max3_f32 v{vM}, v{vM}, v{vE+2}, v{vE+3}
        """)

    A("s_cmp_ge_u32 s2, 256")
    A("s_cbranch_scc1 L_end")
    stamp(0)
    A(f"""
    s_load_dwordx8 s[4:11], s[0:1], 0
    s_load_dwordx8 s[12:19], s[0:1], 32
    v_lshrrev_b32 v10, 6, v0
    v_and_b32 v1, 63, v0
    v_readfirstlane_b32 s29, v10
    """)
    if o.map == 1:
        A("s_lshr_b32 s30, s2, 5\ns_and_b32 s31, s2, 31")
    elif o.map == 0:
        A("s_and_b32 s30, s2, 7\ns_lshr_b32 s31, s2, 3")
    else:
        A("s_bfe_u32 s30, s2, 0x30003\ns_lshr_b32 s31, s2, 6\ns_lshl_b32 s31, s31, 3\ns_and_b32 s40, s2, 7\ns_or_b32 s31, s31, s40")
    if o.sort == 2:
        BTADDR = """s_lshl_b32 s40, s31, 2
        v_lshl_add_u32 v6, v10, 9, s40
        v_lshl_add_u32 v6, v11, 7, v6
        v_add_u32 v7, 0x2000, v6"""
        BTLD2 = f"global_load_dword v{vBT+1}, v7, s[10:11]"
    else:
        BTADDR = "v_and_b32 v7, 31, v1\nv_lshl_add_u32 v6, v7, 9, s34"
        BTLD2 = ""
    A(f"""
    v_and_b32 v10, 15, v1
    v_lshrrev_b32 v11, 4, v1
    s_lshl_b32 s32, s29, 5
    s_add_u32 s32, s32, s31
    s_lshl_b32 s34, s32, 2
    s_lshl_b32 s41, s30, 9
    v_bfe_u32 v15, v1, 1, 1
    v_lshlrev_b32 v12, 9, v15
    v_lshl_add_u32 v12, v11, 4, v12
    v_and_b32 v14, 1, v1
    v_lshl_add_u32 v12, v14, 6, v12
    s_lshl_b32 s42, s30, 10
    v_add_u32 v12, s42, v12
    v_and_b32 v{vK0}, 7, v1
    v_lshlrev_b32 v{vK0}, 12, v{vK0}
    v_bfe_u32 v{vK0+1}, v1, 3, 1
    v_lshl_add_u32 v{vK0}, v{vK0+1}, 6, v{vK0}
    v_lshl_add_u32 v{vK0}, v11, 4, v{vK0}
    v_add_u32 v{vK0}, s41, v{vK0}
    v_add_u32 v{vK0+1}, 0x8000, v{vK0}
    s_mov_b32 s22, {KV_BYTES}
    s_mov_b32 s23, 0x20000
    s_mov_b32 s36, 0x3db8aa3b
    {BTADDR}
    s_waitcnt lgkmcnt(0)
    s_load_dword s43, s[10:11], s34
    s_load_dword s28, s[12:13], 0
    global_load_dword v{vBT}, v6, s[10:11]
    {BTLD2}
    """)
    stamp(1)
    for j in range(4):
        A(f"global_load_dwordx4 {vr(vQ+4*j,4)}, v12, s[4:5] offset:{128*j}")
    A(f"""
    s_mov_b32 s20, s6
    s_and_b32 s21, s7, 0xffff
    s_mov_b32 s24, s8
    s_and_b32 s25, s9, 0xffff
    s_mov_b32 s26, {KV_BYTES}
    s_mov_b32 s27, 0x20000
    s_waitcnt lgkmcnt(0)
    s_lshl_b32 s43, s43, 16
    s_cmp_lt_i32 s28, 1
    s_cselect_b32 s36, 0, s36
    s_cselect_b32 s28, 0x10000, s28
    s_min_i32 s28, s28, 0x10000
    s_sub_u32 s33, s28, 1
    s_lshr_b32 s33, s33, 11
    s_cbranch_scc0 L_skip0
    """)
    stamp(2)
    LV = [0x0, 0x2, 0xa, 0xe, 0xf]
    THR = ""
    if o.thr:
        tab = sum(LV[int(ch)] << (4 * i) for i, ch in enumerate(o.thr))
        THR = f"""s_getreg_b32 s40, hwreg(HW_REG_XCC_ID)
        s_and_b32 s40, s40, 7
        s_lshl_b32 s40, s40, 2
        s_lshr_b32 s81, {tab:#x}, s40"""
        if o.thrk:
            tabk = sum(LV[int(ch)] << (4 * i) for i, ch in enumerate(o.thrk))
            THR += f"\ns_lshr_b32 s80, {tabk:#x}, s40"
    TL = ""
    if o.tlb:
        TL = """s_lshr_b32 s56, s2, 3
        s_lshl_b32 s56, s56, 2
        s_add_u32 s56, s56, s29
        s_lshl_b32 s56, s56, 21
        s_load_dword s100, s[6:7], s56
        s_load_dword s101, s[8:9], s56"""
    if o.icp:
        TL += """
        s_getpc_b64 s[88:89]
        v_lshlrev_b32 v6, 7, v1
        global_load_dword v199, v6, s[88:89]"""
    SKEW = ""
    if o.skew:
        d = [int(x) for x in o.skew.split(",")]
        assert len(d) == 8 and sum(d) == 0
        cum = [0]
        for x in d: cum.append(cum[-1] + x)
        off = -min(cum)
        assert max(cum) + off <= 15
        tab = sum(((cum[i] + off) & 15) << (4 * i) for i in range(8))
        lo = max(0, -min(d)) * 128
        hi = (16 - max(d) - 1) * 128 + 128
        SKEW = f"""s_and_b32 s54, s32, 7
        s_lshl_b32 s54, s54, 2
        s_lshr_b32 s55, {tab:#x}, s54
        s_and_b32 s55, s55, 15
        s_add_u32 s54, s54, 4
        s_and_b32 s54, s54, 31
        s_lshr_b32 s54, {tab:#x}, s54
        s_and_b32 s54, s54, 15
        s_sub_u32 s44, s40, {lo}
        s_cmp_le_u32 s44, {hi - lo}
        s_cselect_b32 s55, s55, {off}
        s_cselect_b32 s54, s54, {off}
        s_add_u32 s45, s45, s55
        s_add_u32 s35, s35, s54
        s_sub_u32 s45, s45, {off}
        s_sub_u32 s35, s35, {off}"""
    NB = 1 + wk[0]
    for i in range(NB):
        kload(i, "s43")
    A(f"""
    L_skip0:
    {TL}
    s_mov_b32 s58, s43
    s_mov_b32 s78, s33
    s_lshl_b32 s40, s33, 11
    s_sub_u32 s40, s28, s40
    s_mul_i32 s45, s40, s32
    s_add_u32 s35, s45, s40
    s_lshr_b32 s45, s45, 7
    s_lshr_b32 s35, s35, 7
    {SKEW}
    s_sub_u32 s35, s35, s45
    s_lshr_b32 s40, s45, 4
    s_lshl_b32 s54, s33, 7
    s_add_u32 s40, s40, s54
    s_lshl_b32 s40, s40, 2
    s_and_b32 s40, s40, 0x3ffc
    s_add_u32 s44, s40, 4
    s_and_b32 s44, s44, 0x3ffc
    s_load_dword s54, s[10:11], s40
    s_load_dword s55, s[10:11], s44
    s_and_b32 s45, s45, 15
    s_memrealtime s[50:51]
    """)
    if o.sort == 2:
        kq, kt, ka, kb = 16, 17, 18, 19
        R = [20, 21, 22, 23]
        A(f"""
        s_mov_b32 s59, s33
        s_mov_b32 s39, 0
        v_mov_b32 v7, 0
        v_mov_b32 v{vBT+2}, 0
        s_waitcnt vmcnt({NB + 4})
        L_sort:
        v_cmp_gt_i32 vcc, s59, v10
        v_mov_b32 v{kt}, 0x800000
        v_and_b32 v{kq}, 0xffff, v{vBT}
        v_add_u32 v{kq}, 1, v{kq}
        v_cndmask_b32 v{kq}, v{kt}, v{kq}, vcc
        v_cmp_ne_u32 vcc, v7, v10
        v_lshlrev_b32 v{vBT}, 16, v{vBT}
        v_mov_b32 v7, -1
        v_cndmask_b32 v{kq}, 0, v{kq}, vcc
        v_lshl_or_b32 v{kq}, v{kq}, 6, v1
        v_mov_b32 v{R[0]}, v{kq}
        v_mov_b32 v{R[1]}, v{kq}
        s_nop 1
        v_permlane16_swap_b32 v{R[0]}, v{R[1]}
        v_mov_b32 v{R[2]}, v{R[0]}
        v_mov_b32 v{R[3]}, v{R[1]}
        s_nop 0
        v_permlane32_swap_b32 v{R[0]}, v{R[2]}
        v_permlane32_swap_b32 v{R[1]}, v{R[3]}
        """)
        for j in range(4):
            acc = ka if j < 2 else kb
            A(f"v_sub_u32 v{kt}, v{R[j]}, v{kq}")
            A(f"v_alignbit_b32 v{acc}, v{acc}, v{kt}, 31")
            for r in range(1, 16):
                A(f"v_sub_u32_dpp v{kt}, v{R[j]}, v{kq} row_ror:{r} {DPPM}")
                A(f"v_alignbit_b32 v{acc}, v{acc}, v{kt}, 31")
        A(f"""
        v_bcnt_u32_b32 v{ka}, v{ka}, 0
        v_bcnt_u32_b32 v{ka}, v{kb}, v{ka}
        v_and_b32 v{kt}, 3, v{ka}
        v_cmp_eq_u32 vcc, s29, v{kt}
        v_and_b32 v{ka}, 60, v{ka}
        v_add_u32 v{ka}, s39, v{ka}
        v_mov_b32 v{kt}, 0xfc
        v_cndmask_b32 v{ka}, v{kt}, v{ka}, vcc
        ds_permute_b32 v{kt}, v{ka}, v{vBT}
        v_mov_b32 v{vBT}, v{vBT+1}
        s_sub_i32 s59, s59, 16
        s_add_u32 s39, s39, 64
        s_cmp_gt_i32 s59, 0
        s_waitcnt lgkmcnt(0)
        v_or_b32 v{vBT+2}, v{vBT+2}, v{kt}
        s_cbranch_scc1 L_sort
        v_mov_b32 v{vBT}, v{vBT+2}
        """)
    else:
        kq, ko, kt, ka = 16, 17, 18, 19
        A(f"""
        v_cmp_gt_u32 vcc, s33, v7
        s_waitcnt vmcnt({NB + 4})
        v_mov_b32 v{kt}, 0x1000000
        v_and_b32 v{kq}, 0xffff, v{vBT}
        v_add_u32 v{kq}, 1, v{kq}
        v_cndmask_b32 v{kq}, v{kt}, v{kq}, vcc
        v_cmp_ne_u32 vcc, 0, v7
        v_lshlrev_b32 v{vBT}, 16, v{vBT}
        v_mov_b32 v{ka}, 0
        v_cndmask_b32 v{kq}, 0, v{kq}, vcc
        {"" if o.sort else f"v_mov_b32 v{kq}, 0"}
        v_lshl_or_b32 v{kq}, v{kq}, 5, v7
        v_mov_b32 v{ko}, v{kq}
        v_mov_b32 v{kt}, v{kq}
        s_nop 1
        v_permlane16_swap_b32 v{ko}, v{kt}
        s_nop 1
        v_permlane32_swap_b32 v{ko}, v{kt}
        s_nop 0
        v_sub_u32 v{kt}, v{ko}, v{kq}
        v_alignbit_b32 v{ka}, v{ka}, v{kt}, 31
        """)
        for r in range(1, 16):
            A(f"v_sub_u32_dpp v{kt}, v{ko}, v{kq} row_ror:{r} {DPPM}")
            A(f"v_alignbit_b32 v{ka}, v{ka}, v{kt}, 31")
        A(f"""
        v_bcnt_u32_b32 v{ka}, v{ka}, 0
        v_mov_b32 v{kt}, v{ka}
        v_and_b32 v{ko}, 32, v1
        s_nop 0
        v_permlane32_swap_b32 v{ka}, v{kt}
        v_add3_u32 v{ka}, v{ka}, v{kt}, v{ko}
        v_lshlrev_b32 v{ka}, 2, v{ka}
        ds_permute_b32 v{vBT}, v{ka}, v{vBT}
        """)
    A(f"""
    s_mov_b32 s34, 1
    {THR}
    v_mov_b32 v{vM}, 0xff7fffff
    s_lshl_b32 s79, s29, 12
    v_lshl_add_u32 v{vSA}, v11, 5, s79
    v_lshl_add_u32 v{vSA}, v15, 4, v{vSA}
    s_mov_b32 s56, 0x00050005
    s_mov_b32 s57, 0x00050005
    v_mov_b32 v{vZ}, 0
    s_waitcnt lgkmcnt(0)
    s_bitset1_b32 s51, 31
    s_bitset0_b32 s50, 31
    v_mov_b32 v{vO}, s50
    v_mov_b32 v{vO+1}, s51
    v_mov_b32 v{vO+2}, 0
    v_mov_b32 v{vO+3}, 0
    s_lshl_b32 s40, s2, 2
    s_add_u32 s40, s40, s29
    s_cmp_lg_u32 s40, 1023
    s_cbranch_scc1 L_nononce
    s_mov_b64 exec, 1
    global_atomic_cmpswap_x2 v{vZ}, {vr(vO,4)}, s[16:17]
    s_mov_b64 exec, -1
    L_nononce:
    s_lshl_b32 s40, s45, 12
    s_lshl_b32 s54, s54, 16
    s_add_u32 s54, s54, s40
    s_sub_u32 s55, s55, 1
    s_lshl_b32 s55, s55, 16
    s_add_u32 s55, s55, s40
    s_sub_u32 s45, 16, s45
    v_mov_b32 v{vSP+4}, s54
    v_mov_b32 v{vSP+5}, s55
    v_bfrev_b32 v{vSP+6}, 1
    """)
    def special(i):
        src = vK0 + i
        A(f"""
        v_bfe_u32 v6, v{src}, 12, 4
        v_cmp_le_u32 vcc, s45, v6
        v_cmp_gt_u32 s[82:83], s35, v6
        s_nop 0
        v_cndmask_b32 v{vSP+i}, v{vSP+4}, v{vSP+5}, vcc
        v_add_u32 v{vSP+i}, v{vSP+i}, v{src}
        v_cndmask_b32 v{vSP+i}, v{vSP+6}, v{vSP+i}, s[82:83]
        """)
    special(0)
    special(1)
    A(f"""
    s_cmp_lg_u32 s33, 0
    s_cbranch_scc1 L_k0
    v_mov_b32 v{vK0}, v{vSP}
    v_mov_b32 v{vK0+1}, v{vSP+1}
    s_mov_b32 s43, 0
    """)
    for i in range(NB):
        kload(i, "s43")
    A(f"s_waitcnt vmcnt({NB-1})")
    qk(0)
    A("s_branch L_klast")
    A("L_k0:")
    if o.itstamps:
        A("s_mov_b32 m0, 0\nv_mov_b32 v89, 0\ns_memrealtime s[98:99]")
    A(f"s_waitcnt vmcnt({NB-1})")
    qk(0)

    A("L_kloop:")
    nxt = NB
    for c in list(range(1, 8)) + [8]:
        hi = c + wk[c & 7]
        if c == 1:
            assert nxt <= 8
            A(f"v_readlane_b32 s44, v{vBT}, s34\ns_add_u32 s34, s34, 1")
            if o.itstamps:
                A("s_waitcnt lgkmcnt(0)")
            itstamp()
            if hi >= 8:
                A("s_nop 1")
        A(f"s_waitcnt vmcnt({nxt - c - 1})")
        nis = 0
        while nxt <= hi:
            if nxt == 8:
                A(f"""
                s_cmp_lg_u32 s33, 1
                s_cbranch_scc1 L_knotpen
                v_mov_b32 v{vK0}, v{vSP}
                v_mov_b32 v{vK0+1}, v{vSP+1}
                s_mov_b32 s44, 0
                L_knotpen:
                """)
            assert nxt - 8 < c, "K register reuse"
            kload(nxt & 7, "s43" if nxt < 8 else "s44")
            nxt += 1
            nis += 1
            if o.thrk and nxt == hi:
                A(f"""
                s_bitcmp0_b32 s80, {(c >> 1) & 3}
                s_cbranch_scc1 L_kt{c}
                s_waitcnt vmcnt({nxt - c - 2})
                L_kt{c}:
                """)
        if c == 8:
            A(f"s_mov_b32 s43, s44\ns_sub_u32 s33, s33, 1\ns_cmp_lg_u32 s33, 0")
            A(f"s_nop {max(0, 7 - 4 - nis)}")
            finalize(False)
        qk(c & 7)
    assert nxt == 8 + NB
    A("s_cbranch_scc1 L_kloop")
    A("L_klast:")
    stamp(7)
    NV = wv[7]
    if o.ff:
        A("s_memrealtime s[84:85]\ns_mov_b32 s86, 0")
    A(f"""
    v_lshrrev_b32 v12, 3, v1
    v_and_b32 v13, 7, v1
    v_lshlrev_b32 v{vV0}, 12, v12
    v_lshl_add_u32 v{vV0}, v13, 4, v{vV0}
    v_add_u32 v{vV0}, s41, v{vV0}
    v_add_u32 v{vV0+1}, 0x8000, v{vV0}
    """)
    special(2)
    special(3)
    A(f"""
    s_cmp_lg_u32 s78, 0
    s_cbranch_scc1 L_vnorm
    v_mov_b32 v{vV0}, v{vSP+2}
    v_mov_b32 v{vV0+1}, v{vSP+3}
    s_mov_b32 s58, 0
    L_vnorm:
    """)
    if o.ff:
        A(f"""
        s_lshl_b32 s40, s29, 8
        s_or_b32 s40, s40, s2
        s_cmp_ge_u32 s40, 8
        s_cbranch_scc1 L_noref
        s_waitcnt lgkmcnt(0)
        s_or_b32 s40, s84, 1
        v_mov_b32 v6, s40
        v_mov_b32 v7, 0
        s_mov_b64 exec, 1
        global_atomic_cmpswap v{vZ}, v[6:7], s[16:17] offset:8
        s_mov_b64 exec, -1
        s_nop 1
        L_noref:
        """)
    def ksetup(c):
        if c == 2:
            A("v_and_b32 v6, 5, v1")
            for e, val in enumerate((0, 1, 4, 5)):
                A(f"v_cmp_eq_u32 vcc, {val}, v6")
                A(f"v_mov_b32 v{vACC+2*e}, 0")
                A(f"v_mov_b32 v{vACC+2*e+1}, 0")
                A(f"v_cndmask_b32 v{vMASK+e}, 0, -1, vcc")
        if c == 4:
            for e in range(8, 24):
                A(f"v_mov_b32 v{vACC+e}, 0")
        if c == 6:
            for e in range(24, 32):
                A(f"v_mov_b32 v{vACC+e}, 0")
            A(f"""
            v_lshlrev_b32 v{vG4}, 2, v11
            s_mov_b32 s37, 0x05040100
            s_mov_b32 s38, 0x07060302
            v_mov_b32 v{vL}, 0
            v_lshrrev_b32 v6, 2, v12
            v_lshl_add_u32 v{vSB}, v6, 5, s79
            v_lshl_add_u32 v{vSB}, v15, 4, v{vSB}
            v_and_b32 v6, 3, v12
            v_lshl_add_u32 v{vSB}, v6, 2, v{vSB}
            """)
    nxt = NB
    for c in range(1, 8):
        hi = min(c + wk[c], 7 + NV)
        A(f"s_waitcnt vmcnt({nxt - c - 1})")
        while nxt <= hi:
            if nxt < 8:
                kload(nxt, "s43")
            else:
                vload(nxt - 8, "s58")
            nxt += 1
        qk(c)
        ksetup(c)
    while nxt < 8 + NV:
        vload(nxt - 8, "s58")
        nxt += 1
    A(f"""
    s_mov_b32 s43, s58
    s_mov_b32 s33, s78
    s_mov_b32 s34, 1
    s_nop 4
    """)
    finalize(True)
    A(f"""
    ds_read2_b32 {vr(vS,2)}, v{vSB} offset0:0 offset1:16
    v_mov_b32 v{vU}, v{vM}
    v_add_u32 v{vSB}, 0x80, v{vSB}
    s_nop 0
    v_permlane32_swap_b32 v{vM}, v{vU}
    v_max_f32 v{vM}, v{vM}, v{vU}
    v_mov_b32 v{vU}, v{vM}
    s_nop 1
    v_permlane16_swap_b32 v{vM}, v{vU}
    v_max_f32 v{vM}, v{vM}, v{vU}
    v_mul_f32 v{vM}, s36, v{vM}
    v_max_f32 v{vM}, 0xf149f2ca, v{vM}
    s_cmp_eq_u32 s33, 0
    s_cbranch_scc1 L_vlast
    """)

    def vtop():
        for r in range(2):
            A(f"v_fma_f32 v{vE+r}, v{vS+r}, s36, -v{vM}")
    def pc(stage):
        if stage == 0:
            A(f"v_exp_f32 v{vE}, v{vE}\nv_exp_f32 v{vE+1}, v{vE+1}")
        if stage == 1:
            A(f"v_cvt_pk_bf16_f32 v{vP}, v{vE}, v{vE+1}\nv_add_f32 v{vL}, v{vL}, v{vE}\nv_add_f32 v{vL}, v{vL}, v{vE+1}")
        if stage == 2:
            for e in range(4):
                A(f"v_and_b32 v{vA+e}, v{vMASK+e}, v{vP}")
    def vconsume(c):
        if c < 4:
            pc(c)
            for w in range(4):
                A(f"v_mov_b32 v{vH+4*c+w}, v{vVB+4*c+w}")
        else:
            pvstep(c, True)

    A("L_vloop:")
    A(f"""
    v_readlane_b32 s44, v{vBT}, s34
    s_add_u32 s34, s34, 1
    s_waitcnt lgkmcnt(0)
    """)
    if o.ff:
        fast, slow, dflt = [LV[int(ch)] for ch in o.fflv]
        A(f"""
        s_sub_u32 s40, s84, s86
        s_sub_i32 s40, s40, {o.ffc0}
        s_mul_i32 s40, s40, {o.ffg}
        s_ashr_i32 s40, s40, 8
        s_add_i32 s40, s40, {o.ffr + 2}
        s_cmp_lt_i32 s34, s40
        s_cselect_b32 s81, {fast}, {slow}
        s_cmp_eq_u32 s86, 0
        s_cselect_b32 s81, {dflt}, s81
        s_cmp_gt_u32 s34, {o.ffr}
        s_cselect_b32 s40, 8, 0x80
        s_load_dword s86, s[16:17], s40
        """)
    itstamp()
    vtop()
    A(f"ds_read2_b32 {vr(vS,2)}, v{vSB} offset0:0 offset1:16")
    A(f"v_add_u32 v{vSB}, 0x80, v{vSB}")
    nxt = NV
    for c in range(8):
        hi = c + wv[c]
        A(f"s_waitcnt vmcnt({nxt - c - 1})")
        while nxt <= hi:
            if nxt == 8:
                A(f"""
                s_cmp_lg_u32 s33, 1
                s_cbranch_scc1 L_vnotpen
                v_mov_b32 v{vV0}, v{vSP+2}
                v_mov_b32 v{vV0+1}, v{vSP+3}
                s_mov_b32 s44, 0
                L_vnotpen:
                """)
            assert nxt - 8 < c, "V register reuse"
            vload(nxt & 7, "s43" if nxt < 8 else "s44")
            nxt += 1
            if (o.thr or o.ff) and nxt == hi:
                A(f"""
                s_bitcmp0_b32 s81, {c >> 1}
                s_cbranch_scc1 L_vt{c}
                s_waitcnt vmcnt({nxt - c - 2})
                L_vt{c}:
                """)
        vconsume(c)
    assert nxt == 8 + NV
    A(f"""
    s_mov_b32 s43, s44
    s_sub_u32 s33, s33, 1
    s_cmp_lg_u32 s33, 0
    s_cbranch_scc1 L_vloop
    """)
    A("L_vlast:")
    for i in range(NV, 8):
        vload(i, "s43")
    A("s_waitcnt lgkmcnt(0)")
    A("s_load_dwordx2 s[52:53], s[16:17], 0")
    A(f"""
    v_lshlrev_b32 v{vL16}, 4, v1
    s_lshl_b32 s40, s29, 12
    v_lshrrev_b32 v6, 5, v1
    v_lshl_add_u32 v{vLW}, v6, 11, s40
    v_lshl_add_u32 v{vLW}, v13, 6, v{vLW}
    v_bfe_u32 v6, v1, 4, 1
    v_lshl_add_u32 v{vLW}, v6, 4, v{vLW}
    s_lshl_b32 s40, s29, 4
    v_lshl_add_u32 v{vLM}, v15, 3, s40
    s_lshl_b32 s40, s30, 17
    s_add_u32 s46, s18, s40
    s_addc_u32 s47, s19, 0
    s_lshl_b32 s40, s31, 7
    s_lshl_b32 s41, s29, 15
    s_add_u32 s40, s40, s41
    v_lshl_add_u32 v{vRX}, v12, 12, s40
    v_lshl_add_u32 v{vRX}, v13, 4, v{vRX}
    s_lshl_b32 s40, s29, 9
    v_lshl_add_u32 v{vRX2}, v1, 3, s40
    v_and_b32 v6, 1, v1
    v_lshlrev_b32 v{vRM}, 3, v6
    s_and_b32 s40, s31, 7
    s_lshl_b32 s40, s40, 2
    s_add_u32 s40, s40, s29
    s_lshl_b32 s41, s40, 12
    s_add_u32 s48, s46, s41
    s_addc_u32 s49, s47, 0
    s_lshl_b32 s41, s40, 4
    s_add_u32 s42, s42, s41
    v_lshrrev_b32 v13, 1, v13
    v_lshl_add_u32 v{vOUT}, v13, 2, s42
    v_lshl_add_u32 v{vOUT}, v6, 9, v{vOUT}
    """)
    vtop()
    pc(0)
    A("s_nop 0")
    pc(1)
    pc(2)
    A(f"""
    v_mov_b32 v{vU}, v{vL}
    s_mov_b32 s56, 0x00ff00ff
    s_mov_b32 s57, 0xff00ff00
    v_permlane32_swap_b32 v{vL}, v{vU}
    v_add_f32 v{vL}, v{vL}, v{vU}
    v_mov_b32 v{vU}, v{vL}
    s_nop 1
    v_permlane16_swap_b32 v{vL}, v{vU}
    v_add_f32 v{vL}, v{vL}, v{vU}
    s_nop 1
    v_add_f32_dpp v{vL}, v{vL}, v{vL} row_ror:8 {DPPM}
    ds_write_b64 v{vLM}, v[{vM}:{vL}] offset:{ML_OFF}
    """)
    def tilewrite(cb):
        A("s_mov_b64 exec, s[56:57]")
        for wh in range(2):
            A(f"ds_write_b128 v{vLW}, {vr(vACC+(cb*2+wh)*4,4)} offset:{cb*512+wh*32}")
        A("s_mov_b64 exec, -1")
    for i in range(4, 8):
        A(f"s_waitcnt vmcnt({7 - i})")
        pvstep(i, False)
        if i > 4:
            tilewrite(VORD[i-1][0])
    if o.itstamps:
        A(f"""
        s_waitcnt lgkmcnt(0)
        v_writelane_b32 v89, s98, m0
        s_lshl_b32 s40, s2, 2
        s_add_u32 s40, s40, s29
        s_lshl_b32 s40, s40, 8
        s_add_u32 s40, s40, {STAMP_OFF + (1<<20)}
        v_lshlrev_b32 v{vT}, 2, v1
        v_add_u32 v{vT}, s40, v{vT}
        global_store_dword v{vT}, v89, s[18:19]
        """)
    stamp(3)
    A(f"""
    s_mov_b64 exec, s[56:57]
    s_nop 0
    ds_write_b128 v{vLW}, {vr(vACC+(VORD[7][0]*2)*4,4)} offset:{VORD[7][0]*512}
    s_nop 0
    ds_write_b128 v{vLW}, {vr(vACC+(VORD[7][0]*2+1)*4,4)} offset:{VORD[7][0]*512+32}
    s_mov_b64 exec, -1
    s_waitcnt lgkmcnt(0)
    s_cmp_lg_u32 s53, 0
    s_cbranch_scc1 L_havenonce
    s_mov_b64 exec, 1
    global_atomic_cmpswap_x2 v[{vT}:{vU}], v{vZ}, {vr(vO,4)}, s[16:17] sc0
    s_mov_b64 exec, -1
    s_waitcnt vmcnt(0)
    v_readfirstlane_b32 s52, v{vT}
    v_readfirstlane_b32 s53, v{vU}
    s_cmp_lg_u32 s53, 0
    s_cselect_b32 s52, s52, s50
    s_cselect_b32 s53, s53, s51
    L_havenonce:
    s_cmp_lt_u32 s31, {32-NP}
    s_barrier
    """)
    stamp(4)
    ML = vAE
    X = vKB
    M, Ls, T2 = vB, vB + 1, vB + 2
    O = vO
    for s in range(4):
        A(f"ds_read_b64 {vr(ML+2*s,2)}, v{vRM} offset:{ML_OFF+16*s}")
    for s in range(4):
        A(f"ds_read2st64_b64 {vr(X+4*s,4)}, v{vRX2} offset0:{8*s} offset1:{8*s+4}")
    A(f"""
    s_waitcnt lgkmcnt(4)
    v_max3_f32 v{M}, v{ML}, v{ML+2}, v{ML+4}
    v_max_f32 v{M}, v{M}, v{ML+6}
    """)
    for s in range(4):
        A(f"v_sub_f32 v{ML+2*s}, v{ML+2*s}, v{M}")
    for s in range(4):
        A(f"v_exp_f32 v{ML+2*s}, v{ML+2*s}")
    A(f"v_mul_f32 v{Ls}, v{ML}, v{ML+1}")
    for s in range(1, 4):
        A(f"v_fmac_f32 v{Ls}, v{ML+2*s}, v{ML+2*s+1}")
    A(f"""
    v_max_f32 v{Ls}, 0x0da24260, v{Ls}
    v_log_f32 v{T2}, v{Ls}
    v_rcp_f32 v{Ls}, v{Ls}
    s_waitcnt lgkmcnt(0)
    v_mul_f32 v{O}, v{ML}, v{X}
    v_mul_f32 v{O+2}, v{ML}, v{X+1}
    v_add_f32 v{T2}, v{T2}, v{M}
    """)
    for s in range(1, 8):
        A(f"v_fmac_f32 v{O}, v{ML+2*(s>>1)}, v{X+2*s}")
        A(f"v_fmac_f32 v{O+2}, v{ML+2*(s>>1)}, v{X+2*s+1}")
    A(f"""
    v_xor_b32 v{O+1}, s52, v{T2}
    v_xor_b32 v{O+3}, s53, v{T2}
    v_mul_f32 v{O}, v{O}, v{Ls}
    v_mul_f32 v{O+2}, v{O+2}, v{Ls}
    global_store_dwordx4 v{vRX}, {vr(O,4)}, s[46:47] {o.stf}
    """)
    if o.dual:
        A(f"v_add_u32 v{vRX}, 0x100000, v{vRX}")
        A(f"global_store_dwordx4 v{vRX}, {vr(O,4)}, s[46:47] sc1")
    stamp(5)
    PX = vVB
    PL = vVB + 16
    msk = lambda k: f"s[{90+2*k}:{91+2*k}]"
    A("s_cbranch_scc1 L_fin")
    A("s_xor_b32 s53, s53, s52")
    for k in range(4):
        A(f"s_mov_b64 {msk(k)}, -1")
    if not o.noack:
        A("s_waitcnt vmcnt(0)")
    if o.dual:
        A(f"s_mov_b32 s59, {o.dual}")
    A("L_poll:")
    if o.dual:
        A(f"""
        s_sub_u32 s59, s59, 1
        s_cmp_lg_u32 s59, 0
        s_cbranch_scc1 L_nosw
        v_xor_b32 v{vL16}, 0x100000, v{vL16}
        s_mov_b32 s59, {o.dual}
        L_nosw:
        """)
    for k in range(4):
        A(f"s_mov_b64 exec, {msk(k)}")
        A(f"global_load_dwordx4 {vr(PX+4*k,4)}, v{vL16}, s[48:49] offset:{1024*k} {o.ldf}")
    A("s_mov_b64 exec, -1")
    A("s_waitcnt vmcnt(0)")
    for k in range(4):
        A(f"v_xor_b32 v{PL+4+k}, v{PX+4*k+1}, v{PX+4*k+3}")
    for k in range(4):
        A(f"v_xor_b32_dpp v{PL+8+k}, v{PX+4*k+1}, v{PX+4*k+1} quad_perm:[2,3,0,1] {DPPM}")
    for k in range(4):
        A(f"v_xor_b32 v{PL+4+k}, s53, v{PL+4+k}")
    for k in range(4):
        A(f"v_or_b32 v{PL+4+k}, v{PL+4+k}, v{PL+8+k}")
    for k in range(4):
        A(f"v_or_b32_dpp v{PL+4+k}, v{PL+4+k}, v{PL+4+k} quad_perm:[1,0,3,2] {DPPM}")
    for k in range(4):
        A(f"v_or_b32_dpp v{PL+4+k}, v{PL+4+k}, v{PL+4+k} quad_perm:[2,3,0,1] {DPPM}")
    for k in range(4):
        A(f"v_or_b32_dpp v{PL+4+k}, v{PL+4+k}, v{PL+4+k} row_half_mirror {DPPM}")
    for k in range(4):
        A(f"v_cmp_ne_u32 {msk(k)}, 0, v{PL+4+k}")
    for k in range(4):
        A(f"v_xor_b32 v{PL+k}, s52, v{PX+4*k+1}")
    A(f"""
    s_or_b64 s[40:41], {msk(0)}, {msk(1)}
    s_or_b64 s[42:43], {msk(2)}, {msk(3)}
    s_or_b64 s[44:45], s[40:41], s[42:43]
    s_cbranch_scc0 L_go
    s_bcnt1_i32_b64 s40, s[40:41]
    s_bcnt1_i32_b64 s41, s[42:43]
    s_add_u32 s40, s40, s41
    s_cmp_le_u32 s40, {o.tight*8}
    s_cbranch_scc1 L_poll
    s_sleep {o.sleep}
    s_branch L_poll
    L_go:
    """)
    stamp(6)
    A(f"""
    v_max3_f32 v{M}, v{PL}, v{PL+1}, v{PL+2}
    v_max_f32 v{M}, v{M}, v{PL+3}
    v_mov_b32 v{T2}, v{M}
    s_nop 1
    v_permlane32_swap_b32 v{M}, v{T2}
    v_max_f32 v{M}, v{M}, v{T2}
    v_mov_b32 v{T2}, v{M}
    s_nop 1
    v_permlane16_swap_b32 v{M}, v{T2}
    v_max_f32 v{M}, v{M}, v{T2}
    s_nop 1
    v_max_f32_dpp v{M}, v{M}, v{M} row_ror:8 {DPPM}
    """)
    for k in range(4):
        A(f"v_sub_f32 v{PL+k}, v{PL+k}, v{M}")
    for k in range(4):
        A(f"v_exp_f32 v{PL+k}, v{PL+k}")
    A(f"""
    v_mul_f32 v{PX}, v{PL}, v{PX}
    v_mul_f32 v{PX+2}, v{PL}, v{PX+2}
    v_add_f32 v{Ls}, v{PL}, v{PL+1}
    v_add_f32 v{T2}, v{PL+2}, v{PL+3}
    v_add_f32 v{Ls}, v{Ls}, v{T2}
    """)
    for k in range(1, 4):
        A(f"v_fmac_f32 v{PX}, v{PL+k}, v{PX+4*k}")
        A(f"v_fmac_f32 v{PX+2}, v{PL+k}, v{PX+4*k+2}")
    A(f"""
    v_mov_b32 v{T2}, v{Ls}
    v_mov_b32 v{PX+1}, v{PX}
    v_mov_b32 v{PX+3}, v{PX+2}
    v_permlane32_swap_b32 v{Ls}, v{T2}
    v_permlane32_swap_b32 v{PX}, v{PX+1}
    v_permlane32_swap_b32 v{PX+2}, v{PX+3}
    v_add_f32 v{Ls}, v{Ls}, v{T2}
    v_add_f32 v{PX}, v{PX}, v{PX+1}
    v_add_f32 v{PX+2}, v{PX+2}, v{PX+3}
    v_mov_b32 v{T2}, v{Ls}
    v_mov_b32 v{PX+1}, v{PX}
    v_mov_b32 v{PX+3}, v{PX+2}
    v_permlane16_swap_b32 v{Ls}, v{T2}
    v_permlane16_swap_b32 v{PX}, v{PX+1}
    v_permlane16_swap_b32 v{PX+2}, v{PX+3}
    v_add_f32 v{Ls}, v{Ls}, v{T2}
    v_add_f32 v{PX}, v{PX}, v{PX+1}
    v_add_f32 v{PX+2}, v{PX+2}, v{PX+3}
    v_add_f32_dpp v{Ls}, v{Ls}, v{Ls} row_ror:8 {DPPM}
    v_add_f32_dpp v{PX}, v{PX}, v{PX} row_ror:8 {DPPM}
    v_add_f32_dpp v{PX+2}, v{PX+2}, v{PX+2} row_ror:8 {DPPM}
    v_rcp_f32 v{Ls}, v{Ls}
    s_mov_b64 exec, 0xff
    v_mul_f32 v{PX}, v{PX}, v{Ls}
    v_mul_f32 v{PX+2}, v{PX+2}, v{Ls}
    v_cvt_pk_bf16_f32 v{PX}, v{PX}, v{PX+2}
    global_store_dword v{vOUT}, v{PX}, s[14:15]
    """)
    A("L_fin:")
    if nst:
        A("s_mov_b64 exec, -1")
        A("s_waitcnt vmcnt(0)")
        stamp(nst - 1)
        A(f"""
        s_lshl_b32 s40, s2, 2
        s_add_u32 s40, s40, s29
        s_mul_i32 s40, s40, {nst*8}
        s_add_u32 s40, s40, {STAMP_OFF}
        v_mov_b32 v1, s40
        s_waitcnt lgkmcnt(0)
        s_mov_b64 exec, 1
        """)
        for i in range(nst):
            A(f"v_mov_b32 v2, s{sST+2*i}")
            A(f"v_mov_b32 v3, s{sST+2*i+1}")
            A(f"global_store_dwordx2 v1, v[2:3], s[18:19] offset:{8*i}")
            A(f"s_nop 1")
    A("L_end:")
    A("s_endpgm")
    lds = ML_OFF + 64
    out = HEADER
    out += f"; @launch grid=(256,1,1) block=(256,1,1) lds={lds}\n"
    out += f""".amdgcn_target "amdgcn-amd-amdhsa--gfx950"
.text
.globl {KN}
.p2align 8
.type {KN},@function
{KN}:
"""
    out += A.text()
    acc = min(256, (o.vgpr + 3) // 4 * 4)
    out += f""".section .rodata,"a"
.p2align 6
.amdhsa_kernel {KN}
  .amdhsa_next_free_vgpr {o.vgpr}
  .amdhsa_next_free_sgpr 102
  .amdhsa_accum_offset {acc}
  .amdhsa_group_segment_fixed_size 0
  .amdhsa_kernarg_size 64
  .amdhsa_user_sgpr_count 2
  .amdhsa_user_sgpr_kernarg_segment_ptr 1
  .amdhsa_system_sgpr_workgroup_id_x 1
.end_amdhsa_kernel
"""
    return out

if __name__ == "__main__":
    ap = argparse.ArgumentParser()
    ap.add_argument("out")
    ap.add_argument("--map", type=int, default=1)
    ap.add_argument("--wk", default="65656565")
    ap.add_argument("--wv", default="65656565")
    ap.add_argument("--kord", default="D")
    ap.add_argument("--vord", default="D")
    ap.add_argument("--vgpr", type=int, default=512)
    ap.add_argument("--sleep", type=int, default=6)
    ap.add_argument("--tight", type=int, default=4)
    ap.add_argument("--sort", type=int, default=1)
    ap.add_argument("--stf", default="sc1")
    ape = ap.add_argument("--ldf", default="sc1")
    ap.add_argument("--noack", action="store_true")
    ap.add_argument("--np", type=int, default=8)
    ap.add_argument("--dual", type=int, default=0)
    ap.add_argument("--skew", default="")
    ap.add_argument("--thr", default="")
    ap.add_argument("--tlb", action="store_true")
    ap.add_argument("--icp", action="store_true")
    ap.add_argument("--ff", action="store_true")
    ap.add_argument("--fflv", default="032")
    ap.add_argument("--ffc0", type=int, default=20)
    ap.add_argument("--ffg", type=int, default=32)
    ap.add_argument("--ffr", type=int, default=2)
    ap.add_argument("--thrk", default="")
    ap.add_argument("--stamps", type=int, default=0)
    ap.add_argument("--itstamps", action="store_true")
    o = ap.parse_args()
    open(o.out, "w").write(gen(o))
```

```python
import sys, argparse

KN = "standalone__paged_block_table_kv_pagedattention__decode_kernel"
HEADER = open("standalone__paged_block_table_kv_pagedattention__decode.s.ref").read().split("; Override launch")[0]
KV_BYTES = 4100 * 65536
STAMP_OFF = 512 << 20
ML_OFF = 16384
SC_OFF = 0

class Asm:
    def __init__(self):
        self.l = []
    def __call__(self, s):
        for line in s.strip("\n").split("\n"):
            t = line.strip()
            if not t:
                continue
            self.l.append(t if t.endswith(":") else "    " + t)
    def text(self):
        return "\n".join(self.l) + "\n"

def vr(b, n):
    return f"v[{b}:{b+n-1}]"
DPPM = "row_mask:0xf bank_mask:0xf"

def gen(o):
    A = Asm()
    fl = " nt"
    STRIDE = 128
    NP = 8
    wk = [int(ch, 16) for ch in o.wk]
    wv = [int(ch, 16) for ch in o.wv]
    assert len(wk) == 8 and len(wv) == 8 and max(wk) <= 7 and max(wv) <= 7
    vK0, vV0 = 2, 4
    vM, vL = 8, 9
    vT, vU, vX2, vX3 = 10, 11, 12, 13
    vP = 14
    vS = 16
    vD1 = 20
    vMASK = 24
    vA = 28
    vAE = 40
    vB = 56
    vACC = 200
    vQ = 72
    vG4 = 88
    vLW, vLM, vL16, vRX, vRX2, vRM, vSA, vSB, vOUT, vZ = range(90, 100)
    vKB = 100
    vVB = 132
    vO = 164
    vSP = 168
    vH = 176
    vBT = 196
    vE = 192
    KORD = {"N": [(i >> 1, i & 1) for i in range(8)],
            "M": [(i & 3, i >> 2) for i in range(8)],
            "D": [(0,0),(1,1),(2,0),(3,1),(1,0),(0,1),(3,0),(2,1)],
            "E": [(0,0),(2,1),(1,0),(3,1),(2,0),(0,1),(3,0),(1,1)]}[o.kord]
    KFIRST = {hp: min(i for i in range(8) if KORD[i][1] == hp) for hp in (0, 1)}
    VORD = {"D": [(0,0),(1,1),(2,0),(3,1),(1,0),(0,1),(3,0),(2,1)],
            "I": [(0,0),(3,1),(2,0),(1,1),(1,0),(2,1),(3,0),(0,1)],
            "J": [(0,0),(2,0),(1,1),(3,1),(1,0),(3,0),(0,1),(2,1)]}[o.vord]
    PARTNER = {i: [k for k in range(4) if VORD[k][0] == VORD[i][0]][0] for i in range(4, 8)}
    nst = o.stamps
    sST = 60
    def stamp(i):
        if nst and i < nst:
            A(f"s_memrealtime s[{sST+2*i}:{sST+2*i+1}]")
    def itstamp():
        if o.itstamps:
            A("v_writelane_b32 v89, s98, m0\ns_add_u32 m0, m0, 1\ns_memrealtime s[98:99]")

    def kload(i, sreg):
        j, hp = KORD[i]
        A(f"buffer_load_dwordx4 {vr(vKB+4*i,4)}, v{vK0+hp}, s[20:23], {sreg} offen offset:{128*j}{fl}")
    def vload(i, sreg):
        cb, t = VORD[i]
        A(f"buffer_load_dwordx4 {vr(vVB+4*i,4)}, v{vV0+t}, s[24:27], {sreg} offen offset:{128*cb}{fl}")
    def qk(c):
        j, hp = KORD[c]
        d = vD1 if hp else vS
        cc = "0" if c == KFIRST[hp] else vr(d, 4)
        A(f"v_mfma_f32_16x16x32_bf16 {vr(d,4)}, {vr(vKB+4*c,4)}, {vr(vQ+4*j,4)}, {cc}")
    def pvstep(i, held):
        cb, t = VORD[i]
        k = PARTNER[i]
        me, other = vVB + 4 * i, (vH if held else vVB) + 4 * k
        l0, l1 = (me, other) if t == 0 else (other, me)
        bb = vB + 8 * (i & 1)
        ps, ms = [], []
        for w in range(4):
            ps.append(f"v_perm_b32 v{bb+2*w}, v{l1+w}, v{l0+w}, s37")
            ps.append(f"v_perm_b32 v{bb+2*w+1}, v{l1+w}, v{l0+w}, s38")
            acc = vACC + (cb * 2 + (w >> 1)) * 4
            ms.append(f"v_mfma_f32_16x16x16_bf16 {vr(acc,4)}, {vr(vA+2*(w&1),2)}, {vr(bb+2*w,2)}, {vr(acc,4)}")
        for x in ps[:4] + [ms[0]] + ps[4:6] + [ms[1]] + ps[6:8] + [ms[2], "s_nop 0", ms[3]]:
            A(x)

    def finalize(mask):
        for r in range(4):
            A(f"v_permlane32_swap_b32 v{vS+r}, v{vD1+r}")
        for r in range(4):
            A(f"v_mov_b32_dpp v{vD1+r}, v{vD1+r} quad_perm:[1,1,3,3] {DPPM}")
        for r in range(4):
            A(f"v_add_f32_dpp v{vE+r}, v{vS+r}, v{vD1+r} quad_perm:[0,0,2,2] {DPPM}")
        if mask:
            A(f"v_mov_b32 v{vU}, 0xff800000")
            for r in range(4):
                A(f"v_cmp_gt_i32 vcc, s35, v{vG4}")
                A(f"s_sub_u32 s35, s35, 1")
                A(f"s_nop 0")
                A(f"v_cndmask_b32 v{vE+r}, v{vU}, v{vE+r}, vcc")
        A(f"""
        s_mov_b64 exec, s[56:57]
        ds_write_b128 v{vSA}, {vr(vE,4)}
        s_mov_b64 exec, -1
        v_max3_f32 v{vM}, v{vM}, v{vE}, v{vE+1}
        v_add_u32 v{vSA}, 0x80, v{vSA}
        v_max3_f32 v{vM}, v{vM}, v{vE+2}, v{vE+3}
        """)

    A("s_cmp_ge_u32 s2, 256")
    A("s_cbranch_scc1 L_end")
    stamp(0)
    A(f"""
    s_load_dwordx8 s[4:11], s[0:1], 0
    s_load_dwordx8 s[12:19], s[0:1], 32
    v_lshrrev_b32 v10, 6, v0
    v_and_b32 v1, 63, v0
    v_readfirstlane_b32 s29, v10
    """)
    if o.map == 1:
        A("s_lshr_b32 s30, s2, 5\ns_and_b32 s31, s2, 31")
    elif o.map == 0:
        A("s_and_b32 s30, s2, 7\ns_lshr_b32 s31, s2, 3")
    else:
        A("s_bfe_u32 s30, s2, 0x30003\ns_lshr_b32 s31, s2, 6\ns_lshl_b32 s31, s31, 3\ns_and_b32 s40, s2, 7\ns_or_b32 s31, s31, s40")
    if o.sort == 2:
        BTADDR = """s_lshl_b32 s40, s31, 2
        v_lshl_add_u32 v6, v10, 9, s40
        v_lshl_add_u32 v6, v11, 7, v6
        v_add_u32 v7, 0x2000, v6"""
        BTLD2 = f"global_load_dword v{vBT+1}, v7, s[10:11]"
    else:
        BTADDR = "v_and_b32 v7, 31, v1\nv_lshl_add_u32 v6, v7, 9, s34"
        BTLD2 = ""
    A(f"""
    v_and_b32 v10, 15, v1
    v_lshrrev_b32 v11, 4, v1
    s_lshl_b32 s32, s29, 5
    s_add_u32 s32, s32, s31
    s_lshl_b32 s34, s32, 2
    s_lshl_b32 s41, s30, 9
    v_bfe_u32 v15, v1, 1, 1
    v_lshlrev_b32 v12, 9, v15
    v_lshl_add_u32 v12, v11, 4, v12
    v_and_b32 v14, 1, v1
    v_lshl_add_u32 v12, v14, 6, v12
    s_lshl_b32 s42, s30, 10
    v_add_u32 v12, s42, v12
    v_and_b32 v{vK0}, 7, v1
    v_lshlrev_b32 v{vK0}, 12, v{vK0}
    v_bfe_u32 v{vK0+1}, v1, 3, 1
    v_lshl_add_u32 v{vK0}, v{vK0+1}, 6, v{vK0}
    v_lshl_add_u32 v{vK0}, v11, 4, v{vK0}
    v_add_u32 v{vK0}, s41, v{vK0}
    v_add_u32 v{vK0+1}, 0x8000, v{vK0}
    s_mov_b32 s22, {KV_BYTES}
    s_mov_b32 s23, 0x20000
    s_mov_b32 s36, 0x3db8aa3b
    {BTADDR}
    s_waitcnt lgkmcnt(0)
    s_load_dword s43, s[10:11], s34
    s_load_dword s28, s[12:13], 0
    global_load_dword v{vBT}, v6, s[10:11]
    {BTLD2}
    """)
    stamp(1)
    for j in range(4):
        A(f"global_load_dwordx4 {vr(vQ+4*j,4)}, v12, s[4:5] offset:{128*j}")
    A(f"""
    s_mov_b32 s20, s6
    s_and_b32 s21, s7, 0xffff
    s_mov_b32 s24, s8
    s_and_b32 s25, s9, 0xffff
    s_mov_b32 s26, {KV_BYTES}
    s_mov_b32 s27, 0x20000
    s_waitcnt lgkmcnt(0)
    s_lshl_b32 s43, s43, 16
    s_cmp_lt_i32 s28, 1
    s_cselect_b32 s36, 0, s36
    s_cselect_b32 s28, 0x10000, s28
    s_min_i32 s28, s28, 0x10000
    s_sub_u32 s33, s28, 1
    s_lshr_b32 s33, s33, 11
    s_cbranch_scc0 L_skip0
    """)
    stamp(2)
    LV = [0x0, 0x2, 0xa, 0xe, 0xf]
    THR = ""
    if o.thr:
        tab = sum(LV[int(ch)] << (4 * i) for i, ch in enumerate(o.thr))
        THR = f"""s_getreg_b32 s40, hwreg(HW_REG_XCC_ID)
        s_and_b32 s40, s40, 7
        s_lshl_b32 s40, s40, 2
        s_lshr_b32 s81, {tab:#x}, s40"""
        if o.thrk:
            tabk = sum(LV[int(ch)] << (4 * i) for i, ch in enumerate(o.thrk))
            THR += f"\ns_lshr_b32 s80, {tabk:#x}, s40"
    NONCESEL = "s_lshl_b32 s40, s2, 2\ns_add_u32 s40, s40, s29\ns_cmp_lg_u32 s40, 1023"
    if o.diag:
        NONCESEL = "s_lshl_b32 s40, s29, 8\ns_or_b32 s40, s40, s2\ns_cmp_ge_u32 s40, 8"
    TL = ""
    if o.tlb:
        TL = """s_lshr_b32 s56, s2, 3
        s_lshl_b32 s56, s56, 2
        s_add_u32 s56, s56, s29
        s_lshl_b32 s56, s56, 21
        s_load_dword s100, s[6:7], s56
        s_load_dword s101, s[8:9], s56"""
    if o.icp:
        TL += """
        s_getpc_b64 s[88:89]
        v_lshlrev_b32 v6, 7, v1
        global_load_dword v199, v6, s[88:89]"""
    SKEW = ""
    if o.skew:
        d = [int(x) for x in o.skew.split(",")]
        assert len(d) == 8 and sum(d) == 0
        cum = [0]
        for x in d: cum.append(cum[-1] + x)
        off = -min(cum)
        assert max(cum) + off <= 15
        tab = sum(((cum[i] + off) & 15) << (4 * i) for i in range(8))
        lo = max(0, -min(d)) * 128
        hi = (16 - max(d) - 1) * 128 + 128
        SKEW = f"""s_and_b32 s54, s32, 7
        s_lshl_b32 s54, s54, 2
        s_lshr_b32 s55, {tab:#x}, s54
        s_and_b32 s55, s55, 15
        s_add_u32 s54, s54, 4
        s_and_b32 s54, s54, 31
        s_lshr_b32 s54, {tab:#x}, s54
        s_and_b32 s54, s54, 15
        s_sub_u32 s44, s40, {lo}
        s_cmp_le_u32 s44, {hi - lo}
        s_cselect_b32 s55, s55, {off}
        s_cselect_b32 s54, s54, {off}
        s_add_u32 s45, s45, s55
        s_add_u32 s35, s35, s54
        s_sub_u32 s45, s45, {off}
        s_sub_u32 s35, s35, {off}"""
    NB = 1 + wk[0]
    for i in range(NB):
        kload(i, "s43")
    A(f"""
    L_skip0:
    {TL}
    s_mov_b32 s58, s43
    s_mov_b32 s78, s33
    s_lshl_b32 s40, s33, 11
    s_sub_u32 s40, s28, s40
    s_mul_i32 s45, s40, s32
    s_add_u32 s35, s45, s40
    s_lshr_b32 s45, s45, 7
    s_lshr_b32 s35, s35, 7
    {SKEW}
    s_sub_u32 s35, s35, s45
    s_lshr_b32 s40, s45, 4
    s_lshl_b32 s54, s33, 7
    s_add_u32 s40, s40, s54
    s_lshl_b32 s40, s40, 2
    s_and_b32 s40, s40, 0x3ffc
    s_add_u32 s44, s40, 4
    s_and_b32 s44, s44, 0x3ffc
    s_load_dword s54, s[10:11], s40
    s_load_dword s55, s[10:11], s44
    s_and_b32 s45, s45, 15
    s_memrealtime s[50:51]
    """)
    if o.sort == 2:
        kq, kt, ka, kb = 16, 17, 18, 19
        R = [20, 21, 22, 23]
        A(f"""
        s_mov_b32 s59, s33
        s_mov_b32 s39, 0
        v_mov_b32 v7, 0
        v_mov_b32 v{vBT+2}, 0
        s_waitcnt vmcnt({NB + 4})
        L_sort:
        v_cmp_gt_i32 vcc, s59, v10
        v_mov_b32 v{kt}, 0x800000
        v_and_b32 v{kq}, 0xffff, v{vBT}
        v_add_u32 v{kq}, 1, v{kq}
        v_cndmask_b32 v{kq}, v{kt}, v{kq}, vcc
        v_cmp_ne_u32 vcc, v7, v10
        v_lshlrev_b32 v{vBT}, 16, v{vBT}
        v_mov_b32 v7, -1
        v_cndmask_b32 v{kq}, 0, v{kq}, vcc
        v_lshl_or_b32 v{kq}, v{kq}, 6, v1
        v_mov_b32 v{R[0]}, v{kq}
        v_mov_b32 v{R[1]}, v{kq}
        s_nop 1
        v_permlane16_swap_b32 v{R[0]}, v{R[1]}
        v_mov_b32 v{R[2]}, v{R[0]}
        v_mov_b32 v{R[3]}, v{R[1]}
        s_nop 0
        v_permlane32_swap_b32 v{R[0]}, v{R[2]}
        v_permlane32_swap_b32 v{R[1]}, v{R[3]}
        """)
        for j in range(4):
            acc = ka if j < 2 else kb
            A(f"v_sub_u32 v{kt}, v{R[j]}, v{kq}")
            A(f"v_alignbit_b32 v{acc}, v{acc}, v{kt}, 31")
            for r in range(1, 16):
                A(f"v_sub_u32_dpp v{kt}, v{R[j]}, v{kq} row_ror:{r} {DPPM}")
                A(f"v_alignbit_b32 v{acc}, v{acc}, v{kt}, 31")
        A(f"""
        v_bcnt_u32_b32 v{ka}, v{ka}, 0
        v_bcnt_u32_b32 v{ka}, v{kb}, v{ka}
        v_and_b32 v{kt}, 3, v{ka}
        v_cmp_eq_u32 vcc, s29, v{kt}
        v_and_b32 v{ka}, 60, v{ka}
        v_add_u32 v{ka}, s39, v{ka}
        v_mov_b32 v{kt}, 0xfc
        v_cndmask_b32 v{ka}, v{kt}, v{ka}, vcc
        ds_permute_b32 v{kt}, v{ka}, v{vBT}
        v_mov_b32 v{vBT}, v{vBT+1}
        s_sub_i32 s59, s59, 16
        s_add_u32 s39, s39, 64
        s_cmp_gt_i32 s59, 0
        s_waitcnt lgkmcnt(0)
        v_or_b32 v{vBT+2}, v{vBT+2}, v{kt}
        s_cbranch_scc1 L_sort
        v_mov_b32 v{vBT}, v{vBT+2}
        """)
    else:
        kq, ko, kt, ka = 16, 17, 18, 19
        A(f"""
        v_cmp_gt_u32 vcc, s33, v7
        s_waitcnt vmcnt({NB + 4})
        v_mov_b32 v{kt}, 0x1000000
        v_and_b32 v{kq}, 0xffff, v{vBT}
        v_add_u32 v{kq}, 1, v{kq}
        v_cndmask_b32 v{kq}, v{kt}, v{kq}, vcc
        v_cmp_ne_u32 vcc, 0, v7
        v_lshlrev_b32 v{vBT}, 16, v{vBT}
        v_mov_b32 v{ka}, 0
        v_cndmask_b32 v{kq}, 0, v{kq}, vcc
        {"" if o.sort else f"v_mov_b32 v{kq}, 0"}
        v_lshl_or_b32 v{kq}, v{kq}, 5, v7
        v_mov_b32 v{ko}, v{kq}
        v_mov_b32 v{kt}, v{kq}
        s_nop 1
        v_permlane16_swap_b32 v{ko}, v{kt}
        s_nop 1
        v_permlane32_swap_b32 v{ko}, v{kt}
        s_nop 0
        v_sub_u32 v{kt}, v{ko}, v{kq}
        v_alignbit_b32 v{ka}, v{ka}, v{kt}, 31
        """)
        for r in range(1, 16):
            A(f"v_sub_u32_dpp v{kt}, v{ko}, v{kq} row_ror:{r} {DPPM}")
            A(f"v_alignbit_b32 v{ka}, v{ka}, v{kt}, 31")
        A(f"""
        v_bcnt_u32_b32 v{ka}, v{ka}, 0
        v_mov_b32 v{kt}, v{ka}
        v_and_b32 v{ko}, 32, v1
        s_nop 0
        v_permlane32_swap_b32 v{ka}, v{kt}
        v_add3_u32 v{ka}, v{ka}, v{kt}, v{ko}
        v_lshlrev_b32 v{ka}, 2, v{ka}
        ds_permute_b32 v{vBT}, v{ka}, v{vBT}
        """)
    A(f"""
    s_mov_b32 s34, 1
    {THR}
    v_mov_b32 v{vM}, 0xff7fffff
    s_lshl_b32 s79, s29, 12
    v_lshl_add_u32 v{vSA}, v11, 5, s79
    v_lshl_add_u32 v{vSA}, v15, 4, v{vSA}
    s_mov_b32 s56, 0x00050005
    s_mov_b32 s57, 0x00050005
    v_mov_b32 v{vZ}, 0
    s_waitcnt lgkmcnt(0)
    s_bitset1_b32 s51, 31
    s_bitset0_b32 s50, 31
    v_mov_b32 v{vO}, s50
    v_mov_b32 v{vO+1}, s51
    v_mov_b32 v{vO+2}, 0
    v_mov_b32 v{vO+3}, 0
    {NONCESEL}
    s_cbranch_scc1 L_nononce
    s_mov_b64 exec, 1
    global_atomic_cmpswap_x2 v{vZ}, {vr(vO,4)}, s[16:17]
    s_mov_b64 exec, -1
    L_nononce:
    s_lshl_b32 s40, s45, 12
    s_lshl_b32 s54, s54, 16
    s_add_u32 s54, s54, s40
    s_sub_u32 s55, s55, 1
    s_lshl_b32 s55, s55, 16
    s_add_u32 s55, s55, s40
    s_sub_u32 s45, 16, s45
    v_mov_b32 v{vSP+4}, s54
    v_mov_b32 v{vSP+5}, s55
    v_bfrev_b32 v{vSP+6}, 1
    """)
    def special(i):
        src = vK0 + i
        A(f"""
        v_bfe_u32 v6, v{src}, 12, 4
        v_cmp_le_u32 vcc, s45, v6
        v_cmp_gt_u32 s[82:83], s35, v6
        s_nop 0
        v_cndmask_b32 v{vSP+i}, v{vSP+4}, v{vSP+5}, vcc
        v_add_u32 v{vSP+i}, v{vSP+i}, v{src}
        v_cndmask_b32 v{vSP+i}, v{vSP+6}, v{vSP+i}, s[82:83]
        """)
    special(0)
    special(1)
    A(f"""
    s_cmp_lg_u32 s33, 0
    s_cbranch_scc1 L_k0
    v_mov_b32 v{vK0}, v{vSP}
    v_mov_b32 v{vK0+1}, v{vSP+1}
    s_mov_b32 s43, 0
    """)
    for i in range(NB):
        kload(i, "s43")
    A(f"s_waitcnt vmcnt({NB-1})")
    qk(0)
    A("s_branch L_klast")
    A("L_k0:")
    if o.itstamps:
        A("s_mov_b32 m0, 0\nv_mov_b32 v89, 0\ns_memrealtime s[98:99]")
    A(f"s_waitcnt vmcnt({NB-1})")
    qk(0)

    A("L_kloop:")
    nxt = NB
    for c in list(range(1, 8)) + [8]:
        hi = c + wk[c & 7]
        if c == 1:
            assert nxt <= 8
            A(f"v_readlane_b32 s44, v{vBT}, s34\ns_add_u32 s34, s34, 1")
            if o.itstamps:
                A("s_waitcnt lgkmcnt(0)")
            itstamp()
            if hi >= 8:
                A("s_nop 1")
        A(f"s_waitcnt vmcnt({nxt - c - 1})")
        nis = 0
        while nxt <= hi:
            if nxt == 8:
                A(f"""
                s_cmp_lg_u32 s33, 1
                s_cbranch_scc1 L_knotpen
                v_mov_b32 v{vK0}, v{vSP}
                v_mov_b32 v{vK0+1}, v{vSP+1}
                s_mov_b32 s44, 0
                L_knotpen:
                """)
            assert nxt - 8 < c, "K register reuse"
            kload(nxt & 7, "s43" if nxt < 8 else "s44")
            nxt += 1
            nis += 1
            if o.thrk and nxt == hi:
                A(f"""
                s_bitcmp0_b32 s80, {(c >> 1) & 3}
                s_cbranch_scc1 L_kt{c}
                s_waitcnt vmcnt({nxt - c - 2})
                L_kt{c}:
                """)
        if c == 8:
            A(f"s_mov_b32 s43, s44\ns_sub_u32 s33, s33, 1\ns_cmp_lg_u32 s33, 0")
            A(f"s_nop {max(0, 7 - 4 - nis)}")
            finalize(False)
        qk(c & 7)
    assert nxt == 8 + NB
    A("s_cbranch_scc1 L_kloop")
    A("L_klast:")
    stamp(7)
    NV = wv[7]
    if o.ff:
        A("s_memrealtime s[84:85]\ns_mov_b32 s86, 0")
    A(f"""
    v_lshrrev_b32 v12, 3, v1
    v_and_b32 v13, 7, v1
    v_lshlrev_b32 v{vV0}, 12, v12
    v_lshl_add_u32 v{vV0}, v13, 4, v{vV0}
    v_add_u32 v{vV0}, s41, v{vV0}
    v_add_u32 v{vV0+1}, 0x8000, v{vV0}
    """)
    special(2)
    special(3)
    A(f"""
    s_cmp_lg_u32 s78, 0
    s_cbranch_scc1 L_vnorm
    v_mov_b32 v{vV0}, v{vSP+2}
    v_mov_b32 v{vV0+1}, v{vSP+3}
    s_mov_b32 s58, 0
    L_vnorm:
    """)
    if o.ff:
        A(f"""
        s_lshl_b32 s40, s29, 8
        s_or_b32 s40, s40, s2
        s_cmp_ge_u32 s40, 8
        s_cbranch_scc1 L_noref
        s_waitcnt lgkmcnt(0)
        s_or_b32 s40, s84, 1
        v_mov_b32 v6, s40
        v_mov_b32 v7, 0
        s_mov_b64 exec, 1
        global_atomic_cmpswap v{vZ}, v[6:7], s[16:17] offset:8
        s_mov_b64 exec, -1
        s_nop 1
        L_noref:
        """)
    def ksetup(c):
        if c == 2:
            A("v_and_b32 v6, 5, v1")
            for e, val in enumerate((0, 1, 4, 5)):
                A(f"v_cmp_eq_u32 vcc, {val}, v6")
                A(f"v_mov_b32 v{vACC+2*e}, 0")
                A(f"v_mov_b32 v{vACC+2*e+1}, 0")
                A(f"v_cndmask_b32 v{vMASK+e}, 0, -1, vcc")
        if c == 4:
            for e in range(8, 24):
                A(f"v_mov_b32 v{vACC+e}, 0")
        if c == 6:
            for e in range(24, 32):
                A(f"v_mov_b32 v{vACC+e}, 0")
            A(f"""
            v_lshlrev_b32 v{vG4}, 2, v11
            s_mov_b32 s37, 0x05040100
            s_mov_b32 s38, 0x07060302
            v_mov_b32 v{vL}, 0
            v_lshrrev_b32 v6, 2, v12
            v_lshl_add_u32 v{vSB}, v6, 5, s79
            v_lshl_add_u32 v{vSB}, v15, 4, v{vSB}
            v_and_b32 v6, 3, v12
            v_lshl_add_u32 v{vSB}, v6, 2, v{vSB}
            """)
    nxt = NB
    for c in range(1, 8):
        hi = min(c + wk[c], 7 + NV)
        A(f"s_waitcnt vmcnt({nxt - c - 1})")
        while nxt <= hi:
            if nxt < 8:
                kload(nxt, "s43")
            else:
                vload(nxt - 8, "s58")
            nxt += 1
        qk(c)
        ksetup(c)
    while nxt < 8 + NV:
        vload(nxt - 8, "s58")
        nxt += 1
    A(f"""
    s_mov_b32 s43, s58
    s_mov_b32 s33, s78
    s_mov_b32 s34, 1
    s_nop 4
    """)
    finalize(True)
    A(f"""
    ds_read2_b32 {vr(vS,2)}, v{vSB} offset0:0 offset1:16
    v_mov_b32 v{vU}, v{vM}
    v_add_u32 v{vSB}, 0x80, v{vSB}
    s_nop 0
    v_permlane32_swap_b32 v{vM}, v{vU}
    v_max_f32 v{vM}, v{vM}, v{vU}
    v_mov_b32 v{vU}, v{vM}
    s_nop 1
    v_permlane16_swap_b32 v{vM}, v{vU}
    v_max_f32 v{vM}, v{vM}, v{vU}
    v_mul_f32 v{vM}, s36, v{vM}
    v_max_f32 v{vM}, 0xf149f2ca, v{vM}
    s_cmp_eq_u32 s33, 0
    s_cbranch_scc1 L_vlast
    """)

    def vtop():
        for r in range(2):
            A(f"v_fma_f32 v{vE+r}, v{vS+r}, s36, -v{vM}")
    def pc(stage):
        if stage == 0:
            A(f"v_exp_f32 v{vE}, v{vE}\nv_exp_f32 v{vE+1}, v{vE+1}")
        if stage == 1:
            A(f"v_cvt_pk_bf16_f32 v{vP}, v{vE}, v{vE+1}\nv_add_f32 v{vL}, v{vL}, v{vE}\nv_add_f32 v{vL}, v{vL}, v{vE+1}")
        if stage == 2:
            for e in range(4):
                A(f"v_and_b32 v{vA+e}, v{vMASK+e}, v{vP}")
    def vconsume(c):
        if c < 4:
            pc(c)
            for w in range(4):
                A(f"v_mov_b32 v{vH+4*c+w}, v{vVB+4*c+w}")
        else:
            pvstep(c, True)

    A("L_vloop:")
    A(f"""
    v_readlane_b32 s44, v{vBT}, s34
    s_add_u32 s34, s34, 1
    s_waitcnt lgkmcnt(0)
    """)
    if o.ff:
        fast, slow, dflt = [LV[int(ch)] for ch in o.fflv]
        A(f"""
        s_sub_u32 s40, s84, s86
        s_sub_i32 s40, s40, {o.ffc0}
        s_mul_i32 s40, s40, {o.ffg}
        s_ashr_i32 s40, s40, 8
        s_add_i32 s40, s40, {o.ffr + 2}
        s_cmp_lt_i32 s34, s40
        s_cselect_b32 s81, {fast}, {slow}
        s_cmp_eq_u32 s86, 0
        s_cselect_b32 s81, {dflt}, s81
        s_cmp_gt_u32 s34, {o.ffr}
        s_cselect_b32 s40, 8, 0x80
        s_load_dword s86, s[16:17], s40
        """)
    itstamp()
    vtop()
    A(f"ds_read2_b32 {vr(vS,2)}, v{vSB} offset0:0 offset1:16")
    A(f"v_add_u32 v{vSB}, 0x80, v{vSB}")
    nxt = NV
    for c in range(8):
        hi = c + wv[c]
        A(f"s_waitcnt vmcnt({nxt - c - 1})")
        while nxt <= hi:
            if nxt == 8:
                A(f"""
                s_cmp_lg_u32 s33, 1
                s_cbranch_scc1 L_vnotpen
                v_mov_b32 v{vV0}, v{vSP+2}
                v_mov_b32 v{vV0+1}, v{vSP+3}
                s_mov_b32 s44, 0
                L_vnotpen:
                """)
            assert nxt - 8 < c, "V register reuse"
            vload(nxt & 7, "s43" if nxt < 8 else "s44")
            nxt += 1
            if (o.thr or o.ff) and nxt == hi:
                A(f"""
                s_bitcmp0_b32 s81, {c >> 1}
                s_cbranch_scc1 L_vt{c}
                s_waitcnt vmcnt({nxt - c - 2})
                L_vt{c}:
                """)
        vconsume(c)
    assert nxt == 8 + NV
    A(f"""
    s_mov_b32 s43, s44
    s_sub_u32 s33, s33, 1
    s_cmp_lg_u32 s33, 0
    s_cbranch_scc1 L_vloop
    """)
    A("L_vlast:")
    for i in range(NV, 8):
        vload(i, "s43")
    A("s_waitcnt lgkmcnt(0)")
    A("s_load_dwordx2 s[52:53], s[16:17], 0")
    A(f"""
    v_lshlrev_b32 v{vL16}, 4, v1
    s_lshl_b32 s40, s29, 12
    v_lshrrev_b32 v6, 5, v1
    v_lshl_add_u32 v{vLW}, v6, 11, s40
    v_lshl_add_u32 v{vLW}, v13, 6, v{vLW}
    v_bfe_u32 v6, v1, 4, 1
    v_lshl_add_u32 v{vLW}, v6, 4, v{vLW}
    s_lshl_b32 s40, s29, 4
    v_lshl_add_u32 v{vLM}, v15, 3, s40
    s_lshl_b32 s40, s30, 17
    s_add_u32 s46, s18, s40
    s_addc_u32 s47, s19, 0
    s_lshl_b32 s40, s31, 7
    s_lshl_b32 s41, s29, 15
    s_add_u32 s40, s40, s41
    v_lshl_add_u32 v{vRX}, v12, 12, s40
    v_lshl_add_u32 v{vRX}, v13, 4, v{vRX}
    s_lshl_b32 s40, s29, 9
    v_lshl_add_u32 v{vRX2}, v1, 3, s40
    v_and_b32 v6, 1, v1
    v_lshlrev_b32 v{vRM}, 3, v6
    s_and_b32 s40, s31, 7
    s_lshl_b32 s40, s40, 2
    s_add_u32 s40, s40, s29
    s_lshl_b32 s41, s40, 12
    s_add_u32 s48, s46, s41
    s_addc_u32 s49, s47, 0
    s_lshl_b32 s41, s40, 4
    s_add_u32 s42, s42, s41
    v_lshrrev_b32 v13, 1, v13
    v_lshl_add_u32 v{vOUT}, v13, 2, s42
    v_lshl_add_u32 v{vOUT}, v6, 9, v{vOUT}
    """)
    vtop()
    pc(0)
    A("s_nop 0")
    pc(1)
    pc(2)
    A(f"""
    v_mov_b32 v{vU}, v{vL}
    s_mov_b32 s56, 0x00ff00ff
    s_mov_b32 s57, 0xff00ff00
    v_permlane32_swap_b32 v{vL}, v{vU}
    v_add_f32 v{vL}, v{vL}, v{vU}
    v_mov_b32 v{vU}, v{vL}
    s_nop 1
    v_permlane16_swap_b32 v{vL}, v{vU}
    v_add_f32 v{vL}, v{vL}, v{vU}
    s_nop 1
    v_add_f32_dpp v{vL}, v{vL}, v{vL} row_ror:8 {DPPM}
    ds_write_b64 v{vLM}, v[{vM}:{vL}] offset:{ML_OFF}
    """)
    def tilewrite(cb):
        A("s_mov_b64 exec, s[56:57]")
        for wh in range(2):
            A(f"ds_write_b128 v{vLW}, {vr(vACC+(cb*2+wh)*4,4)} offset:{cb*512+wh*32}")
        A("s_mov_b64 exec, -1")
    for i in range(4, 8):
        A(f"s_waitcnt vmcnt({7 - i})")
        pvstep(i, False)
        if i > 4:
            tilewrite(VORD[i-1][0])
    if o.itstamps:
        A(f"""
        s_waitcnt lgkmcnt(0)
        v_writelane_b32 v89, s98, m0
        s_lshl_b32 s40, s2, 2
        s_add_u32 s40, s40, s29
        s_lshl_b32 s40, s40, 8
        s_add_u32 s40, s40, {STAMP_OFF + (1<<20)}
        v_lshlrev_b32 v{vT}, 2, v1
        v_add_u32 v{vT}, s40, v{vT}
        global_store_dword v{vT}, v89, s[18:19]
        """)
    stamp(3)
    A(f"""
    s_mov_b64 exec, s[56:57]
    s_nop 0
    ds_write_b128 v{vLW}, {vr(vACC+(VORD[7][0]*2)*4,4)} offset:{VORD[7][0]*512}
    s_nop 0
    ds_write_b128 v{vLW}, {vr(vACC+(VORD[7][0]*2+1)*4,4)} offset:{VORD[7][0]*512+32}
    s_mov_b64 exec, -1
    s_waitcnt lgkmcnt(0)
    s_cmp_lg_u32 s53, 0
    s_cbranch_scc1 L_havenonce
    s_mov_b64 exec, 1
    global_atomic_cmpswap_x2 v[{vT}:{vU}], v{vZ}, {vr(vO,4)}, s[16:17] sc0
    s_mov_b64 exec, -1
    s_waitcnt vmcnt(0)
    v_readfirstlane_b32 s52, v{vT}
    v_readfirstlane_b32 s53, v{vU}
    s_cmp_lg_u32 s53, 0
    s_cselect_b32 s52, s52, s50
    s_cselect_b32 s53, s53, s51
    L_havenonce:
    s_cmp_lt_u32 s31, {32-NP}
    s_barrier
    """)
    stamp(4)
    ML = vAE
    X = vKB
    M, Ls, T2 = vB, vB + 1, vB + 2
    O = vO
    for s in range(4):
        A(f"ds_read_b64 {vr(ML+2*s,2)}, v{vRM} offset:{ML_OFF+16*s}")
    for s in range(4):
        A(f"ds_read2st64_b64 {vr(X+4*s,4)}, v{vRX2} offset0:{8*s} offset1:{8*s+4}")
    A(f"""
    s_waitcnt lgkmcnt(4)
    v_max3_f32 v{M}, v{ML}, v{ML+2}, v{ML+4}
    v_max_f32 v{M}, v{M}, v{ML+6}
    """)
    for s in range(4):
        A(f"v_sub_f32 v{ML+2*s}, v{ML+2*s}, v{M}")
    for s in range(4):
        A(f"v_exp_f32 v{ML+2*s}, v{ML+2*s}")
    A(f"v_mul_f32 v{Ls}, v{ML}, v{ML+1}")
    for s in range(1, 4):
        A(f"v_fmac_f32 v{Ls}, v{ML+2*s}, v{ML+2*s+1}")
    A(f"""
    v_max_f32 v{Ls}, 0x0da24260, v{Ls}
    v_log_f32 v{T2}, v{Ls}
    v_rcp_f32 v{Ls}, v{Ls}
    s_waitcnt lgkmcnt(0)
    v_mul_f32 v{O}, v{ML}, v{X}
    v_mul_f32 v{O+2}, v{ML}, v{X+1}
    v_add_f32 v{T2}, v{T2}, v{M}
    """)
    for s in range(1, 8):
        A(f"v_fmac_f32 v{O}, v{ML+2*(s>>1)}, v{X+2*s}")
        A(f"v_fmac_f32 v{O+2}, v{ML+2*(s>>1)}, v{X+2*s+1}")
    A(f"""
    v_xor_b32 v{O+1}, s52, v{T2}
    v_xor_b32 v{O+3}, s53, v{T2}
    v_mul_f32 v{O}, v{O}, v{Ls}
    v_mul_f32 v{O+2}, v{O+2}, v{Ls}
    global_store_dwordx4 v{vRX}, {vr(O,4)}, s[46:47] {o.stf}
    """)
    if o.dual:
        A(f"v_add_u32 v{vRX}, 0x100000, v{vRX}")
        A(f"global_store_dwordx4 v{vRX}, {vr(O,4)}, s[46:47] sc1")
    stamp(5)
    PX = vVB
    PL = vVB + 16
    msk = lambda k: f"s[{90+2*k}:{91+2*k}]"
    A("s_cbranch_scc1 L_fin")
    A("s_xor_b32 s53, s53, s52")
    for k in range(4):
        A(f"s_mov_b64 {msk(k)}, -1")
    if not o.noack:
        A("s_waitcnt vmcnt(0)")
    if o.dual:
        A(f"s_mov_b32 s59, {o.dual}")
    A("L_poll:")
    if o.dual:
        A(f"""
        s_sub_u32 s59, s59, 1
        s_cmp_lg_u32 s59, 0
        s_cbranch_scc1 L_nosw
        v_xor_b32 v{vL16}, 0x100000, v{vL16}
        s_mov_b32 s59, {o.dual}
        L_nosw:
        """)
    for k in range(4):
        A(f"s_mov_b64 exec, {msk(k)}")
        A(f"global_load_dwordx4 {vr(PX+4*k,4)}, v{vL16}, s[48:49] offset:{1024*k} {o.ldf}")
    A("s_mov_b64 exec, -1")
    A("s_waitcnt vmcnt(0)")
    for k in range(4):
        A(f"v_xor_b32 v{PL+4+k}, v{PX+4*k+1}, v{PX+4*k+3}")
    for k in range(4):
        A(f"v_xor_b32_dpp v{PL+8+k}, v{PX+4*k+1}, v{PX+4*k+1} quad_perm:[2,3,0,1] {DPPM}")
    for k in range(4):
        A(f"v_xor_b32 v{PL+4+k}, s53, v{PL+4+k}")
    for k in range(4):
        A(f"v_or_b32 v{PL+4+k}, v{PL+4+k}, v{PL+8+k}")
    for k in range(4):
        A(f"v_or_b32_dpp v{PL+4+k}, v{PL+4+k}, v{PL+4+k} quad_perm:[1,0,3,2] {DPPM}")
    for k in range(4):
        A(f"v_or_b32_dpp v{PL+4+k}, v{PL+4+k}, v{PL+4+k} quad_perm:[2,3,0,1] {DPPM}")
    for k in range(4):
        A(f"v_or_b32_dpp v{PL+4+k}, v{PL+4+k}, v{PL+4+k} row_half_mirror {DPPM}")
    for k in range(4):
        A(f"v_cmp_ne_u32 {msk(k)}, 0, v{PL+4+k}")
    for k in range(4):
        A(f"v_xor_b32 v{PL+k}, s52, v{PX+4*k+1}")
    A(f"""
    s_or_b64 s[40:41], {msk(0)}, {msk(1)}
    s_or_b64 s[42:43], {msk(2)}, {msk(3)}
    s_or_b64 s[44:45], s[40:41], s[42:43]
    s_cbranch_scc0 L_go
    s_bcnt1_i32_b64 s40, s[40:41]
    s_bcnt1_i32_b64 s41, s[42:43]
    s_add_u32 s40, s40, s41
    s_cmp_le_u32 s40, {o.tight*8}
    s_cbranch_scc1 L_poll
    s_sleep {o.sleep}
    s_branch L_poll
    L_go:
    """)
    stamp(6)
    A(f"""
    v_max3_f32 v{M}, v{PL}, v{PL+1}, v{PL+2}
    v_max_f32 v{M}, v{M}, v{PL+3}
    v_mov_b32 v{T2}, v{M}
    s_nop 1
    v_permlane32_swap_b32 v{M}, v{T2}
    v_max_f32 v{M}, v{M}, v{T2}
    v_mov_b32 v{T2}, v{M}
    s_nop 1
    v_permlane16_swap_b32 v{M}, v{T2}
    v_max_f32 v{M}, v{M}, v{T2}
    s_nop 1
    v_max_f32_dpp v{M}, v{M}, v{M} row_ror:8 {DPPM}
    """)
    for k in range(4):
        A(f"v_sub_f32 v{PL+k}, v{PL+k}, v{M}")
    for k in range(4):
        A(f"v_exp_f32 v{PL+k}, v{PL+k}")
    A(f"""
    v_mul_f32 v{PX}, v{PL}, v{PX}
    v_mul_f32 v{PX+2}, v{PL}, v{PX+2}
    v_add_f32 v{Ls}, v{PL}, v{PL+1}
    v_add_f32 v{T2}, v{PL+2}, v{PL+3}
    v_add_f32 v{Ls}, v{Ls}, v{T2}
    """)
    for k in range(1, 4):
        A(f"v_fmac_f32 v{PX}, v{PL+k}, v{PX+4*k}")
        A(f"v_fmac_f32 v{PX+2}, v{PL+k}, v{PX+4*k+2}")
    A(f"""
    v_mov_b32 v{T2}, v{Ls}
    v_mov_b32 v{PX+1}, v{PX}
    v_mov_b32 v{PX+3}, v{PX+2}
    v_permlane32_swap_b32 v{Ls}, v{T2}
    v_permlane32_swap_b32 v{PX}, v{PX+1}
    v_permlane32_swap_b32 v{PX+2}, v{PX+3}
    v_add_f32 v{Ls}, v{Ls}, v{T2}
    v_add_f32 v{PX}, v{PX}, v{PX+1}
    v_add_f32 v{PX+2}, v{PX+2}, v{PX+3}
    v_mov_b32 v{T2}, v{Ls}
    v_mov_b32 v{PX+1}, v{PX}
    v_mov_b32 v{PX+3}, v{PX+2}
    v_permlane16_swap_b32 v{Ls}, v{T2}
    v_permlane16_swap_b32 v{PX}, v{PX+1}
    v_permlane16_swap_b32 v{PX+2}, v{PX+3}
    v_add_f32 v{Ls}, v{Ls}, v{T2}
    v_add_f32 v{PX}, v{PX}, v{PX+1}
    v_add_f32 v{PX+2}, v{PX+2}, v{PX+3}
    v_add_f32_dpp v{Ls}, v{Ls}, v{Ls} row_ror:8 {DPPM}
    v_add_f32_dpp v{PX}, v{PX}, v{PX} row_ror:8 {DPPM}
    v_add_f32_dpp v{PX+2}, v{PX+2}, v{PX+2} row_ror:8 {DPPM}
    v_rcp_f32 v{Ls}, v{Ls}
    s_mov_b64 exec, 0xff
    v_mul_f32 v{PX}, v{PX}, v{Ls}
    v_mul_f32 v{PX+2}, v{PX+2}, v{Ls}
    v_cvt_pk_bf16_f32 v{PX}, v{PX}, v{PX+2}
    global_store_dword v{vOUT}, v{PX}, s[14:15]
    """)
    if o.diag:
        A("s_memrealtime s[40:41]\ns_waitcnt lgkmcnt(0)\ns_bitset0_b32 s40, 31")
        if o.diag == "span":
            A("s_sub_u32 s42, s40, s52")
        elif o.diag == "skew":
            A("s_sub_u32 s42, s50, s52\ns_mul_i32 s42, s42, 10")
        elif o.diag == "zero":
            A("s_mov_b32 s42, 0")
        A("""
        s_max_i32 s42, s42, 0
        s_min_i32 s42, s42, 20000
        s_mov_b32 s44, 0
        L_spin:
        s_memrealtime s[46:47]
        s_waitcnt lgkmcnt(0)
        s_bitset0_b32 s46, 31
        s_sub_u32 s43, s46, s40
        s_add_u32 s44, s44, 1
        s_cmp_gt_u32 s44, 20000
        s_cbranch_scc1 L_fin
        s_cmp_lt_u32 s43, s42
        s_cbranch_scc1 L_spin
        """)
    A("L_fin:")
    if nst:
        A("s_mov_b64 exec, -1")
        A("s_waitcnt vmcnt(0)")
        stamp(nst - 1)
        A(f"""
        s_lshl_b32 s40, s2, 2
        s_add_u32 s40, s40, s29
        s_mul_i32 s40, s40, {nst*8}
        s_add_u32 s40, s40, {STAMP_OFF}
        v_mov_b32 v1, s40
        s_waitcnt lgkmcnt(0)
        s_mov_b64 exec, 1
        """)
        for i in range(nst):
            A(f"v_mov_b32 v2, s{sST+2*i}")
            A(f"v_mov_b32 v3, s{sST+2*i+1}")
            A(f"global_store_dwordx2 v1, v[2:3], s[18:19] offset:{8*i}")
            A(f"s_nop 1")
    A("L_end:")
    A("s_endpgm")
    lds = ML_OFF + 64
    out = HEADER
    out += f"; @launch grid=(256,1,1) block=(256,1,1) lds={lds}\n"
    out += f""".amdgcn_target "amdgcn-amd-amdhsa--gfx950"
.text
.globl {KN}
.p2align 8
.type {KN},@function
{KN}:
"""
    out += A.text()
    acc = min(256, (o.vgpr + 3) // 4 * 4)
    out += f""".section .rodata,"a"
.p2align 6
.amdhsa_kernel {KN}
  .amdhsa_next_free_vgpr {o.vgpr}
  .amdhsa_next_free_sgpr 102
  .amdhsa_accum_offset {acc}
  .amdhsa_group_segment_fixed_size 0
  .amdhsa_kernarg_size 64
  .amdhsa_user_sgpr_count 2
  .amdhsa_user_sgpr_kernarg_segment_ptr 1
  .amdhsa_system_sgpr_workgroup_id_x 1
.end_amdhsa_kernel
"""
    return out

if __name__ == "__main__":
    ap = argparse.ArgumentParser()
    ap.add_argument("out")
    ap.add_argument("--map", type=int, default=1)
    ap.add_argument("--wk", default="65656565")
    ap.add_argument("--wv", default="65656565")
    ap.add_argument("--kord", default="D")
    ap.add_argument("--vord", default="D")
    ap.add_argument("--vgpr", type=int, default=512)
    ap.add_argument("--sleep", type=int, default=6)
    ap.add_argument("--tight", type=int, default=4)
    ap.add_argument("--sort", type=int, default=1)
    ap.add_argument("--stf", default="sc1")
    ape = ap.add_argument("--ldf", default="sc1")
    ap.add_argument("--noack", action="store_true")
    ap.add_argument("--np", type=int, default=8)
    ap.add_argument("--dual", type=int, default=0)
    ap.add_argument("--skew", default="")
    ap.add_argument("--thr", default="")
    ap.add_argument("--tlb", action="store_true")
    ap.add_argument("--diag", default="")
    ap.add_argument("--icp", action="store_true")
    ap.add_argument("--ff", action="store_true")
    ap.add_argument("--fflv", default="032")
    ap.add_argument("--ffc0", type=int, default=20)
    ap.add_argument("--ffg", type=int, default=32)
    ap.add_argument("--ffr", type=int, default=2)
    ap.add_argument("--thrk", default="")
    ap.add_argument("--stamps", type=int, default=0)
    ap.add_argument("--itstamps", action="store_true")
    o = ap.parse_args()
    open(o.out, "w").write(gen(o))
```

```python
import sys, argparse

KN = "standalone__paged_block_table_kv_pagedattention__decode_kernel"
HEADER = open("standalone__paged_block_table_kv_pagedattention__decode.s.ref").read().split("; Override launch")[0]
KV_BYTES = 4100 * 65536
STAMP_OFF = 512 << 20
ML_OFF = 16384
SC_OFF = 0

class Asm:
    def __init__(self):
        self.l = []
    def __call__(self, s):
        for line in s.strip("\n").split("\n"):
            t = line.strip()
            if not t:
                continue
            self.l.append(t if t.endswith(":") else "    " + t)
    def text(self):
        return "\n".join(self.l) + "\n"

def vr(b, n):
    return f"v[{b}:{b+n-1}]"
DPPM = "row_mask:0xf bank_mask:0xf"

def gen(o):
    A = Asm()
    fl = " nt"
    STRIDE = 128
    NP = 8
    wk = [int(ch, 16) for ch in o.wk]
    wv = [int(ch, 16) for ch in o.wv]
    assert len(wk) == 8 and len(wv) == 8 and max(wk) <= 7 and max(wv) <= 7
    vK0, vV0 = 2, 4
    vM, vL = 8, 9
    vT, vU, vX2, vX3 = 10, 11, 12, 13
    vP = 14
    vS = 16
    vD1 = 20
    vMASK = 24
    vA = 28
    vAE = 40
    vB = 56
    vACC = 200
    vQ = 72
    vG4 = 88
    vLW, vLM, vL16, vRX, vRX2, vRM, vSA, vSB, vOUT, vZ = range(90, 100)
    vKB = 100
    vVB = 132
    vO = 164
    vSP = 168
    vH = 176
    vBT = 196
    vE = 192
    KORD = {"N": [(i >> 1, i & 1) for i in range(8)],
            "M": [(i & 3, i >> 2) for i in range(8)],
            "D": [(0,0),(1,1),(2,0),(3,1),(1,0),(0,1),(3,0),(2,1)],
            "E": [(0,0),(2,1),(1,0),(3,1),(2,0),(0,1),(3,0),(1,1)]}[o.kord]
    KFIRST = {hp: min(i for i in range(8) if KORD[i][1] == hp) for hp in (0, 1)}
    VORD = {"D": [(0,0),(1,1),(2,0),(3,1),(1,0),(0,1),(3,0),(2,1)],
            "I": [(0,0),(3,1),(2,0),(1,1),(1,0),(2,1),(3,0),(0,1)],
            "J": [(0,0),(2,0),(1,1),(3,1),(1,0),(3,0),(0,1),(2,1)]}[o.vord]
    PARTNER = {i: [k for k in range(4) if VORD[k][0] == VORD[i][0]][0] for i in range(4, 8)}
    nst = o.stamps
    sST = 60
    def stamp(i):
        if nst and i < nst:
            A(f"s_memrealtime s[{sST+2*i}:{sST+2*i+1}]")
    def itstamp():
        if o.itstamps:
            A("v_writelane_b32 v89, s98, m0\ns_add_u32 m0, m0, 1\ns_memrealtime s[98:99]")

    def kload(i, sreg):
        j, hp = KORD[i]
        A(f"buffer_load_dwordx4 {vr(vKB+4*i,4)}, v{vK0+hp}, s[20:23], {sreg} offen offset:{128*j}{fl}")
    def vload(i, sreg):
        cb, t = VORD[i]
        A(f"buffer_load_dwordx4 {vr(vVB+4*i,4)}, v{vV0+t}, s[24:27], {sreg} offen offset:{128*cb}{fl}")
    def qk(c):
        j, hp = KORD[c]
        d = vD1 if hp else vS
        cc = "0" if c == KFIRST[hp] else vr(d, 4)
        A(f"v_mfma_f32_16x16x32_bf16 {vr(d,4)}, {vr(vKB+4*c,4)}, {vr(vQ+4*j,4)}, {cc}")
    def pvstep(i, held):
        cb, t = VORD[i]
        k = PARTNER[i]
        me, other = vVB + 4 * i, (vH if held else vVB) + 4 * k
        l0, l1 = (me, other) if t == 0 else (other, me)
        bb = vB + 8 * (i & 1)
        ps, ms = [], []
        for w in range(4):
            ps.append(f"v_perm_b32 v{bb+2*w}, v{l1+w}, v{l0+w}, s37")
            ps.append(f"v_perm_b32 v{bb+2*w+1}, v{l1+w}, v{l0+w}, s38")
            acc = vACC + (cb * 2 + (w >> 1)) * 4
            ms.append(f"v_mfma_f32_16x16x16_bf16 {vr(acc,4)}, {vr(vA+2*(w&1),2)}, {vr(bb+2*w,2)}, {vr(acc,4)}")
        for x in ps[:4] + [ms[0]] + ps[4:6] + [ms[1]] + ps[6:8] + [ms[2], "s_nop 0", ms[3]]:
            A(x)

    def finalize(mask):
        for r in range(4):
            A(f"v_permlane32_swap_b32 v{vS+r}, v{vD1+r}")
        for r in range(4):
            A(f"v_mov_b32_dpp v{vD1+r}, v{vD1+r} quad_perm:[1,1,3,3] {DPPM}")
        for r in range(4):
            A(f"v_add_f32_dpp v{vE+r}, v{vS+r}, v{vD1+r} quad_perm:[0,0,2,2] {DPPM}")
        if mask:
            A(f"v_mov_b32 v{vU}, 0xff800000")
            for r in range(4):
                A(f"v_cmp_gt_i32 vcc, s35, v{vG4}")
                A(f"s_sub_u32 s35, s35, 1")
                A(f"s_nop 0")
                A(f"v_cndmask_b32 v{vE+r}, v{vU}, v{vE+r}, vcc")
        A(f"""
        s_mov_b64 exec, s[56:57]
        ds_write_b128 v{vSA}, {vr(vE,4)}
        s_mov_b64 exec, -1
        v_max3_f32 v{vM}, v{vM}, v{vE}, v{vE+1}
        v_add_u32 v{vSA}, 0x80, v{vSA}
        v_max3_f32 v{vM}, v{vM}, v{vE+2}, v{vE+3}
        """)

    if o.diag in ("pro", "pro1"):
        A("s_memrealtime s[88:89]")
    assert o.map == 1 and o.sort == 2
    stamp(0)
    A(f"""
    s_load_dwordx8 s[4:11], s[0:1], 0
    s_load_dwordx8 s[12:19], s[0:1], 32
    """)
    if o.icp:
        A("""
        s_getpc_b64 s[86:87]
        L_pc:
        v_lshlrev_b32 v6, 7, v0
        v_min_u32 v6, L_end-L_pc, v6
        global_load_dword v199, v6, s[86:87]
        """)
    A(f"""
    v_readfirstlane_b32 s29, v0
    s_cmp_ge_u32 s2, 256
    s_cbranch_scc1 L_end
    s_and_b32 s31, s2, 31
    s_lshl_b32 s34, s29, 1
    s_lshl2_add_u32 s34, s31, s34
    s_waitcnt lgkmcnt(0)
    s_load_dword s43, s[10:11], s34
    s_load_dword s28, s[12:13], 0
    v_and_b32 v1, 63, v0
    s_lshr_b32 s30, s2, 5
    s_lshr_b32 s29, s29, 6
    s_lshr_b32 s32, s34, 2
    v_and_b32 v10, 15, v1
    v_lshrrev_b32 v11, 4, v1
    s_lshl_b32 s41, s30, 9
    v_and_b32 v{vK0}, 7, v1
    v_lshlrev_b32 v{vK0}, 12, v{vK0}
    v_bfe_u32 v{vK0+1}, v1, 3, 1
    v_lshl_add_u32 v{vK0}, v{vK0+1}, 6, v{vK0}
    v_lshl_add_u32 v{vK0}, v11, 4, v{vK0}
    v_add_u32 v{vK0}, s41, v{vK0}
    v_add_u32 v{vK0+1}, 0x8000, v{vK0}
    s_mov_b32 s20, s6
    s_and_b32 s21, s7, 0xffff
    s_mov_b32 s22, {KV_BYTES}
    s_mov_b32 s23, 0x20000
    s_lshl_b32 s40, s31, 2
    v_lshl_add_u32 v6, v10, 9, s40
    v_lshl_add_u32 v6, v11, 7, v6
    v_add_u32 v7, 0x2000, v6
    global_load_dword v{vBT}, v6, s[10:11]
    global_load_dword v{vBT+1}, v7, s[10:11]
    v_bfe_u32 v15, v1, 1, 1
    v_lshlrev_b32 v12, 9, v15
    v_lshl_add_u32 v12, v11, 4, v12
    v_and_b32 v14, 1, v1
    v_lshl_add_u32 v12, v14, 6, v12
    s_lshl_b32 s42, s30, 10
    v_add_u32 v12, s42, v12
    """)
    stamp(1)
    if o.diag == "pro1":
        A("s_memrealtime s[100:101]")
    for j in range(4):
        A(f"global_load_dwordx4 {vr(vQ+4*j,4)}, v12, s[4:5] offset:{128*j}")
    A(f"""
    s_waitcnt lgkmcnt(0)
    s_lshl_b32 s43, s43, 16
    s_cmp_lt_i32 s28, 1
    s_cselect_b32 s36, 0, 0x3db8aa3b
    s_cselect_b32 s28, 0x10000, s28
    s_min_i32 s28, s28, 0x10000
    s_sub_u32 s33, s28, 1
    s_lshr_b32 s33, s33, 11
    s_cbranch_scc0 L_skip0
    """)
    stamp(2)
    LV = [0x0, 0x2, 0xa, 0xe, 0xf]
    THR = ""
    if o.thr:
        tab = sum(LV[int(ch)] << (4 * i) for i, ch in enumerate(o.thr))
        THR = f"""s_getreg_b32 s40, hwreg(HW_REG_XCC_ID)
        s_and_b32 s40, s40, 7
        s_lshl_b32 s40, s40, 2
        s_lshr_b32 s81, {tab:#x}, s40"""
        if o.thrk:
            tabk = sum(LV[int(ch)] << (4 * i) for i, ch in enumerate(o.thrk))
            THR += f"\ns_lshr_b32 s80, {tabk:#x}, s40"
    NONCESEL = "s_lshl_b32 s40, s2, 2\ns_add_u32 s40, s40, s29\ns_cmp_lg_u32 s40, 1023"
    if o.diag:
        NONCESEL = "s_lshl_b32 s40, s29, 8\ns_or_b32 s40, s40, s2\ns_cmp_ge_u32 s40, 8"
    TL = ""
    if o.tlb:
        TL = """s_lshr_b32 s56, s2, 3
        s_lshl_b32 s56, s56, 2
        s_add_u32 s56, s56, s29
        s_lshl_b32 s56, s56, 21
        s_load_dword s100, s[6:7], s56
        s_load_dword s101, s[8:9], s56"""
    SKEW = ""
    if o.skew:
        d = [int(x) for x in o.skew.split(",")]
        assert len(d) == 8 and sum(d) == 0
        cum = [0]
        for x in d: cum.append(cum[-1] + x)
        off = -min(cum)
        assert max(cum) + off <= 15
        tab = sum(((cum[i] + off) & 15) << (4 * i) for i in range(8))
        lo = max(0, -min(d)) * 128
        hi = (16 - max(d) - 1) * 128 + 128
        SKEW = f"""s_and_b32 s54, s32, 7
        s_lshl_b32 s54, s54, 2
        s_lshr_b32 s55, {tab:#x}, s54
        s_and_b32 s55, s55, 15
        s_add_u32 s54, s54, 4
        s_and_b32 s54, s54, 31
        s_lshr_b32 s54, {tab:#x}, s54
        s_and_b32 s54, s54, 15
        s_sub_u32 s44, s40, {lo}
        s_cmp_le_u32 s44, {hi - lo}
        s_cselect_b32 s55, s55, {off}
        s_cselect_b32 s54, s54, {off}
        s_add_u32 s45, s45, s55
        s_add_u32 s35, s35, s54
        s_sub_u32 s45, s45, {off}
        s_sub_u32 s35, s35, {off}"""
    NB = 1 + wk[0]
    for i in range(NB):
        kload(i, "s43")
    A(f"""
    L_skip0:
    {TL}
    s_mov_b32 s24, s8
    s_and_b32 s25, s9, 0xffff
    s_mov_b32 s26, s22
    s_mov_b32 s27, 0x20000
    s_mov_b32 s58, s43
    s_mov_b32 s78, s33
    s_lshl_b32 s40, s33, 11
    s_sub_u32 s40, s28, s40
    s_mul_i32 s45, s40, s32
    s_add_u32 s35, s45, s40
    s_lshr_b32 s45, s45, 7
    s_lshr_b32 s35, s35, 7
    {SKEW}
    s_sub_u32 s35, s35, s45
    s_lshr_b32 s40, s45, 4
    s_lshl_b32 s54, s33, 7
    s_add_u32 s40, s40, s54
    s_lshl_b32 s40, s40, 2
    s_and_b32 s40, s40, 0x3ffc
    s_add_u32 s44, s40, 4
    s_and_b32 s44, s44, 0x3ffc
    s_load_dword s54, s[10:11], s40
    s_load_dword s55, s[10:11], s44
    s_and_b32 s45, s45, 15
    s_memrealtime s[50:51]
    """)
    if o.sort == 2:
        kq, kt, ka, kb = 16, 17, 18, 19
        R = [20, 21, 22, 23]
        A(f"""
        s_mov_b32 s59, s33
        s_mov_b32 s39, 0
        v_mov_b32 v7, 0
        v_mov_b32 v{vBT+2}, 0
        s_waitcnt vmcnt({NB + 4})
        L_sort:
        v_cmp_gt_i32 vcc, s59, v10
        v_mov_b32 v{kt}, 0x800000
        v_and_b32 v{kq}, 0xffff, v{vBT}
        v_add_u32 v{kq}, 1, v{kq}
        v_cndmask_b32 v{kq}, v{kt}, v{kq}, vcc
        v_cmp_ne_u32 vcc, v7, v10
        v_lshlrev_b32 v{vBT}, 16, v{vBT}
        v_mov_b32 v7, -1
        v_cndmask_b32 v{kq}, 0, v{kq}, vcc
        v_lshl_or_b32 v{kq}, v{kq}, 6, v1
        v_mov_b32 v{R[0]}, v{kq}
        v_mov_b32 v{R[1]}, v{kq}
        s_nop 1
        v_permlane16_swap_b32 v{R[0]}, v{R[1]}
        v_mov_b32 v{R[2]}, v{R[0]}
        v_mov_b32 v{R[3]}, v{R[1]}
        s_nop 0
        v_permlane32_swap_b32 v{R[0]}, v{R[2]}
        v_permlane32_swap_b32 v{R[1]}, v{R[3]}
        """)
        for j in range(4):
            acc = ka if j < 2 else kb
            A(f"v_sub_u32 v{kt}, v{R[j]}, v{kq}")
            A(f"v_alignbit_b32 v{acc}, v{acc}, v{kt}, 31")
            for r in range(1, 16):
                A(f"v_sub_u32_dpp v{kt}, v{R[j]}, v{kq} row_ror:{r} {DPPM}")
                A(f"v_alignbit_b32 v{acc}, v{acc}, v{kt}, 31")
        A(f"""
        v_bcnt_u32_b32 v{ka}, v{ka}, 0
        v_bcnt_u32_b32 v{ka}, v{kb}, v{ka}
        v_and_b32 v{kt}, 3, v{ka}
        v_cmp_eq_u32 vcc, s29, v{kt}
        v_and_b32 v{ka}, 60, v{ka}
        v_add_u32 v{ka}, s39, v{ka}
        v_mov_b32 v{kt}, 0xfc
        v_cndmask_b32 v{ka}, v{kt}, v{ka}, vcc
        ds_permute_b32 v{kt}, v{ka}, v{vBT}
        v_mov_b32 v{vBT}, v{vBT+1}
        s_sub_i32 s59, s59, 16
        s_add_u32 s39, s39, 64
        s_cmp_gt_i32 s59, 0
        s_waitcnt lgkmcnt(0)
        v_or_b32 v{vBT+2}, v{vBT+2}, v{kt}
        s_cbranch_scc1 L_sort
        v_mov_b32 v{vBT}, v{vBT+2}
        """)
    else:
        kq, ko, kt, ka = 16, 17, 18, 19
        A(f"""
        v_cmp_gt_u32 vcc, s33, v7
        s_waitcnt vmcnt({NB + 4})
        v_mov_b32 v{kt}, 0x1000000
        v_and_b32 v{kq}, 0xffff, v{vBT}
        v_add_u32 v{kq}, 1, v{kq}
        v_cndmask_b32 v{kq}, v{kt}, v{kq}, vcc
        v_cmp_ne_u32 vcc, 0, v7
        v_lshlrev_b32 v{vBT}, 16, v{vBT}
        v_mov_b32 v{ka}, 0
        v_cndmask_b32 v{kq}, 0, v{kq}, vcc
        {"" if o.sort else f"v_mov_b32 v{kq}, 0"}
        v_lshl_or_b32 v{kq}, v{kq}, 5, v7
        v_mov_b32 v{ko}, v{kq}
        v_mov_b32 v{kt}, v{kq}
        s_nop 1
        v_permlane16_swap_b32 v{ko}, v{kt}
        s_nop 1
        v_permlane32_swap_b32 v{ko}, v{kt}
        s_nop 0
        v_sub_u32 v{kt}, v{ko}, v{kq}
        v_alignbit_b32 v{ka}, v{ka}, v{kt}, 31
        """)
        for r in range(1, 16):
            A(f"v_sub_u32_dpp v{kt}, v{ko}, v{kq} row_ror:{r} {DPPM}")
            A(f"v_alignbit_b32 v{ka}, v{ka}, v{kt}, 31")
        A(f"""
        v_bcnt_u32_b32 v{ka}, v{ka}, 0
        v_mov_b32 v{kt}, v{ka}
        v_and_b32 v{ko}, 32, v1
        s_nop 0
        v_permlane32_swap_b32 v{ka}, v{kt}
        v_add3_u32 v{ka}, v{ka}, v{kt}, v{ko}
        v_lshlrev_b32 v{ka}, 2, v{ka}
        ds_permute_b32 v{vBT}, v{ka}, v{vBT}
        """)
    A(f"""
    s_mov_b32 s34, 1
    {THR}
    v_mov_b32 v{vM}, 0xff7fffff
    s_lshl_b32 s79, s29, 12
    v_lshl_add_u32 v{vSA}, v11, 5, s79
    v_lshl_add_u32 v{vSA}, v15, 4, v{vSA}
    s_mov_b32 s56, 0x00050005
    s_mov_b32 s57, 0x00050005
    v_mov_b32 v{vZ}, 0
    s_waitcnt lgkmcnt(0)
    s_bitset1_b32 s51, 31
    s_bitset0_b32 s50, 31
    v_mov_b32 v{vO}, s50
    v_mov_b32 v{vO+1}, s51
    v_mov_b32 v{vO+2}, 0
    v_mov_b32 v{vO+3}, 0
    {NONCESEL}
    s_cbranch_scc1 L_nononce
    s_mov_b64 exec, 1
    global_atomic_cmpswap_x2 v{vZ}, {vr(vO,4)}, s[16:17]
    s_mov_b64 exec, -1
    L_nononce:
    s_lshl_b32 s40, s45, 12
    s_lshl_b32 s54, s54, 16
    s_add_u32 s54, s54, s40
    s_sub_u32 s55, s55, 1
    s_lshl_b32 s55, s55, 16
    s_add_u32 s55, s55, s40
    s_sub_u32 s45, 16, s45
    v_mov_b32 v{vSP+4}, s54
    v_mov_b32 v{vSP+5}, s55
    v_bfrev_b32 v{vSP+6}, 1
    """)
    def special(i):
        src = vK0 + i
        A(f"""
        v_bfe_u32 v6, v{src}, 12, 4
        v_cmp_le_u32 vcc, s45, v6
        v_cmp_gt_u32 s[82:83], s35, v6
        s_nop 0
        v_cndmask_b32 v{vSP+i}, v{vSP+4}, v{vSP+5}, vcc
        v_add_u32 v{vSP+i}, v{vSP+i}, v{src}
        v_cndmask_b32 v{vSP+i}, v{vSP+6}, v{vSP+i}, s[82:83]
        """)
    special(0)
    special(1)
    A(f"""
    s_cmp_lg_u32 s33, 0
    s_cbranch_scc1 L_k0
    v_mov_b32 v{vK0}, v{vSP}
    v_mov_b32 v{vK0+1}, v{vSP+1}
    s_mov_b32 s43, 0
    """)
    for i in range(NB):
        kload(i, "s43")
    A(f"s_waitcnt vmcnt({NB-1})")
    qk(0)
    A("s_branch L_klast")
    A("L_k0:")
    if o.itstamps:
        A("s_mov_b32 m0, 0\nv_mov_b32 v89, 0\ns_memrealtime s[98:99]")
    A(f"s_waitcnt vmcnt({NB-1})")
    qk(0)

    A("L_kloop:")
    nxt = NB
    for c in list(range(1, 8)) + [8]:
        hi = c + wk[c & 7]
        if c == 1:
            assert nxt <= 8
            A(f"v_readlane_b32 s44, v{vBT}, s34\ns_add_u32 s34, s34, 1")
            if o.itstamps:
                A("s_waitcnt lgkmcnt(0)")
            itstamp()
            if hi >= 8:
                A("s_nop 1")
        A(f"s_waitcnt vmcnt({nxt - c - 1})")
        nis = 0
        while nxt <= hi:
            if nxt == 8:
                A(f"""
                s_cmp_lg_u32 s33, 1
                s_cbranch_scc1 L_knotpen
                v_mov_b32 v{vK0}, v{vSP}
                v_mov_b32 v{vK0+1}, v{vSP+1}
                s_mov_b32 s44, 0
                L_knotpen:
                """)
            assert nxt - 8 < c, "K register reuse"
            kload(nxt & 7, "s43" if nxt < 8 else "s44")
            nxt += 1
            nis += 1
            if o.thrk and nxt == hi:
                A(f"""
                s_bitcmp0_b32 s80, {(c >> 1) & 3}
                s_cbranch_scc1 L_kt{c}
                s_waitcnt vmcnt({nxt - c - 2})
                L_kt{c}:
                """)
        if c == 8:
            A(f"s_mov_b32 s43, s44\ns_sub_u32 s33, s33, 1\ns_cmp_lg_u32 s33, 0")
            A(f"s_nop {max(0, 7 - 4 - nis)}")
            finalize(False)
        qk(c & 7)
    assert nxt == 8 + NB
    A("s_cbranch_scc1 L_kloop")
    A("L_klast:")
    stamp(7)
    NV = wv[7]
    if o.ff:
        A("s_memrealtime s[84:85]\ns_mov_b32 s86, 0")
    A(f"""
    v_lshrrev_b32 v12, 3, v1
    v_and_b32 v13, 7, v1
    v_lshlrev_b32 v{vV0}, 12, v12
    v_lshl_add_u32 v{vV0}, v13, 4, v{vV0}
    v_add_u32 v{vV0}, s41, v{vV0}
    v_add_u32 v{vV0+1}, 0x8000, v{vV0}
    """)
    special(2)
    special(3)
    A(f"""
    s_cmp_lg_u32 s78, 0
    s_cbranch_scc1 L_vnorm
    v_mov_b32 v{vV0}, v{vSP+2}
    v_mov_b32 v{vV0+1}, v{vSP+3}
    s_mov_b32 s58, 0
    L_vnorm:
    """)
    if o.ff:
        A(f"""
        s_lshl_b32 s40, s29, 8
        s_or_b32 s40, s40, s2
        s_cmp_ge_u32 s40, 8
        s_cbranch_scc1 L_noref
        s_waitcnt lgkmcnt(0)
        s_or_b32 s40, s84, 1
        v_mov_b32 v6, s40
        v_mov_b32 v7, 0
        s_mov_b64 exec, 1
        global_atomic_cmpswap v{vZ}, v[6:7], s[16:17] offset:8
        s_mov_b64 exec, -1
        s_nop 1
        L_noref:
        """)
    def ksetup(c):
        if c == 2:
            A("v_and_b32 v6, 5, v1")
            for e, val in enumerate((0, 1, 4, 5)):
                A(f"v_cmp_eq_u32 vcc, {val}, v6")
                A(f"v_mov_b32 v{vACC+2*e}, 0")
                A(f"v_mov_b32 v{vACC+2*e+1}, 0")
                A(f"v_cndmask_b32 v{vMASK+e}, 0, -1, vcc")
        if c == 4:
            for e in range(8, 24):
                A(f"v_mov_b32 v{vACC+e}, 0")
        if c == 6:
            for e in range(24, 32):
                A(f"v_mov_b32 v{vACC+e}, 0")
            A(f"""
            v_lshlrev_b32 v{vG4}, 2, v11
            s_mov_b32 s37, 0x05040100
            s_mov_b32 s38, 0x07060302
            v_mov_b32 v{vL}, 0
            v_lshrrev_b32 v6, 2, v12
            v_lshl_add_u32 v{vSB}, v6, 5, s79
            v_lshl_add_u32 v{vSB}, v15, 4, v{vSB}
            v_and_b32 v6, 3, v12
            v_lshl_add_u32 v{vSB}, v6, 2, v{vSB}
            """)
    nxt = NB
    for c in range(1, 8):
        hi = min(c + wk[c], 7 + NV)
        A(f"s_waitcnt vmcnt({nxt - c - 1})")
        while nxt <= hi:
            if nxt < 8:
                kload(nxt, "s43")
            else:
                vload(nxt - 8, "s58")
            nxt += 1
        qk(c)
        ksetup(c)
    while nxt < 8 + NV:
        vload(nxt - 8, "s58")
        nxt += 1
    A(f"""
    s_mov_b32 s43, s58
    s_mov_b32 s33, s78
    s_mov_b32 s34, 1
    s_nop 4
    """)
    finalize(True)
    A(f"""
    ds_read2_b32 {vr(vS,2)}, v{vSB} offset0:0 offset1:16
    v_mov_b32 v{vU}, v{vM}
    v_add_u32 v{vSB}, 0x80, v{vSB}
    s_nop 0
    v_permlane32_swap_b32 v{vM}, v{vU}
    v_max_f32 v{vM}, v{vM}, v{vU}
    v_mov_b32 v{vU}, v{vM}
    s_nop 1
    v_permlane16_swap_b32 v{vM}, v{vU}
    v_max_f32 v{vM}, v{vM}, v{vU}
    v_mul_f32 v{vM}, s36, v{vM}
    v_max_f32 v{vM}, 0xf149f2ca, v{vM}
    s_cmp_eq_u32 s33, 0
    s_cbranch_scc1 L_vlast
    """)

    def vtop():
        for r in range(2):
            A(f"v_fma_f32 v{vE+r}, v{vS+r}, s36, -v{vM}")
    def pc(stage):
        if stage == 0:
            A(f"v_exp_f32 v{vE}, v{vE}\nv_exp_f32 v{vE+1}, v{vE+1}")
        if stage == 1:
            A(f"v_cvt_pk_bf16_f32 v{vP}, v{vE}, v{vE+1}\nv_add_f32 v{vL}, v{vL}, v{vE}\nv_add_f32 v{vL}, v{vL}, v{vE+1}")
        if stage == 2:
            for e in range(4):
                A(f"v_and_b32 v{vA+e}, v{vMASK+e}, v{vP}")
    def vconsume(c):
        if c < 4:
            pc(c)
            for w in range(4):
                A(f"v_mov_b32 v{vH+4*c+w}, v{vVB+4*c+w}")
        else:
            pvstep(c, True)

    A("L_vloop:")
    A(f"""
    v_readlane_b32 s44, v{vBT}, s34
    s_add_u32 s34, s34, 1
    s_waitcnt lgkmcnt(0)
    """)
    if o.ff:
        fast, slow, dflt = [LV[int(ch)] for ch in o.fflv]
        A(f"""
        s_sub_u32 s40, s84, s86
        s_sub_i32 s40, s40, {o.ffc0}
        s_mul_i32 s40, s40, {o.ffg}
        s_ashr_i32 s40, s40, 8
        s_add_i32 s40, s40, {o.ffr + 2}
        s_cmp_lt_i32 s34, s40
        s_cselect_b32 s81, {fast}, {slow}
        s_cmp_eq_u32 s86, 0
        s_cselect_b32 s81, {dflt}, s81
        s_cmp_gt_u32 s34, {o.ffr}
        s_cselect_b32 s40, 8, 0x80
        s_load_dword s86, s[16:17], s40
        """)
    itstamp()
    vtop()
    A(f"ds_read2_b32 {vr(vS,2)}, v{vSB} offset0:0 offset1:16")
    A(f"v_add_u32 v{vSB}, 0x80, v{vSB}")
    nxt = NV
    for c in range(8):
        hi = c + wv[c]
        A(f"s_waitcnt vmcnt({nxt - c - 1})")
        while nxt <= hi:
            if nxt == 8:
                A(f"""
                s_cmp_lg_u32 s33, 1
                s_cbranch_scc1 L_vnotpen
                v_mov_b32 v{vV0}, v{vSP+2}
                v_mov_b32 v{vV0+1}, v{vSP+3}
                s_mov_b32 s44, 0
                L_vnotpen:
                """)
            assert nxt - 8 < c, "V register reuse"
            vload(nxt & 7, "s43" if nxt < 8 else "s44")
            nxt += 1
            if (o.thr or o.ff) and nxt == hi:
                A(f"""
                s_bitcmp0_b32 s81, {c >> 1}
                s_cbranch_scc1 L_vt{c}
                s_waitcnt vmcnt({nxt - c - 2})
                L_vt{c}:
                """)
        vconsume(c)
    assert nxt == 8 + NV
    A(f"""
    s_mov_b32 s43, s44
    s_sub_u32 s33, s33, 1
    s_cmp_lg_u32 s33, 0
    s_cbranch_scc1 L_vloop
    """)
    A("L_vlast:")
    for i in range(NV, 8):
        vload(i, "s43")
    A("s_waitcnt lgkmcnt(0)")
    A("s_load_dwordx2 s[52:53], s[16:17], 0")
    A(f"""
    v_lshlrev_b32 v{vL16}, 4, v1
    s_lshl_b32 s40, s29, 12
    v_lshrrev_b32 v6, 5, v1
    v_lshl_add_u32 v{vLW}, v6, 11, s40
    v_lshl_add_u32 v{vLW}, v13, 6, v{vLW}
    v_bfe_u32 v6, v1, 4, 1
    v_lshl_add_u32 v{vLW}, v6, 4, v{vLW}
    s_lshl_b32 s40, s29, 4
    v_lshl_add_u32 v{vLM}, v15, 3, s40
    s_lshl_b32 s40, s30, 17
    s_add_u32 s46, s18, s40
    s_addc_u32 s47, s19, 0
    s_lshl_b32 s40, s31, 7
    s_lshl_b32 s41, s29, 15
    s_add_u32 s40, s40, s41
    v_lshl_add_u32 v{vRX}, v12, 12, s40
    v_lshl_add_u32 v{vRX}, v13, 4, v{vRX}
    s_lshl_b32 s40, s29, 9
    v_lshl_add_u32 v{vRX2}, v1, 3, s40
    v_and_b32 v6, 1, v1
    v_lshlrev_b32 v{vRM}, 3, v6
    s_and_b32 s40, s31, 7
    s_lshl_b32 s40, s40, 2
    s_add_u32 s40, s40, s29
    s_lshl_b32 s41, s40, 12
    s_add_u32 s48, s46, s41
    s_addc_u32 s49, s47, 0
    s_lshl_b32 s41, s40, 4
    s_add_u32 s42, s42, s41
    v_lshrrev_b32 v13, 1, v13
    v_lshl_add_u32 v{vOUT}, v13, 2, s42
    v_lshl_add_u32 v{vOUT}, v6, 9, v{vOUT}
    """)
    vtop()
    pc(0)
    A("s_nop 0")
    pc(1)
    pc(2)
    A(f"""
    v_mov_b32 v{vU}, v{vL}
    s_mov_b32 s56, 0x00ff00ff
    s_mov_b32 s57, 0xff00ff00
    v_permlane32_swap_b32 v{vL}, v{vU}
    v_add_f32 v{vL}, v{vL}, v{vU}
    v_mov_b32 v{vU}, v{vL}
    s_nop 1
    v_permlane16_swap_b32 v{vL}, v{vU}
    v_add_f32 v{vL}, v{vL}, v{vU}
    s_nop 1
    v_add_f32_dpp v{vL}, v{vL}, v{vL} row_ror:8 {DPPM}
    ds_write_b64 v{vLM}, v[{vM}:{vL}] offset:{ML_OFF}
    """)
    def tilewrite(cb):
        A("s_mov_b64 exec, s[56:57]")
        for wh in range(2):
            A(f"ds_write_b128 v{vLW}, {vr(vACC+(cb*2+wh)*4,4)} offset:{cb*512+wh*32}")
        A("s_mov_b64 exec, -1")
    for i in range(4, 8):
        A(f"s_waitcnt vmcnt({7 - i})")
        pvstep(i, False)
        if i > 4:
            tilewrite(VORD[i-1][0])
    if o.itstamps:
        A(f"""
        s_waitcnt lgkmcnt(0)
        v_writelane_b32 v89, s98, m0
        s_lshl_b32 s40, s2, 2
        s_add_u32 s40, s40, s29
        s_lshl_b32 s40, s40, 8
        s_add_u32 s40, s40, {STAMP_OFF + (1<<20)}
        v_lshlrev_b32 v{vT}, 2, v1
        v_add_u32 v{vT}, s40, v{vT}
        global_store_dword v{vT}, v89, s[18:19]
        """)
    stamp(3)
    A(f"""
    s_mov_b64 exec, s[56:57]
    s_nop 0
    ds_write_b128 v{vLW}, {vr(vACC+(VORD[7][0]*2)*4,4)} offset:{VORD[7][0]*512}
    s_nop 0
    ds_write_b128 v{vLW}, {vr(vACC+(VORD[7][0]*2+1)*4,4)} offset:{VORD[7][0]*512+32}
    s_mov_b64 exec, -1
    s_waitcnt lgkmcnt(0)
    s_cmp_lg_u32 s53, 0
    s_cbranch_scc1 L_havenonce
    s_mov_b64 exec, 1
    global_atomic_cmpswap_x2 v[{vT}:{vU}], v{vZ}, {vr(vO,4)}, s[16:17] sc0
    s_mov_b64 exec, -1
    s_waitcnt vmcnt(0)
    v_readfirstlane_b32 s52, v{vT}
    v_readfirstlane_b32 s53, v{vU}
    s_cmp_lg_u32 s53, 0
    s_cselect_b32 s52, s52, s50
    s_cselect_b32 s53, s53, s51
    L_havenonce:
    s_cmp_lt_u32 s31, {32-NP}
    s_barrier
    """)
    stamp(4)
    ML = vAE
    X = vKB
    M, Ls, T2 = vB, vB + 1, vB + 2
    O = vO
    for s in range(4):
        A(f"ds_read_b64 {vr(ML+2*s,2)}, v{vRM} offset:{ML_OFF+16*s}")
    for s in range(4):
        A(f"ds_read2st64_b64 {vr(X+4*s,4)}, v{vRX2} offset0:{8*s} offset1:{8*s+4}")
    A(f"""
    s_waitcnt lgkmcnt(4)
    v_max3_f32 v{M}, v{ML}, v{ML+2}, v{ML+4}
    v_max_f32 v{M}, v{M}, v{ML+6}
    """)
    for s in range(4):
        A(f"v_sub_f32 v{ML+2*s}, v{ML+2*s}, v{M}")
    for s in range(4):
        A(f"v_exp_f32 v{ML+2*s}, v{ML+2*s}")
    A(f"v_mul_f32 v{Ls}, v{ML}, v{ML+1}")
    for s in range(1, 4):
        A(f"v_fmac_f32 v{Ls}, v{ML+2*s}, v{ML+2*s+1}")
    A(f"""
    v_max_f32 v{Ls}, 0x0da24260, v{Ls}
    v_log_f32 v{T2}, v{Ls}
    v_rcp_f32 v{Ls}, v{Ls}
    s_waitcnt lgkmcnt(0)
    v_mul_f32 v{O}, v{ML}, v{X}
    v_mul_f32 v{O+2}, v{ML}, v{X+1}
    v_add_f32 v{T2}, v{T2}, v{M}
    """)
    for s in range(1, 8):
        A(f"v_fmac_f32 v{O}, v{ML+2*(s>>1)}, v{X+2*s}")
        A(f"v_fmac_f32 v{O+2}, v{ML+2*(s>>1)}, v{X+2*s+1}")
    A(f"""
    v_xor_b32 v{O+1}, s52, v{T2}
    v_xor_b32 v{O+3}, s53, v{T2}
    v_mul_f32 v{O}, v{O}, v{Ls}
    v_mul_f32 v{O+2}, v{O+2}, v{Ls}
    global_store_dwordx4 v{vRX}, {vr(O,4)}, s[46:47] {o.stf}
    """)
    if o.dual:
        A(f"v_add_u32 v{vRX}, 0x100000, v{vRX}")
        A(f"global_store_dwordx4 v{vRX}, {vr(O,4)}, s[46:47] sc1")
    stamp(5)
    PX = vVB
    PL = vVB + 16
    msk = lambda k: f"s[{90+2*k}:{91+2*k}]"
    A("s_cbranch_scc1 L_fin")
    A("s_xor_b32 s53, s53, s52")
    for k in range(4):
        A(f"s_mov_b64 {msk(k)}, -1")
    if not o.noack:
        A("s_waitcnt vmcnt(0)")
    if o.dual:
        A(f"s_mov_b32 s59, {o.dual}")
    A("L_poll:")
    if o.dual:
        A(f"""
        s_sub_u32 s59, s59, 1
        s_cmp_lg_u32 s59, 0
        s_cbranch_scc1 L_nosw
        v_xor_b32 v{vL16}, 0x100000, v{vL16}
        s_mov_b32 s59, {o.dual}
        L_nosw:
        """)
    for k in range(4):
        A(f"s_mov_b64 exec, {msk(k)}")
        A(f"global_load_dwordx4 {vr(PX+4*k,4)}, v{vL16}, s[48:49] offset:{1024*k} {o.ldf}")
    A("s_mov_b64 exec, -1")
    A("s_waitcnt vmcnt(0)")
    for k in range(4):
        A(f"v_xor_b32 v{PL+4+k}, v{PX+4*k+1}, v{PX+4*k+3}")
    for k in range(4):
        A(f"v_xor_b32_dpp v{PL+8+k}, v{PX+4*k+1}, v{PX+4*k+1} quad_perm:[2,3,0,1] {DPPM}")
    for k in range(4):
        A(f"v_xor_b32 v{PL+4+k}, s53, v{PL+4+k}")
    for k in range(4):
        A(f"v_or_b32 v{PL+4+k}, v{PL+4+k}, v{PL+8+k}")
    for k in range(4):
        A(f"v_or_b32_dpp v{PL+4+k}, v{PL+4+k}, v{PL+4+k} quad_perm:[1,0,3,2] {DPPM}")
    for k in range(4):
        A(f"v_or_b32_dpp v{PL+4+k}, v{PL+4+k}, v{PL+4+k} quad_perm:[2,3,0,1] {DPPM}")
    for k in range(4):
        A(f"v_or_b32_dpp v{PL+4+k}, v{PL+4+k}, v{PL+4+k} row_half_mirror {DPPM}")
    for k in range(4):
        A(f"v_cmp_ne_u32 {msk(k)}, 0, v{PL+4+k}")
    for k in range(4):
        A(f"v_xor_b32 v{PL+k}, s52, v{PX+4*k+1}")
    A(f"""
    s_or_b64 s[40:41], {msk(0)}, {msk(1)}
    s_or_b64 s[42:43], {msk(2)}, {msk(3)}
    s_or_b64 s[44:45], s[40:41], s[42:43]
    s_cbranch_scc0 L_go
    s_bcnt1_i32_b64 s40, s[40:41]
    s_bcnt1_i32_b64 s41, s[42:43]
    s_add_u32 s40, s40, s41
    s_cmp_le_u32 s40, {o.tight*8}
    s_cbranch_scc1 L_poll
    s_sleep {o.sleep}
    s_branch L_poll
    L_go:
    """)
    stamp(6)
    A(f"""
    v_max3_f32 v{M}, v{PL}, v{PL+1}, v{PL+2}
    v_max_f32 v{M}, v{M}, v{PL+3}
    v_mov_b32 v{T2}, v{M}
    s_nop 1
    v_permlane32_swap_b32 v{M}, v{T2}
    v_max_f32 v{M}, v{M}, v{T2}
    v_mov_b32 v{T2}, v{M}
    s_nop 1
    v_permlane16_swap_b32 v{M}, v{T2}
    v_max_f32 v{M}, v{M}, v{T2}
    s_nop 1
    v_max_f32_dpp v{M}, v{M}, v{M} row_ror:8 {DPPM}
    """)
    for k in range(4):
        A(f"v_sub_f32 v{PL+k}, v{PL+k}, v{M}")
    for k in range(4):
        A(f"v_exp_f32 v{PL+k}, v{PL+k}")
    A(f"""
    v_mul_f32 v{PX}, v{PL}, v{PX}
    v_mul_f32 v{PX+2}, v{PL}, v{PX+2}
    v_add_f32 v{Ls}, v{PL}, v{PL+1}
    v_add_f32 v{T2}, v{PL+2}, v{PL+3}
    v_add_f32 v{Ls}, v{Ls}, v{T2}
    """)
    for k in range(1, 4):
        A(f"v_fmac_f32 v{PX}, v{PL+k}, v{PX+4*k}")
        A(f"v_fmac_f32 v{PX+2}, v{PL+k}, v{PX+4*k+2}")
    A(f"""
    v_mov_b32 v{T2}, v{Ls}
    v_mov_b32 v{PX+1}, v{PX}
    v_mov_b32 v{PX+3}, v{PX+2}
    v_permlane32_swap_b32 v{Ls}, v{T2}
    v_permlane32_swap_b32 v{PX}, v{PX+1}
    v_permlane32_swap_b32 v{PX+2}, v{PX+3}
    v_add_f32 v{Ls}, v{Ls}, v{T2}
    v_add_f32 v{PX}, v{PX}, v{PX+1}
    v_add_f32 v{PX+2}, v{PX+2}, v{PX+3}
    v_mov_b32 v{T2}, v{Ls}
    v_mov_b32 v{PX+1}, v{PX}
    v_mov_b32 v{PX+3}, v{PX+2}
    v_permlane16_swap_b32 v{Ls}, v{T2}
    v_permlane16_swap_b32 v{PX}, v{PX+1}
    v_permlane16_swap_b32 v{PX+2}, v{PX+3}
    v_add_f32 v{Ls}, v{Ls}, v{T2}
    v_add_f32 v{PX}, v{PX}, v{PX+1}
    v_add_f32 v{PX+2}, v{PX+2}, v{PX+3}
    v_add_f32_dpp v{Ls}, v{Ls}, v{Ls} row_ror:8 {DPPM}
    v_add_f32_dpp v{PX}, v{PX}, v{PX} row_ror:8 {DPPM}
    v_add_f32_dpp v{PX+2}, v{PX+2}, v{PX+2} row_ror:8 {DPPM}
    v_rcp_f32 v{Ls}, v{Ls}
    s_mov_b64 exec, 0xff
    v_mul_f32 v{PX}, v{PX}, v{Ls}
    v_mul_f32 v{PX+2}, v{PX+2}, v{Ls}
    v_cvt_pk_bf16_f32 v{PX}, v{PX}, v{PX+2}
    global_store_dword v{vOUT}, v{PX}, s[14:15]
    """)
    if o.diag:
        A("s_memrealtime s[40:41]\ns_waitcnt lgkmcnt(0)\ns_bitset0_b32 s40, 31")
        if o.diag == "span":
            A("s_sub_u32 s42, s40, s52")
        elif o.diag == "skew":
            A("s_sub_u32 s42, s50, s52\ns_mul_i32 s42, s42, 10")
        elif o.diag == "pro":
            A("s_bitset0_b32 s88, 31\ns_sub_u32 s42, s50, s88\ns_mul_i32 s42, s42, 10")
        elif o.diag == "pro1":
            A("s_sub_u32 s42, s100, s88\ns_mul_i32 s42, s42, 10")
        elif o.diag == "zero":
            A("s_mov_b32 s42, 0")
        A("""
        s_max_i32 s42, s42, 0
        s_min_i32 s42, s42, 20000
        s_mov_b32 s44, 0
        L_spin:
        s_memrealtime s[46:47]
        s_waitcnt lgkmcnt(0)
        s_bitset0_b32 s46, 31
        s_sub_u32 s43, s46, s40
        s_add_u32 s44, s44, 1
        s_cmp_gt_u32 s44, 20000
        s_cbranch_scc1 L_fin
        s_cmp_lt_u32 s43, s42
        s_cbranch_scc1 L_spin
        """)
    A("L_fin:")
    if nst:
        A("s_mov_b64 exec, -1")
        A("s_waitcnt vmcnt(0)")
        stamp(nst - 1)
        A(f"""
        s_lshl_b32 s40, s2, 2
        s_add_u32 s40, s40, s29
        s_mul_i32 s40, s40, {nst*8}
        s_add_u32 s40, s40, {STAMP_OFF}
        v_mov_b32 v1, s40
        s_waitcnt lgkmcnt(0)
        s_mov_b64 exec, 1
        """)
        for i in range(nst):
            A(f"v_mov_b32 v2, s{sST+2*i}")
            A(f"v_mov_b32 v3, s{sST+2*i+1}")
            A(f"global_store_dwordx2 v1, v[2:3], s[18:19] offset:{8*i}")
            A(f"s_nop 1")
    A("L_end:")
    A("s_endpgm")
    lds = ML_OFF + 64
    out = HEADER
    out += f"; @launch grid=(256,1,1) block=(256,1,1) lds={lds}\n"
    out += f""".amdgcn_target "amdgcn-amd-amdhsa--gfx950"
.text
.globl {KN}
.p2align 8
.type {KN},@function
{KN}:
"""
    out += A.text()
    acc = min(256, (o.vgpr + 3) // 4 * 4)
    out += f""".section .rodata,"a"
.p2align 6
.amdhsa_kernel {KN}
  .amdhsa_next_free_vgpr {o.vgpr}
  .amdhsa_next_free_sgpr 102
  .amdhsa_accum_offset {acc}
  .amdhsa_group_segment_fixed_size 0
  .amdhsa_kernarg_size 64
  .amdhsa_user_sgpr_count 2
  .amdhsa_user_sgpr_kernarg_segment_ptr 1
  .amdhsa_system_sgpr_workgroup_id_x 1
.end_amdhsa_kernel
"""
    return out

if __name__ == "__main__":
    ap = argparse.ArgumentParser()
    ap.add_argument("out")
    ap.add_argument("--map", type=int, default=1)
    ap.add_argument("--wk", default="65656565")
    ap.add_argument("--wv", default="65656565")
    ap.add_argument("--kord", default="D")
    ap.add_argument("--vord", default="D")
    ap.add_argument("--vgpr", type=int, default=512)
    ap.add_argument("--sleep", type=int, default=6)
    ap.add_argument("--tight", type=int, default=4)
    ap.add_argument("--sort", type=int, default=1)
    ap.add_argument("--stf", default="sc1")
    ape = ap.add_argument("--ldf", default="sc1")
    ap.add_argument("--noack", action="store_true")
    ap.add_argument("--np", type=int, default=8)
    ap.add_argument("--dual", type=int, default=0)
    ap.add_argument("--skew", default="")
    ap.add_argument("--thr", default="")
    ap.add_argument("--tlb", action="store_true")
    ap.add_argument("--diag", default="")
    ap.add_argument("--icp", action="store_true")
    ap.add_argument("--ff", action="store_true")
    ap.add_argument("--fflv", default="032")
    ap.add_argument("--ffc0", type=int, default=20)
    ap.add_argument("--ffg", type=int, default=32)
    ap.add_argument("--ffr", type=int, default=2)
    ap.add_argument("--thrk", default="")
    ap.add_argument("--stamps", type=int, default=0)
    ap.add_argument("--itstamps", action="store_true")
    o = ap.parse_args()
    open(o.out, "w").write(gen(o))
```

```python
import sys, argparse

KN = "standalone__paged_block_table_kv_pagedattention__decode_kernel"
HEADER = open("standalone__paged_block_table_kv_pagedattention__decode.s.ref").read().split("; Override launch")[0]
KV_BYTES = 4100 * 65536
STAMP_OFF = 512 << 20
ML_OFF = 16384
SC_OFF = 0

class Asm:
    def __init__(self):
        self.l = []
    def __call__(self, s):
        for line in s.strip("\n").split("\n"):
            t = line.strip()
            if not t:
                continue
            self.l.append(t if t.endswith(":") else "    " + t)
    def text(self):
        return "\n".join(self.l) + "\n"

def vr(b, n):
    return f"v[{b}:{b+n-1}]"
DPPM = "row_mask:0xf bank_mask:0xf"

def gen(o):
    A = Asm()
    fl = " nt"
    STRIDE = 128
    NP = 8
    wk = [int(ch, 16) for ch in o.wk]
    wv = [int(ch, 16) for ch in o.wv]
    assert len(wk) == 8 and len(wv) == 8 and max(wk) <= 7 and max(wv) <= 7
    vK0, vV0 = 2, 4
    vM, vL = 8, 9
    vT, vU, vX2, vX3 = 10, 11, 12, 13
    vP = 14
    vS = 16
    vD1 = 20
    vMASK = 24
    vA = 28
    vAE = 40
    vB = 56
    vACC = 200
    vQ = 72
    vG4 = 88
    vLW, vLM, vL16, vRX, vRX2, vRM, vSA, vSB, vOUT, vZ = range(90, 100)
    vKB = 100
    vVB = 132
    vO = 164
    vSP = 168
    vH = 176
    vBT = 196
    vE = 192
    KORD = {"N": [(i >> 1, i & 1) for i in range(8)],
            "M": [(i & 3, i >> 2) for i in range(8)],
            "D": [(0,0),(1,1),(2,0),(3,1),(1,0),(0,1),(3,0),(2,1)],
            "E": [(0,0),(2,1),(1,0),(3,1),(2,0),(0,1),(3,0),(1,1)]}[o.kord]
    KFIRST = {hp: min(i for i in range(8) if KORD[i][1] == hp) for hp in (0, 1)}
    VORD = {"D": [(0,0),(1,1),(2,0),(3,1),(1,0),(0,1),(3,0),(2,1)],
            "I": [(0,0),(3,1),(2,0),(1,1),(1,0),(2,1),(3,0),(0,1)],
            "J": [(0,0),(2,0),(1,1),(3,1),(1,0),(3,0),(0,1),(2,1)]}[o.vord]
    PARTNER = {i: [k for k in range(4) if VORD[k][0] == VORD[i][0]][0] for i in range(4, 8)}
    nst = o.stamps
    sST = 60
    def stamp(i):
        if nst and i < nst:
            A(f"s_memrealtime s[{sST+2*i}:{sST+2*i+1}]")
    def itstamp():
        if o.itstamps:
            A("v_writelane_b32 v89, s98, m0\ns_add_u32 m0, m0, 1\ns_memrealtime s[98:99]")

    def kload(i, sreg, base=None):
        j, hp = KORD[i]
        A(f"buffer_load_dwordx4 {vr((vKB if base is None else base)+4*i,4)}, v{vK0+hp}, s[20:23], {sreg} offen offset:{128*j}{fl}")
    def vload(i, sreg):
        cb, t = VORD[i]
        A(f"buffer_load_dwordx4 {vr(vVB+4*i,4)}, v{vV0+t}, s[24:27], {sreg} offen offset:{128*cb}{fl}")
    def qk(c, base=None):
        j, hp = KORD[c]
        d = vD1 if hp else vS
        cc = "0" if c == KFIRST[hp] else vr(d, 4)
        A(f"v_mfma_f32_16x16x32_bf16 {vr(d,4)}, {vr((vKB if base is None else base)+4*c,4)}, {vr(vQ+4*j,4)}, {cc}")
    def pvstep(i, held):
        cb, t = VORD[i]
        k = PARTNER[i]
        me, other = vVB + 4 * i, (vH if held else vVB) + 4 * k
        l0, l1 = (me, other) if t == 0 else (other, me)
        bb = vB + 8 * (i & 1)
        ps, ms = [], []
        for w in range(4):
            ps.append(f"v_perm_b32 v{bb+2*w}, v{l1+w}, v{l0+w}, s37")
            ps.append(f"v_perm_b32 v{bb+2*w+1}, v{l1+w}, v{l0+w}, s38")
            acc = vACC + (cb * 2 + (w >> 1)) * 4
            ms.append(f"v_mfma_f32_16x16x16_bf16 {vr(acc,4)}, {vr(vA+2*(w&1),2)}, {vr(bb+2*w,2)}, {vr(acc,4)}")
        for x in ps[:4] + [ms[0]] + ps[4:6] + [ms[1]] + ps[6:8] + [ms[2], "s_nop 0", ms[3]]:
            A(x)

    def finalize(mask):
        for r in range(4):
            A(f"v_permlane32_swap_b32 v{vS+r}, v{vD1+r}")
        for r in range(4):
            A(f"v_mov_b32_dpp v{vD1+r}, v{vD1+r} quad_perm:[1,1,3,3] {DPPM}")
        for r in range(4):
            A(f"v_add_f32_dpp v{vE+r}, v{vS+r}, v{vD1+r} quad_perm:[0,0,2,2] {DPPM}")
        if mask:
            A(f"v_mov_b32 v{vU}, 0xff800000")
            for r in range(4):
                A(f"v_cmp_gt_i32 vcc, s35, v{vG4}")
                A(f"s_sub_u32 s35, s35, 1")
                A(f"s_nop 0")
                A(f"v_cndmask_b32 v{vE+r}, v{vU}, v{vE+r}, vcc")
        A(f"""
        s_mov_b64 exec, s[56:57]
        ds_write_b128 v{vSA}, {vr(vE,4)}
        s_mov_b64 exec, -1
        v_max3_f32 v{vM}, v{vM}, v{vE}, v{vE+1}
        v_add_u32 v{vSA}, 0x80, v{vSA}
        v_max3_f32 v{vM}, v{vM}, v{vE+2}, v{vE+3}
        """)

    if o.diag in ("pro", "pro1", "pro2", "pro3"):
        A("s_memrealtime s[88:89]")
    assert o.map == 1 and o.sort == 2
    TLV = ""
    if o.tlbv:
        TLV = """s_lshr_b32 s40, s2, 3
        s_lshl_b32 s40, s40, 8
        s_add_u32 s40, s40, s29
        s_lshl_b32 s40, s40, 15
        v_mov_b32 v6, s40
        global_load_dword v199, v6, s[6:7] nt"""
        if o.tlbv == 2:
            TLV += "\nglobal_load_dword v199, v6, s[8:9] nt"
    stamp(0)
    A(f"""
    s_load_dwordx8 s[4:11], s[0:1], 0
    s_load_dwordx8 s[12:19], s[0:1], 32
    """)
    if o.icp:
        A("""
        s_getpc_b64 s[86:87]
        L_pc:
        v_lshlrev_b32 v6, 7, v0
        v_min_u32 v6, L_end-L_pc, v6
        global_load_dword v199, v6, s[86:87]
        """)
    A(f"""
    v_readfirstlane_b32 s29, v0
    s_cmp_ge_u32 s2, 256
    s_cbranch_scc1 L_end
    s_and_b32 s31, s2, 31
    s_lshl_b32 s34, s29, 1
    s_lshl2_add_u32 s34, s31, s34
    s_waitcnt lgkmcnt(0)
    s_load_dword s43, s[10:11], s34
    s_load_dword s28, s[12:13], 0
    {"s_load_dword s80, s[10:11], s34 offset:512" if o.u0 else ""}
    {TLV}
    v_and_b32 v1, 63, v0
    s_lshr_b32 s30, s2, 5
    s_lshr_b32 s29, s29, 6
    s_lshr_b32 s32, s34, 2
    v_and_b32 v10, 15, v1
    v_lshrrev_b32 v11, 4, v1
    s_lshl_b32 s41, s30, 9
    v_and_b32 v{vK0}, 7, v1
    v_lshlrev_b32 v{vK0}, 12, v{vK0}
    v_bfe_u32 v{vK0+1}, v1, 3, 1
    v_lshl_add_u32 v{vK0}, v{vK0+1}, 6, v{vK0}
    v_lshl_add_u32 v{vK0}, v11, 4, v{vK0}
    v_add_u32 v{vK0}, s41, v{vK0}
    v_add_u32 v{vK0+1}, 0x8000, v{vK0}
    s_mov_b32 s20, s6
    s_and_b32 s21, s7, 0xffff
    s_mov_b32 s22, {KV_BYTES}
    s_mov_b32 s23, 0x20000
    s_lshl_b32 s40, s31, 2
    v_lshl_add_u32 v6, v10, 9, s40
    v_lshl_add_u32 v6, v11, 7, v6
    v_add_u32 v7, 0x2000, v6
    global_load_dword v{vBT}, v6, s[10:11]
    global_load_dword v{vBT+1}, v7, s[10:11]
    v_bfe_u32 v15, v1, 1, 1
    v_lshlrev_b32 v12, 9, v15
    v_lshl_add_u32 v12, v11, 4, v12
    v_and_b32 v14, 1, v1
    v_lshl_add_u32 v12, v14, 6, v12
    s_lshl_b32 s42, s30, 10
    v_add_u32 v12, s42, v12
    """)
    stamp(1)
    if o.diag == "pro1":
        A("s_memrealtime s[100:101]")
    for j in range(4):
        A(f"global_load_dwordx4 {vr(vQ+4*j,4)}, v12, s[4:5] offset:{128*j}")
    A(f"""
    s_waitcnt lgkmcnt(0)
    s_lshl_b32 s43, s43, 16
    s_mov_b32 s58, s43
    s_cmp_lt_i32 s28, 1
    s_cselect_b32 s36, 0, 0x3db8aa3b
    s_cselect_b32 s28, 0x10000, s28
    s_min_i32 s28, s28, 0x10000
    s_sub_u32 s33, s28, 1
    s_lshr_b32 s33, s33, 11
    s_cbranch_scc0 L_skip0
    """)
    stamp(2)
    LV = [0x0, 0x2, 0xa, 0xe, 0xf]
    THR = ""
    if o.thr:
        tab = sum(LV[int(ch)] << (4 * i) for i, ch in enumerate(o.thr))
        THR = f"""s_getreg_b32 s40, hwreg(HW_REG_XCC_ID)
        s_and_b32 s40, s40, 7
        s_lshl_b32 s40, s40, 2
        s_lshr_b32 s81, {tab:#x}, s40"""
        if o.thrk:
            tabk = sum(LV[int(ch)] << (4 * i) for i, ch in enumerate(o.thrk))
            THR += f"\ns_lshr_b32 s80, {tabk:#x}, s40"
    NONCESEL = "s_lshl_b32 s40, s2, 2\ns_add_u32 s40, s40, s29\ns_cmp_lg_u32 s40, 1023"
    if o.diag:
        NONCESEL = "s_lshl_b32 s40, s29, 8\ns_or_b32 s40, s40, s2\ns_cmp_ge_u32 s40, 8"
    TL = ""
    if o.tlb:
        TL = """s_lshr_b32 s56, s2, 3
        s_lshl_b32 s56, s56, 2
        s_add_u32 s56, s56, s29
        s_lshl_b32 s56, s56, 21
        s_load_dword s100, s[6:7], s56
        s_load_dword s101, s[8:9], s56"""
    SKEW = ""
    if o.skew:
        d = [int(x) for x in o.skew.split(",")]
        assert len(d) == 8 and sum(d) == 0
        cum = [0]
        for x in d: cum.append(cum[-1] + x)
        off = -min(cum)
        assert max(cum) + off <= 15
        tab = sum(((cum[i] + off) & 15) << (4 * i) for i in range(8))
        lo = max(0, -min(d)) * 128
        hi = (16 - max(d) - 1) * 128 + 128
        SKEW = f"""s_and_b32 s54, s32, 7
        s_lshl_b32 s54, s54, 2
        s_lshr_b32 s55, {tab:#x}, s54
        s_and_b32 s55, s55, 15
        s_add_u32 s54, s54, 4
        s_and_b32 s54, s54, 31
        s_lshr_b32 s54, {tab:#x}, s54
        s_and_b32 s54, s54, 15
        s_sub_u32 s44, s40, {lo}
        s_cmp_le_u32 s44, {hi - lo}
        s_cselect_b32 s55, s55, {off}
        s_cselect_b32 s54, s54, {off}
        s_add_u32 s45, s45, s55
        s_add_u32 s35, s35, s54
        s_sub_u32 s45, s45, {off}
        s_sub_u32 s35, s35, {off}"""
    NB = 1 + wk[0]
    if o.u0:
        A("s_cmp_lt_u32 s33, 2\ns_cbranch_scc1 L_nou0")
        for i in range(8):
            kload(i, "s43", vVB)
        A("s_lshl_b32 s43, s80, 16\nL_nou0:")
    for i in range(NB):
        kload(i, "s43")
    A(f"""
    L_skip0:
    {TL}
    s_mov_b32 s24, s8
    s_and_b32 s25, s9, 0xffff
    s_mov_b32 s26, s22
    s_mov_b32 s27, 0x20000
    s_mov_b32 s78, s33
    s_lshl_b32 s40, s33, 11
    s_sub_u32 s40, s28, s40
    s_mul_i32 s45, s40, s32
    s_add_u32 s35, s45, s40
    s_lshr_b32 s45, s45, 7
    s_lshr_b32 s35, s35, 7
    {SKEW}
    s_sub_u32 s35, s35, s45
    s_lshr_b32 s40, s45, 4
    s_lshl_b32 s54, s33, 7
    s_add_u32 s40, s40, s54
    s_lshl_b32 s40, s40, 2
    s_and_b32 s40, s40, 0x3ffc
    s_add_u32 s44, s40, 4
    s_and_b32 s44, s44, 0x3ffc
    s_load_dword s54, s[10:11], s40
    s_load_dword s55, s[10:11], s44
    s_and_b32 s45, s45, 15
    s_memrealtime s[50:51]
    """)
    if o.sort == 2:
        kq, kt, ka, kb = 16, 17, 18, 19
        U0W = f"s_waitcnt vmcnt({NB + 4})"
        if o.u0:
            U0W = f"""s_waitcnt vmcnt({NB + 12})
            s_cmp_ge_u32 s33, 2
            s_cbranch_scc1 L_sort
            s_waitcnt vmcnt({NB + 4})"""
        R = [20, 21, 22, 23]
        A(f"""
        s_mov_b32 s59, s33
        s_mov_b32 s39, 0
        v_mov_b32 v7, {2 if o.u0 else 1}
        v_mov_b32 v{vBT+2}, 0
        {U0W}
        L_sort:
        v_cmp_gt_i32 vcc, s59, v10
        v_mov_b32 v{kt}, 0x800000
        v_and_b32 v{kq}, 0xffff, v{vBT}
        v_add_u32 v{kq}, 2, v{kq}
        v_cndmask_b32 v{kq}, v{kt}, v{kq}, vcc
        v_cmp_le_u32 vcc, v7, v10
        v_lshlrev_b32 v{vBT}, 16, v{vBT}
        v_mov_b32 v7, 0
        v_cndmask_b32 v{kq}, v10, v{kq}, vcc
        v_lshl_or_b32 v{kq}, v{kq}, 6, v1
        v_mov_b32 v{R[0]}, v{kq}
        v_mov_b32 v{R[1]}, v{kq}
        s_nop 1
        v_permlane16_swap_b32 v{R[0]}, v{R[1]}
        v_mov_b32 v{R[2]}, v{R[0]}
        v_mov_b32 v{R[3]}, v{R[1]}
        s_nop 0
        v_permlane32_swap_b32 v{R[0]}, v{R[2]}
        v_permlane32_swap_b32 v{R[1]}, v{R[3]}
        """)
        for j in range(4):
            acc = ka if j < 2 else kb
            A(f"v_sub_u32 v{kt}, v{R[j]}, v{kq}")
            A(f"v_alignbit_b32 v{acc}, v{acc}, v{kt}, 31")
            for r in range(1, 16):
                A(f"v_sub_u32_dpp v{kt}, v{R[j]}, v{kq} row_ror:{r} {DPPM}")
                A(f"v_alignbit_b32 v{acc}, v{acc}, v{kt}, 31")
        A(f"""
        v_bcnt_u32_b32 v{ka}, v{ka}, 0
        v_bcnt_u32_b32 v{ka}, v{kb}, v{ka}
        v_and_b32 v{kt}, 3, v{ka}
        v_cmp_eq_u32 vcc, s29, v{kt}
        v_and_b32 v{ka}, 60, v{ka}
        v_add_u32 v{ka}, s39, v{ka}
        v_mov_b32 v{kt}, 0xfc
        v_cndmask_b32 v{ka}, v{kt}, v{ka}, vcc
        ds_permute_b32 v{kt}, v{ka}, v{vBT}
        v_mov_b32 v{vBT}, v{vBT+1}
        s_sub_i32 s59, s59, 16
        s_add_u32 s39, s39, 64
        s_cmp_gt_i32 s59, 0
        s_waitcnt lgkmcnt(0)
        v_or_b32 v{vBT+2}, v{vBT+2}, v{kt}
        s_cbranch_scc1 L_sort
        v_mov_b32 v{vBT}, v{vBT+2}
        """)
    else:
        kq, ko, kt, ka = 16, 17, 18, 19
        A(f"""
        v_cmp_gt_u32 vcc, s33, v7
        s_waitcnt vmcnt({NB + 4})
        v_mov_b32 v{kt}, 0x1000000
        v_and_b32 v{kq}, 0xffff, v{vBT}
        v_add_u32 v{kq}, 1, v{kq}
        v_cndmask_b32 v{kq}, v{kt}, v{kq}, vcc
        v_cmp_ne_u32 vcc, 0, v7
        v_lshlrev_b32 v{vBT}, 16, v{vBT}
        v_mov_b32 v{ka}, 0
        v_cndmask_b32 v{kq}, 0, v{kq}, vcc
        {"" if o.sort else f"v_mov_b32 v{kq}, 0"}
        v_lshl_or_b32 v{kq}, v{kq}, 5, v7
        v_mov_b32 v{ko}, v{kq}
        v_mov_b32 v{kt}, v{kq}
        s_nop 1
        v_permlane16_swap_b32 v{ko}, v{kt}
        s_nop 1
        v_permlane32_swap_b32 v{ko}, v{kt}
        s_nop 0
        v_sub_u32 v{kt}, v{ko}, v{kq}
        v_alignbit_b32 v{ka}, v{ka}, v{kt}, 31
        """)
        for r in range(1, 16):
            A(f"v_sub_u32_dpp v{kt}, v{ko}, v{kq} row_ror:{r} {DPPM}")
            A(f"v_alignbit_b32 v{ka}, v{ka}, v{kt}, 31")
        A(f"""
        v_bcnt_u32_b32 v{ka}, v{ka}, 0
        v_mov_b32 v{kt}, v{ka}
        v_and_b32 v{ko}, 32, v1
        s_nop 0
        v_permlane32_swap_b32 v{ka}, v{kt}
        v_add3_u32 v{ka}, v{ka}, v{kt}, v{ko}
        v_lshlrev_b32 v{ka}, 2, v{ka}
        ds_permute_b32 v{vBT}, v{ka}, v{vBT}
        """)
    A(f"""
    s_mov_b32 s34, 1
    {THR}
    v_mov_b32 v{vM}, 0xff7fffff
    s_lshl_b32 s79, s29, 12
    v_lshl_add_u32 v{vSA}, v11, 5, s79
    v_lshl_add_u32 v{vSA}, v15, 4, v{vSA}
    s_mov_b32 s56, 0x00050005
    s_mov_b32 s57, 0x00050005
    v_mov_b32 v{vZ}, 0
    s_waitcnt lgkmcnt(0)
    s_bitset1_b32 s51, 31
    s_bitset0_b32 s50, 31
    v_mov_b32 v{vO}, s50
    v_mov_b32 v{vO+1}, s51
    v_mov_b32 v{vO+2}, 0
    v_mov_b32 v{vO+3}, 0
    {NONCESEL}
    s_cbranch_scc1 L_nononce
    s_mov_b64 exec, 1
    global_atomic_cmpswap_x2 v{vZ}, {vr(vO,4)}, s[16:17]
    s_mov_b64 exec, -1
    L_nononce:
    s_lshl_b32 s40, s45, 12
    s_lshl_b32 s54, s54, 16
    s_add_u32 s54, s54, s40
    s_sub_u32 s55, s55, 1
    s_lshl_b32 s55, s55, 16
    s_add_u32 s55, s55, s40
    s_sub_u32 s45, 16, s45
    v_mov_b32 v{vSP+4}, s54
    v_mov_b32 v{vSP+5}, s55
    v_bfrev_b32 v{vSP+6}, 1
    """)
    def special(i):
        src = vK0 + i
        A(f"""
        v_bfe_u32 v6, v{src}, 12, 4
        v_cmp_le_u32 vcc, s45, v6
        v_cmp_gt_u32 s[82:83], s35, v6
        s_nop 0
        v_cndmask_b32 v{vSP+i}, v{vSP+4}, v{vSP+5}, vcc
        v_add_u32 v{vSP+i}, v{vSP+i}, v{src}
        v_cndmask_b32 v{vSP+i}, v{vSP+6}, v{vSP+i}, s[82:83]
        """)
    special(0)
    special(1)
    A(f"""
    s_cmp_lg_u32 s33, 0
    s_cbranch_scc1 L_k0
    v_mov_b32 v{vK0}, v{vSP}
    v_mov_b32 v{vK0+1}, v{vSP+1}
    s_mov_b32 s43, 0
    """)
    for i in range(NB):
        kload(i, "s43")
    A(f"s_waitcnt vmcnt({NB-1})")
    qk(0)
    A("s_branch L_klast")
    A("L_k0:")
    if o.u0:
        A("s_cmp_lt_u32 s33, 2\ns_cbranch_scc1 L_k1")
        for c in range(8):
            A(f"s_waitcnt vmcnt({NB + 7 - c})")
            qk(c, vVB)
        A("s_sub_u32 s33, s33, 1\ns_mov_b32 s34, 2\ns_nop 5")
        finalize(False)
        A("L_k1:")
    if o.itstamps:
        A("s_mov_b32 m0, 0\nv_mov_b32 v89, 0\ns_memrealtime s[98:99]")
    A(f"s_waitcnt vmcnt({NB-1})")
    if o.diag == "pro2":
        A("s_memrealtime s[100:101]")
    qk(0)

    A("L_kloop:")
    nxt = NB
    for c in list(range(1, 8)) + [8]:
        hi = c + wk[c & 7]
        if c == 1:
            assert nxt <= 8
            A(f"v_readlane_b32 s44, v{vBT}, s34\ns_add_u32 s34, s34, 1")
            if o.itstamps:
                A("s_waitcnt lgkmcnt(0)")
            itstamp()
            if hi >= 8:
                A("s_nop 1")
        A(f"s_waitcnt vmcnt({nxt - c - 1})")
        nis = 0
        while nxt <= hi:
            if nxt == 8:
                A(f"""
                s_cmp_lg_u32 s33, 1
                s_cbranch_scc1 L_knotpen
                v_mov_b32 v{vK0}, v{vSP}
                v_mov_b32 v{vK0+1}, v{vSP+1}
                s_mov_b32 s44, 0
                L_knotpen:
                """)
            assert nxt - 8 < c, "K register reuse"
            kload(nxt & 7, "s43" if nxt < 8 else "s44")
            nxt += 1
            nis += 1
            if o.thrk and nxt == hi:
                A(f"""
                s_bitcmp0_b32 s80, {(c >> 1) & 3}
                s_cbranch_scc1 L_kt{c}
                s_waitcnt vmcnt({nxt - c - 2})
                L_kt{c}:
                """)
        if c == 8:
            A(f"s_mov_b32 s43, s44\ns_sub_u32 s33, s33, 1\ns_cmp_lg_u32 s33, 0")
            A(f"s_nop {max(0, 7 - 4 - nis)}")
            finalize(False)
        qk(c & 7)
    assert nxt == 8 + NB
    A("s_cbranch_scc1 L_kloop")
    A("L_klast:")
    if o.diag == "pro3":
        A("s_memrealtime s[100:101]")
    stamp(7)
    NV = wv[7]
    if o.ff:
        A("s_memrealtime s[84:85]\ns_mov_b32 s86, 0")
    A(f"""
    v_lshrrev_b32 v12, 3, v1
    v_and_b32 v13, 7, v1
    v_lshlrev_b32 v{vV0}, 12, v12
    v_lshl_add_u32 v{vV0}, v13, 4, v{vV0}
    v_add_u32 v{vV0}, s41, v{vV0}
    v_add_u32 v{vV0+1}, 0x8000, v{vV0}
    """)
    special(2)
    special(3)
    A(f"""
    s_cmp_lg_u32 s78, 0
    s_cbranch_scc1 L_vnorm
    v_mov_b32 v{vV0}, v{vSP+2}
    v_mov_b32 v{vV0+1}, v{vSP+3}
    s_mov_b32 s58, 0
    L_vnorm:
    """)
    if o.ff:
        A(f"""
        s_lshl_b32 s40, s29, 8
        s_or_b32 s40, s40, s2
        s_cmp_ge_u32 s40, 8
        s_cbranch_scc1 L_noref
        s_waitcnt lgkmcnt(0)
        s_or_b32 s40, s84, 1
        v_mov_b32 v6, s40
        v_mov_b32 v7, 0
        s_mov_b64 exec, 1
        global_atomic_cmpswap v{vZ}, v[6:7], s[16:17] offset:8
        s_mov_b64 exec, -1
        s_nop 1
        L_noref:
        """)
    def ksetup(c):
        if c == 2:
            A("v_and_b32 v6, 5, v1")
            for e, val in enumerate((0, 1, 4, 5)):
                A(f"v_cmp_eq_u32 vcc, {val}, v6")
                A(f"v_mov_b32 v{vACC+2*e}, 0")
                A(f"v_mov_b32 v{vACC+2*e+1}, 0")
                A(f"v_cndmask_b32 v{vMASK+e}, 0, -1, vcc")
        if c == 4:
            for e in range(8, 24):
                A(f"v_mov_b32 v{vACC+e}, 0")
        if c == 6:
            for e in range(24, 32):
                A(f"v_mov_b32 v{vACC+e}, 0")
            A(f"""
            v_lshlrev_b32 v{vG4}, 2, v11
            s_mov_b32 s37, 0x05040100
            s_mov_b32 s38, 0x07060302
            v_mov_b32 v{vL}, 0
            v_lshrrev_b32 v6, 2, v12
            v_lshl_add_u32 v{vSB}, v6, 5, s79
            v_lshl_add_u32 v{vSB}, v15, 4, v{vSB}
            v_and_b32 v6, 3, v12
            v_lshl_add_u32 v{vSB}, v6, 2, v{vSB}
            """)
    nxt = NB
    for c in range(1, 8):
        hi = min(c + wk[c], 7 + NV)
        A(f"s_waitcnt vmcnt({nxt - c - 1})")
        while nxt <= hi:
            if nxt < 8:
                kload(nxt, "s43")
            else:
                vload(nxt - 8, "s58")
            nxt += 1
        qk(c)
        ksetup(c)
    while nxt < 8 + NV:
        vload(nxt - 8, "s58")
        nxt += 1
    A(f"""
    s_mov_b32 s43, s58
    s_mov_b32 s33, s78
    s_mov_b32 s34, 1
    s_nop 4
    """)
    finalize(True)
    A(f"""
    ds_read2_b32 {vr(vS,2)}, v{vSB} offset0:0 offset1:16
    v_mov_b32 v{vU}, v{vM}
    v_add_u32 v{vSB}, 0x80, v{vSB}
    s_nop 0
    v_permlane32_swap_b32 v{vM}, v{vU}
    v_max_f32 v{vM}, v{vM}, v{vU}
    v_mov_b32 v{vU}, v{vM}
    s_nop 1
    v_permlane16_swap_b32 v{vM}, v{vU}
    v_max_f32 v{vM}, v{vM}, v{vU}
    v_mul_f32 v{vM}, s36, v{vM}
    v_max_f32 v{vM}, 0xf149f2ca, v{vM}
    s_cmp_eq_u32 s33, 0
    s_cbranch_scc1 L_vlast
    """)

    def vtop():
        for r in range(2):
            A(f"v_fma_f32 v{vE+r}, v{vS+r}, s36, -v{vM}")
    def pc(stage):
        if stage == 0:
            A(f"v_exp_f32 v{vE}, v{vE}\nv_exp_f32 v{vE+1}, v{vE+1}")
        if stage == 1:
            A(f"v_cvt_pk_bf16_f32 v{vP}, v{vE}, v{vE+1}\nv_add_f32 v{vL}, v{vL}, v{vE}\nv_add_f32 v{vL}, v{vL}, v{vE+1}")
        if stage == 2:
            for e in range(4):
                A(f"v_and_b32 v{vA+e}, v{vMASK+e}, v{vP}")
    def vconsume(c):
        if c < 4:
            pc(c)
            for w in range(4):
                A(f"v_mov_b32 v{vH+4*c+w}, v{vVB+4*c+w}")
        else:
            pvstep(c, True)

    A("L_vloop:")
    A(f"""
    v_readlane_b32 s44, v{vBT}, s34
    s_add_u32 s34, s34, 1
    s_waitcnt lgkmcnt(0)
    """)
    if o.ff:
        fast, slow, dflt = [LV[int(ch)] for ch in o.fflv]
        A(f"""
        s_sub_u32 s40, s84, s86
        s_sub_i32 s40, s40, {o.ffc0}
        s_mul_i32 s40, s40, {o.ffg}
        s_ashr_i32 s40, s40, 8
        s_add_i32 s40, s40, {o.ffr + 2}
        s_cmp_lt_i32 s34, s40
        s_cselect_b32 s81, {fast}, {slow}
        s_cmp_eq_u32 s86, 0
        s_cselect_b32 s81, {dflt}, s81
        s_cmp_gt_u32 s34, {o.ffr}
        s_cselect_b32 s40, 8, 0x80
        s_load_dword s86, s[16:17], s40
        """)
    itstamp()
    vtop()
    A(f"ds_read2_b32 {vr(vS,2)}, v{vSB} offset0:0 offset1:16")
    A(f"v_add_u32 v{vSB}, 0x80, v{vSB}")
    nxt = NV
    for c in range(8):
        hi = c + wv[c]
        A(f"s_waitcnt vmcnt({nxt - c - 1})")
        while nxt <= hi:
            if nxt == 8:
                A(f"""
                s_cmp_lg_u32 s33, 1
                s_cbranch_scc1 L_vnotpen
                v_mov_b32 v{vV0}, v{vSP+2}
                v_mov_b32 v{vV0+1}, v{vSP+3}
                s_mov_b32 s44, 0
                L_vnotpen:
                """)
            assert nxt - 8 < c, "V register reuse"
            vload(nxt & 7, "s43" if nxt < 8 else "s44")
            nxt += 1
            if (o.thr or o.ff) and nxt == hi:
                A(f"""
                s_bitcmp0_b32 s81, {c >> 1}
                s_cbranch_scc1 L_vt{c}
                s_waitcnt vmcnt({nxt - c - 2})
                L_vt{c}:
                """)
        vconsume(c)
    assert nxt == 8 + NV
    A(f"""
    s_mov_b32 s43, s44
    s_sub_u32 s33, s33, 1
    s_cmp_lg_u32 s33, 0
    s_cbranch_scc1 L_vloop
    """)
    A("L_vlast:")
    for i in range(NV, 8):
        vload(i, "s43")
    A("s_waitcnt lgkmcnt(0)")
    A("s_load_dwordx2 s[52:53], s[16:17], 0")
    A(f"""
    v_lshlrev_b32 v{vL16}, 4, v1
    s_lshl_b32 s40, s29, 12
    v_lshrrev_b32 v6, 5, v1
    v_lshl_add_u32 v{vLW}, v6, 11, s40
    v_lshl_add_u32 v{vLW}, v13, 6, v{vLW}
    v_bfe_u32 v6, v1, 4, 1
    v_lshl_add_u32 v{vLW}, v6, 4, v{vLW}
    s_lshl_b32 s40, s29, 4
    v_lshl_add_u32 v{vLM}, v15, 3, s40
    s_lshl_b32 s40, s30, 17
    s_add_u32 s46, s18, s40
    s_addc_u32 s47, s19, 0
    s_lshl_b32 s40, s31, 7
    s_lshl_b32 s41, s29, 15
    s_add_u32 s40, s40, s41
    v_lshl_add_u32 v{vRX}, v12, 12, s40
    v_lshl_add_u32 v{vRX}, v13, 4, v{vRX}
    s_lshl_b32 s40, s29, 9
    v_lshl_add_u32 v{vRX2}, v1, 3, s40
    v_and_b32 v6, 1, v1
    v_lshlrev_b32 v{vRM}, 3, v6
    s_and_b32 s40, s31, 7
    s_lshl_b32 s40, s40, 2
    s_add_u32 s40, s40, s29
    s_lshl_b32 s41, s40, 12
    s_add_u32 s48, s46, s41
    s_addc_u32 s49, s47, 0
    s_lshl_b32 s41, s40, 4
    s_add_u32 s42, s42, s41
    v_lshrrev_b32 v13, 1, v13
    v_lshl_add_u32 v{vOUT}, v13, 2, s42
    v_lshl_add_u32 v{vOUT}, v6, 9, v{vOUT}
    """)
    vtop()
    pc(0)
    A("s_nop 0")
    pc(1)
    pc(2)
    A(f"""
    v_mov_b32 v{vU}, v{vL}
    s_mov_b32 s56, 0x00ff00ff
    s_mov_b32 s57, 0xff00ff00
    v_permlane32_swap_b32 v{vL}, v{vU}
    v_add_f32 v{vL}, v{vL}, v{vU}
    v_mov_b32 v{vU}, v{vL}
    s_nop 1
    v_permlane16_swap_b32 v{vL}, v{vU}
    v_add_f32 v{vL}, v{vL}, v{vU}
    s_nop 1
    v_add_f32_dpp v{vL}, v{vL}, v{vL} row_ror:8 {DPPM}
    ds_write_b64 v{vLM}, v[{vM}:{vL}] offset:{ML_OFF}
    """)
    def tilewrite(cb):
        A("s_mov_b64 exec, s[56:57]")
        for wh in range(2):
            A(f"ds_write_b128 v{vLW}, {vr(vACC+(cb*2+wh)*4,4)} offset:{cb*512+wh*32}")
        A("s_mov_b64 exec, -1")
    for i in range(4, 8):
        A(f"s_waitcnt vmcnt({7 - i})")
        pvstep(i, False)
        if i > 4:
            tilewrite(VORD[i-1][0])
    if o.itstamps:
        A(f"""
        s_waitcnt lgkmcnt(0)
        v_writelane_b32 v89, s98, m0
        s_lshl_b32 s40, s2, 2
        s_add_u32 s40, s40, s29
        s_lshl_b32 s40, s40, 8
        s_add_u32 s40, s40, {STAMP_OFF + (1<<20)}
        v_lshlrev_b32 v{vT}, 2, v1
        v_add_u32 v{vT}, s40, v{vT}
        global_store_dword v{vT}, v89, s[18:19]
        """)
    stamp(3)
    A(f"""
    s_mov_b64 exec, s[56:57]
    s_nop 0
    ds_write_b128 v{vLW}, {vr(vACC+(VORD[7][0]*2)*4,4)} offset:{VORD[7][0]*512}
    s_nop 0
    ds_write_b128 v{vLW}, {vr(vACC+(VORD[7][0]*2+1)*4,4)} offset:{VORD[7][0]*512+32}
    s_mov_b64 exec, -1
    s_waitcnt lgkmcnt(0)
    s_cmp_lg_u32 s53, 0
    s_cbranch_scc1 L_havenonce
    s_mov_b64 exec, 1
    global_atomic_cmpswap_x2 v[{vT}:{vU}], v{vZ}, {vr(vO,4)}, s[16:17] sc0
    s_mov_b64 exec, -1
    s_waitcnt vmcnt(0)
    v_readfirstlane_b32 s52, v{vT}
    v_readfirstlane_b32 s53, v{vU}
    s_cmp_lg_u32 s53, 0
    s_cselect_b32 s52, s52, s50
    s_cselect_b32 s53, s53, s51
    L_havenonce:
    s_cmp_lt_u32 s31, {32-NP}
    s_barrier
    """)
    stamp(4)
    ML = vAE
    X = vKB
    M, Ls, T2 = vB, vB + 1, vB + 2
    O = vO
    for s in range(4):
        A(f"ds_read_b64 {vr(ML+2*s,2)}, v{vRM} offset:{ML_OFF+16*s}")
    for s in range(4):
        A(f"ds_read2st64_b64 {vr(X+4*s,4)}, v{vRX2} offset0:{8*s} offset1:{8*s+4}")
    A(f"""
    s_waitcnt lgkmcnt(4)
    v_max3_f32 v{M}, v{ML}, v{ML+2}, v{ML+4}
    v_max_f32 v{M}, v{M}, v{ML+6}
    """)
    for s in range(4):
        A(f"v_sub_f32 v{ML+2*s}, v{ML+2*s}, v{M}")
    for s in range(4):
        A(f"v_exp_f32 v{ML+2*s}, v{ML+2*s}")
    A(f"v_mul_f32 v{Ls}, v{ML}, v{ML+1}")
    for s in range(1, 4):
        A(f"v_fmac_f32 v{Ls}, v{ML+2*s}, v{ML+2*s+1}")
    A(f"""
    v_max_f32 v{Ls}, 0x0da24260, v{Ls}
    v_log_f32 v{T2}, v{Ls}
    v_rcp_f32 v{Ls}, v{Ls}
    s_waitcnt lgkmcnt(0)
    v_mul_f32 v{O}, v{ML}, v{X}
    v_mul_f32 v{O+2}, v{ML}, v{X+1}
    v_add_f32 v{T2}, v{T2}, v{M}
    """)
    for s in range(1, 8):
        A(f"v_fmac_f32 v{O}, v{ML+2*(s>>1)}, v{X+2*s}")
        A(f"v_fmac_f32 v{O+2}, v{ML+2*(s>>1)}, v{X+2*s+1}")
    A(f"""
    v_xor_b32 v{O+1}, s52, v{T2}
    v_xor_b32 v{O+3}, s53, v{T2}
    v_mul_f32 v{O}, v{O}, v{Ls}
    v_mul_f32 v{O+2}, v{O+2}, v{Ls}
    global_store_dwordx4 v{vRX}, {vr(O,4)}, s[46:47] {o.stf}
    """)
    if o.dual:
        A(f"v_add_u32 v{vRX}, 0x100000, v{vRX}")
        A(f"global_store_dwordx4 v{vRX}, {vr(O,4)}, s[46:47] sc1")
    stamp(5)
    PX = vVB
    PL = vVB + 16
    msk = lambda k: f"s[{90+2*k}:{91+2*k}]"
    A("s_cbranch_scc1 L_fin")
    A("s_xor_b32 s53, s53, s52")
    for k in range(4):
        A(f"s_mov_b64 {msk(k)}, -1")
    if not o.noack:
        A("s_waitcnt vmcnt(0)")
    if o.dual:
        A(f"s_mov_b32 s59, {o.dual}")
    A("L_poll:")
    if o.dual:
        A(f"""
        s_sub_u32 s59, s59, 1
        s_cmp_lg_u32 s59, 0
        s_cbranch_scc1 L_nosw
        v_xor_b32 v{vL16}, 0x100000, v{vL16}
        s_mov_b32 s59, {o.dual}
        L_nosw:
        """)
    for k in range(4):
        A(f"s_mov_b64 exec, {msk(k)}")
        A(f"global_load_dwordx4 {vr(PX+4*k,4)}, v{vL16}, s[48:49] offset:{1024*k} {o.ldf}")
    A("s_mov_b64 exec, -1")
    A("s_waitcnt vmcnt(0)")
    for k in range(4):
        A(f"v_xor_b32 v{PL+4+k}, v{PX+4*k+1}, v{PX+4*k+3}")
    for k in range(4):
        A(f"v_xor_b32_dpp v{PL+8+k}, v{PX+4*k+1}, v{PX+4*k+1} quad_perm:[2,3,0,1] {DPPM}")
    for k in range(4):
        A(f"v_xor_b32 v{PL+4+k}, s53, v{PL+4+k}")
    for k in range(4):
        A(f"v_or_b32 v{PL+4+k}, v{PL+4+k}, v{PL+8+k}")
    for k in range(4):
        A(f"v_or_b32_dpp v{PL+4+k}, v{PL+4+k}, v{PL+4+k} quad_perm:[1,0,3,2] {DPPM}")
    for k in range(4):
        A(f"v_or_b32_dpp v{PL+4+k}, v{PL+4+k}, v{PL+4+k} quad_perm:[2,3,0,1] {DPPM}")
    for k in range(4):
        A(f"v_or_b32_dpp v{PL+4+k}, v{PL+4+k}, v{PL+4+k} row_half_mirror {DPPM}")
    for k in range(4):
        A(f"v_cmp_ne_u32 {msk(k)}, 0, v{PL+4+k}")
    for k in range(4):
        A(f"v_xor_b32 v{PL+k}, s52, v{PX+4*k+1}")
    A(f"""
    s_or_b64 s[40:41], {msk(0)}, {msk(1)}
    s_or_b64 s[42:43], {msk(2)}, {msk(3)}
    s_or_b64 s[44:45], s[40:41], s[42:43]
    s_cbranch_scc0 L_go
    s_bcnt1_i32_b64 s40, s[40:41]
    s_bcnt1_i32_b64 s41, s[42:43]
    s_add_u32 s40, s40, s41
    s_cmp_le_u32 s40, {o.tight*8}
    s_cbranch_scc1 L_poll
    s_sleep {o.sleep}
    s_branch L_poll
    L_go:
    """)
    stamp(6)
    A(f"""
    v_max3_f32 v{M}, v{PL}, v{PL+1}, v{PL+2}
    v_max_f32 v{M}, v{M}, v{PL+3}
    v_mov_b32 v{T2}, v{M}
    s_nop 1
    v_permlane32_swap_b32 v{M}, v{T2}
    v_max_f32 v{M}, v{M}, v{T2}
    v_mov_b32 v{T2}, v{M}
    s_nop 1
    v_permlane16_swap_b32 v{M}, v{T2}
    v_max_f32 v{M}, v{M}, v{T2}
    s_nop 1
    v_max_f32_dpp v{M}, v{M}, v{M} row_ror:8 {DPPM}
    """)
    for k in range(4):
        A(f"v_sub_f32 v{PL+k}, v{PL+k}, v{M}")
    for k in range(4):
        A(f"v_exp_f32 v{PL+k}, v{PL+k}")
    A(f"""
    v_mul_f32 v{PX}, v{PL}, v{PX}
    v_mul_f32 v{PX+2}, v{PL}, v{PX+2}
    v_add_f32 v{Ls}, v{PL}, v{PL+1}
    v_add_f32 v{T2}, v{PL+2}, v{PL+3}
    v_add_f32 v{Ls}, v{Ls}, v{T2}
    """)
    for k in range(1, 4):
        A(f"v_fmac_f32 v{PX}, v{PL+k}, v{PX+4*k}")
        A(f"v_fmac_f32 v{PX+2}, v{PL+k}, v{PX+4*k+2}")
    A(f"""
    v_mov_b32 v{T2}, v{Ls}
    v_mov_b32 v{PX+1}, v{PX}
    v_mov_b32 v{PX+3}, v{PX+2}
    v_permlane32_swap_b32 v{Ls}, v{T2}
    v_permlane32_swap_b32 v{PX}, v{PX+1}
    v_permlane32_swap_b32 v{PX+2}, v{PX+3}
    v_add_f32 v{Ls}, v{Ls}, v{T2}
    v_add_f32 v{PX}, v{PX}, v{PX+1}
    v_add_f32 v{PX+2}, v{PX+2}, v{PX+3}
    v_mov_b32 v{T2}, v{Ls}
    v_mov_b32 v{PX+1}, v{PX}
    v_mov_b32 v{PX+3}, v{PX+2}
    v_permlane16_swap_b32 v{Ls}, v{T2}
    v_permlane16_swap_b32 v{PX}, v{PX+1}
    v_permlane16_swap_b32 v{PX+2}, v{PX+3}
    v_add_f32 v{Ls}, v{Ls}, v{T2}
    v_add_f32 v{PX}, v{PX}, v{PX+1}
    v_add_f32 v{PX+2}, v{PX+2}, v{PX+3}
    v_add_f32_dpp v{Ls}, v{Ls}, v{Ls} row_ror:8 {DPPM}
    v_add_f32_dpp v{PX}, v{PX}, v{PX} row_ror:8 {DPPM}
    v_add_f32_dpp v{PX+2}, v{PX+2}, v{PX+2} row_ror:8 {DPPM}
    v_rcp_f32 v{Ls}, v{Ls}
    s_mov_b64 exec, 0xff
    v_mul_f32 v{PX}, v{PX}, v{Ls}
    v_mul_f32 v{PX+2}, v{PX+2}, v{Ls}
    v_cvt_pk_bf16_f32 v{PX}, v{PX}, v{PX+2}
    global_store_dword v{vOUT}, v{PX}, s[14:15]
    """)
    if o.diag:
        A("s_memrealtime s[40:41]\ns_waitcnt lgkmcnt(0)\ns_bitset0_b32 s40, 31")
        if o.diag == "span":
            A("s_sub_u32 s42, s40, s52")
        elif o.diag == "skew":
            A("s_sub_u32 s42, s50, s52\ns_mul_i32 s42, s42, 10")
        elif o.diag == "pro":
            A("s_bitset0_b32 s88, 31\ns_sub_u32 s42, s50, s88\ns_mul_i32 s42, s42, 10")
        elif o.diag == "pro3":
            A("s_sub_u32 s42, s100, s88\ns_sub_u32 s42, s42, 1700\ns_mul_i32 s42, s42, 10")
        elif o.diag in ("pro1", "pro2"):
            A("s_sub_u32 s42, s100, s88\ns_mul_i32 s42, s42, 10")
        elif o.diag == "zero":
            A("s_mov_b32 s42, 0")
        A("""
        s_max_i32 s42, s42, 0
        s_min_i32 s42, s42, 20000
        s_mov_b32 s44, 0
        L_spin:
        s_memrealtime s[46:47]
        s_waitcnt lgkmcnt(0)
        s_bitset0_b32 s46, 31
        s_sub_u32 s43, s46, s40
        s_add_u32 s44, s44, 1
        s_cmp_gt_u32 s44, 20000
        s_cbranch_scc1 L_fin
        s_cmp_lt_u32 s43, s42
        s_cbranch_scc1 L_spin
        """)
    A("L_fin:")
    if nst:
        A("s_mov_b64 exec, -1")
        A("s_waitcnt vmcnt(0)")
        stamp(nst - 1)
        A(f"""
        s_lshl_b32 s40, s2, 2
        s_add_u32 s40, s40, s29
        s_mul_i32 s40, s40, {nst*8}
        s_add_u32 s40, s40, {STAMP_OFF}
        v_mov_b32 v1, s40
        s_waitcnt lgkmcnt(0)
        s_mov_b64 exec, 1
        """)
        for i in range(nst):
            A(f"v_mov_b32 v2, s{sST+2*i}")
            A(f"v_mov_b32 v3, s{sST+2*i+1}")
            A(f"global_store_dwordx2 v1, v[2:3], s[18:19] offset:{8*i}")
            A(f"s_nop 1")
    A("L_end:")
    A("s_endpgm")
    lds = ML_OFF + 64
    out = HEADER
    out += f"; @launch grid=(256,1,1) block=(256,1,1) lds={lds}\n"
    out += f""".amdgcn_target "amdgcn-amd-amdhsa--gfx950"
.text
.globl {KN}
.p2align 8
.type {KN},@function
{KN}:
"""
    out += A.text()
    acc = min(256, (o.vgpr + 3) // 4 * 4)
    out += f""".section .rodata,"a"
.p2align 6
.amdhsa_kernel {KN}
  .amdhsa_next_free_vgpr {o.vgpr}
  .amdhsa_next_free_sgpr 102
  .amdhsa_accum_offset {acc}
  .amdhsa_group_segment_fixed_size 0
  .amdhsa_kernarg_size 64
  .amdhsa_user_sgpr_count 2
  .amdhsa_user_sgpr_kernarg_segment_ptr 1
  .amdhsa_system_sgpr_workgroup_id_x 1
.end_amdhsa_kernel
"""
    return out

if __name__ == "__main__":
    ap = argparse.ArgumentParser()
    ap.add_argument("out")
    ap.add_argument("--map", type=int, default=1)
    ap.add_argument("--wk", default="65656565")
    ap.add_argument("--wv", default="65656565")
    ap.add_argument("--kord", default="D")
    ap.add_argument("--vord", default="D")
    ap.add_argument("--vgpr", type=int, default=512)
    ap.add_argument("--sleep", type=int, default=6)
    ap.add_argument("--tight", type=int, default=4)
    ap.add_argument("--sort", type=int, default=1)
    ap.add_argument("--stf", default="sc1")
    ape = ap.add_argument("--ldf", default="sc1")
    ap.add_argument("--noack", action="store_true")
    ap.add_argument("--np", type=int, default=8)
    ap.add_argument("--dual", type=int, default=0)
    ap.add_argument("--skew", default="")
    ap.add_argument("--thr", default="")
    ap.add_argument("--tlb", action="store_true")
    ap.add_argument("--tlbv", type=int, default=0)
    ap.add_argument("--u0", action="store_true")
    ap.add_argument("--diag", default="")
    ap.add_argument("--icp", action="store_true")
    ap.add_argument("--ff", action="store_true")
    ap.add_argument("--fflv", default="032")
    ap.add_argument("--ffc0", type=int, default=20)
    ap.add_argument("--ffg", type=int, default=32)
    ap.add_argument("--ffr", type=int, default=2)
    ap.add_argument("--thrk", default="")
    ap.add_argument("--stamps", type=int, default=0)
    ap.add_argument("--itstamps", action="store_true")
    o = ap.parse_args()
    open(o.out, "w").write(gen(o))
```
